```python
import torch

def _softmax(x, axis=-1):
    return torch.softmax(x, dim=axis)
def _gelu(x):
    return torch.nn.functional.gelu(x, approximate="tanh")
def _silu(x):
    return torch.nn.functional.silu(x)
def _sigmoid(x):
    return torch.sigmoid(x)
def _layernorm(x, axis=-1, eps=1e-5):
    m = x.mean(dim=axis, keepdim=True)
    v = x.var(dim=axis, keepdim=True, unbiased=False)
    return (x - m) / torch.sqrt(v + eps)
def _scatter_add(tgt, idx, src, axis=0):
    return tgt.clone().index_add_(axis, idx, src)
def _segment_sum(src, seg, n):
    out = torch.zeros((n,) + src.shape[1:], dtype=src.dtype)
    return out.index_add_(0, seg, src)
def _pad(x, pw):
    flat = tuple(v for pair in reversed(pw) for v in pair)
    return torch.nn.functional.pad(x, flat)

kernel_name = 'parallel_sum__linear_kernel_hedgehog__dense_activation_gelu__prompt'

def setup_inputs():

    _w = (lambda a: (lambda t: t.to(torch.bfloat16) if t.is_floating_point() else t)(torch.as_tensor(a)))
    def _A_setup():
        B, S, D, H = 1, 2048, 1024, 32
        Dh = D // H
        return {
            "x": _w((lambda *s: torch.randn(*s, dtype=torch.bfloat16) * 0.05)(B, S, D)),
            "wqkv": _w((lambda *s: torch.randn(*s, dtype=torch.bfloat16) * 0.2)(D, 3 * D)),
            "w_phi": _w((lambda *s: torch.randn(*s, dtype=torch.bfloat16) * 0.2)(H, Dh, Dh) * (Dh ** -0.5)),
            "wo": _w((lambda *s: torch.randn(*s, dtype=torch.bfloat16) * 0.05)(D, D)),
        }
    _A_in = _A_setup()

    def _B_setup():
        B, S, D, F = 1, 2048, 1024, 3584
        return {
            "x": _w((lambda *s: torch.randn(*s, dtype=torch.bfloat16) * 0.05)(B, S, D)),
            "w1": _w((lambda *s: torch.randn(*s, dtype=torch.bfloat16) * 0.8)(D, F) * (D ** -0.5)),
            "b1": _w((lambda *s: torch.randn(*s, dtype=torch.bfloat16) * 0.8)(F) * 0.01),
            "w2": _w((lambda *s: torch.randn(*s, dtype=torch.bfloat16) * 0.2)(F, D) * (F ** -0.5)),
            "b2": _w((lambda *s: torch.randn(*s, dtype=torch.bfloat16) * 0.2)(D) * 0.01),
        }
    _B_in = _B_setup()

    return {
        "A_x": _A_in["x"],
        "A_wqkv": _A_in["wqkv"],
        "A_w_phi": _A_in["w_phi"],
        "A_wo": _A_in["wo"],
        "B_x": _B_in["x"],
        "B_w1": _B_in["w1"],
        "B_b1": _B_in["b1"],
        "B_w2": _B_in["w2"],
        "B_b2": _B_in["b2"],
    }

def reference(A_x, A_wqkv, A_w_phi, A_wo, B_x, B_w1, B_b1, B_w2, B_b2):
    def _A_ref(x, wqkv, w_phi, wo):
        B, S, D = x.shape
        H = 32; Dh = D // H
        qkv = (lambda x, *d: x.permute(*d))((x @ wqkv).reshape(B, S, 3, H, Dh), 2, 0, 3, 1, 4)
        q, k, v = qkv[0], qkv[1], qkv[2]
        pq = torch.einsum("bhsd,hdf->bhsf", q, w_phi)
        pk = torch.einsum("bhsd,hdf->bhsf", k, w_phi)
        phi_q = torch.concatenate([_softmax(pq, axis=-1), _softmax(-pq, axis=-1)], axis=-1)
        phi_k = torch.concatenate([_softmax(pk, axis=-1), _softmax(-pk, axis=-1)], axis=-1)
        kv = torch.einsum("bhsf,bhsd->bhfd", phi_k, v)
        z  = torch.einsum("bhsf->bhf", phi_k)
        num = torch.einsum("bhqf,bhfd->bhqd", phi_q, kv)
        den = torch.einsum("bhqf,bhf->bhq", phi_q, z)[..., None] + 1e-6
        o = num / den
        return (lambda x, *d: x.permute(*d))(o, 0, 2, 1, 3).reshape(B, S, D) @ wo

    def _B_ref(x, w1, b1, w2, b2):
        h = torch.einsum("bsd,df->bsf", x, w1) + b1
        h = _gelu(h)
        return torch.einsum("bsf,fd->bsd", h, w2) + b2

    x = A_x
    xn = _layernorm(x, axis=-1)
    return x + _A_ref(xn, A_wqkv, A_w_phi, A_wo) + _B_ref(xn, B_w1, B_b1, B_w2, B_b2)
```

```python
import sys
import re

NAME = "parallel_sum__linear_kernel_hedgehog__dense_activation_gelu__prompt"
OUT = "cdna_kernels/%s.s" % NAME

S, D, H, DH, F = 2048, 1024, 32, 32, 3584
KCAT = F + D
KA_X, KA_WQKV, KA_WPHI, KA_WO, KA_BX, KA_W1, KA_B1, KA_W2, KA_B2, KA_OUT, KA_DBG, KA_WS = [8 * i for i in range(12)]
WS_XN = 0x0000000
WS_HC = 0x0400000
WS_PQ = 0x1800000
WS_KV = 0x2000000
WS_P = 0x2400000
SZ_XN = S * D * 2
SZ_HC = S * KCAT * 2
SZ_PQ = H * S * 64 * 2
SZ_KV = 8 * 32 * 16384
SZ_P = 2 * S * D * 4

LOG2E = 0x3fb8aa3b


class Asm:
    def __init__(self):
        self.lines = []

    def __call__(self, s):
        m = re.search(r"offset:(\d+)", s)
        if m:
            lim = 4096 if s.startswith("buffer_") else 65536
            assert int(m.group(1)) < lim, s
        self.lines.append("    " + s)

    def label(self, s):
        self.lines.append(s + ":")

    def raw(self, s):
        self.lines.append(s)

    def text(self):
        return "\n".join(self.lines) + "\n"


def vr(b, n=1):
    return "v%d" % b if n == 1 else "v[%d:%d]" % (b, b + n - 1)


def sr(b, n=1):
    return "s%d" % b if n == 1 else "s[%d:%d]" % (b, b + n - 1)


def srd(a, d, base, off, size):
    if off:
        a("s_add_u32 s%d, s%d, 0x%x" % (d, base, off))
        a("s_addc_u32 s%d, s%d, 0" % (d + 1, base + 1))
    else:
        a("s_mov_b32 s%d, s%d" % (d, base))
        a("s_mov_b32 s%d, s%d" % (d + 1, base + 1))
    a("s_and_b32 s%d, s%d, 0xffff" % (d + 1, d + 1))
    a("s_mov_b32 s%d, 0x%x" % (d + 2, size))
    a("s_mov_b32 s%d, 0x00020000" % (d + 3))


def kernel_head(a, label):
    a.raw(".globl %s" % label)
    a.raw(".p2align 8")
    a.raw(".type %s,@function" % label)
    a.label(label)


def kernel_desc(label, vgpr, sgpr=102):
    acc = (vgpr + 3) // 4 * 4
    return """.amdhsa_kernel %s
  .amdhsa_next_free_vgpr %d
  .amdhsa_next_free_sgpr %d
  .amdhsa_accum_offset %d
  .amdhsa_group_segment_fixed_size 0
  .amdhsa_kernarg_size 96
  .amdhsa_user_sgpr_count 2
  .amdhsa_user_sgpr_kernarg_segment_ptr 1
  .amdhsa_system_sgpr_workgroup_id_x 1
.end_amdhsa_kernel
""" % (label, vgpr, sgpr, acc)


def allreduce64(a, op, v, t):
    for ctl in ("quad_perm:[1,0,3,2]", "quad_perm:[2,3,0,1]", "row_half_mirror", "row_mirror"):
        a("s_nop 1")
        a("%s_dpp %s, %s, %s %s row_mask:0xf bank_mask:0xf" % (op, vr(v), vr(v), vr(v), ctl))
    for sw in ("v_permlane16_swap_b32", "v_permlane32_swap_b32"):
        a("v_mov_b32 %s, %s" % (vr(t), vr(v)))
        a("s_nop 1")
        a("%s %s, %s" % (sw, vr(v), vr(t)))
        a("s_nop 1")
        a("%s %s, %s, %s" % (op, vr(v), vr(v), vr(t)))


def gen_ln(a):
    L = "ln_kernel"
    kernel_head(a, L)
    a("s_cmp_ge_u32 s2, 512")
    a("s_cbranch_scc1 ln_done")
    a("s_load_dwordx2 s[4:5], s[0:1], %d" % KA_X)
    a("s_load_dwordx2 s[6:7], s[0:1], %d" % KA_WS)
    a("v_lshrrev_b32 v1, 6, v0")
    a("v_and_b32 v2, 63, v0")
    a("s_lshl_b32 s3, s2, 2")
    a("v_add_u32 v1, s3, v1")
    a("v_lshlrev_b32 v1, 11, v1")
    a("v_lshl_add_u32 v1, v2, 4, v1")
    a("s_waitcnt lgkmcnt(0)")
    srd(a, 8, 4, 0, SZ_XN)
    srd(a, 12, 6, WS_XN, SZ_XN)
    a("buffer_load_dwordx4 v[4:7], v1, s[8:11], 0 offen")
    a("buffer_load_dwordx4 v[8:11], v1, s[8:11], 0 offen offset:1024")
    a("s_waitcnt vmcnt(0)")
    for i in range(8):
        a("v_lshlrev_b32 v%d, 16, v%d" % (16 + 2 * i, 4 + i))
        a("v_and_b32 v%d, 0xffff0000, v%d" % (17 + 2 * i, 4 + i))
    a("v_add_f32 v32, v16, v17")
    for i in range(2, 16):
        a("v_add_f32 v32, v32, v%d" % (16 + i))
    allreduce64(a, "v_add_f32", 32, 33)
    a("v_mul_f32 v32, 0x3a800000, v32")
    a("v_sub_f32 v34, v16, v32")
    a("v_mul_f32 v35, v34, v34")
    for i in range(1, 16):
        a("v_sub_f32 v34, v%d, v32" % (16 + i))
        a("v_fmac_f32 v35, v34, v34")
    allreduce64(a, "v_add_f32", 35, 33)
    a("v_mul_f32 v35, 0x3a800000, v35")
    a("v_cvt_pk_bf16_f32 v36, v32, v35")
    a("v_lshlrev_b32 v32, 16, v36")
    a("v_and_b32 v35, 0xffff0000, v36")
    a("v_add_f32 v35, 0x3727c5ac, v35")
    a("v_cvt_pk_bf16_f32 v36, v35, v35")
    a("v_lshlrev_b32 v35, 16, v36")
    a("v_sqrt_f32 v35, v35")
    a("s_nop 0")
    a("v_cvt_pk_bf16_f32 v36, v35, v35")
    a("v_lshlrev_b32 v35, 16, v36")
    a("v_rcp_f32 v35, v35")
    a("s_nop 0")
    for i in range(8):
        a("v_sub_f32 v%d, v%d, v32" % (16 + 2 * i, 16 + 2 * i))
        a("v_sub_f32 v%d, v%d, v32" % (17 + 2 * i, 17 + 2 * i))
        a("v_cvt_pk_bf16_f32 v36, v%d, v%d" % (16 + 2 * i, 17 + 2 * i))
        a("v_lshlrev_b32 v37, 16, v36")
        a("v_and_b32 v38, 0xffff0000, v36")
        a("v_mul_f32 v37, v37, v35")
        a("v_mul_f32 v38, v38, v35")
        a("v_cvt_pk_bf16_f32 v%d, v37, v38" % (4 + i))
    a("buffer_store_dwordx4 v[4:7], v1, s[12:15], 0 offen")
    a("buffer_store_dwordx4 v[8:11], v1, s[12:15], 0 offen offset:1024")
    a.label("ln_done")
    a("s_endpgm")
    return L, 40


def interleave(a, mfmas, fillers):
    n = len(mfmas)
    nf = len(fillers)
    fi = 0
    for i, m in enumerate(mfmas):
        a(m)
        want = ((i + 1) * nf + n - 1) // n if nf <= n else ((i + 1) * nf) // n
        want = min(nf, max(want, min(nf, i + 1)))
        while fi < want:
            for x in fillers[fi]:
                a(x)
            fi += 1
    while fi < nf:
        for x in fillers[fi]:
            a(x)
        fi += 1


class Gemm:
    def __init__(self, a, MT, NT, acc, fragA, fragB, vA, vB, voffA, voffB,
                 a_off, b_off, orient, sM0, sOffA, sOffB, srdA, srdB, stepA, stepB):
        self.__dict__.update(locals())

    def mfmas(self, st):
        out = []
        for mt in range(self.MT):
            for nt in range(self.NT):
                c = self.acc + (mt * self.NT + nt) * 4
                fa = self.fragA[st] + mt * 4
                fb = self.fragB[st] + nt * 4
                if self.orient(nt):
                    x, y = fb, fa
                else:
                    x, y = fa, fb
                out.append("v_mfma_f32_16x16x32_bf16 %s, %s, %s, %s" % (vr(c, 4), vr(x, 4), vr(y, 4), vr(c, 4)))
        return out

    def reads(self, st, stage, ph):
        out = []
        for mt in range(self.MT):
            out.append(["ds_read_b128 %s, %s offset:%d" % (vr(self.fragA[st] + mt * 4, 4), vr(self.vA[ph]), self.a_off(stage, mt))])
        for nt in range(self.NT):
            for rd in range(2):
                out.append(["ds_read_b64_tr_b16 %s, %s offset:%d" % (vr(self.fragB[st] + nt * 4 + rd * 2, 2), vr(self.vB[nt]), self.b_off(stage, ph, rd))])
        return out

    def dmas(self, stage):
        out = []
        for j in range(4):
            out.append(["s_add_u32 m0, s%d, %d" % (self.sM0, stage * 32768 + j * 1024),
                        "s_nop 0",
                        "buffer_load_dwordx4 %s, %s, s%d offen lds" % (vr(self.voffA + j), sr(self.srdA, 4), self.sOffA)])
        for j in range(4):
            out.append(["s_add_u32 m0, s%d, %d" % (self.sM0, 65536 + stage * 32768 + j * 1024),
                        "s_nop 0",
                        "buffer_load_dwordx4 %s, %s, s%d offen lds" % (vr(self.voffB + j), sr(self.srdB, 4), self.sOffB)])
        return out

    def advance(self):
        return [["s_add_u32 s%d, s%d, %d" % (self.sOffA, self.sOffA, self.stepA),
                 "s_add_u32 s%d, s%d, %d" % (self.sOffB, self.sOffB, self.stepB)]]

    def prologue(self, pre_dma=None):
        a = self.a
        for stage in range(2):
            if pre_dma:
                for x in pre_dma():
                    a(x)
            for f in self.dmas(stage) + self.advance():
                for x in f:
                    a(x)
        for i in range(self.MT * self.NT * 4):
            a("v_mov_b32 v%d, 0" % (self.acc + i))
        a("s_waitcnt vmcnt(8)")
        a("s_barrier")
        for f in self.reads(0, 0, 0):
            for x in f:
                a(x)
        a("s_waitcnt lgkmcnt(0)")

    def iteration(self, stage, dma, nxt, pre_dma=None):
        a = self.a
        interleave(a, self.mfmas(0), self.reads(1, stage, 1))
        if nxt:
            a("s_waitcnt vmcnt(0) lgkmcnt(0)")
            a("s_barrier")
        else:
            a("s_waitcnt lgkmcnt(0)")
        fl = []
        if dma:
            if pre_dma:
                fl.append(pre_dma())
            fl += self.dmas(stage) + self.advance()
        if nxt:
            fl += self.reads(0, stage ^ 1, 0)
        interleave(a, self.mfmas(1), fl)
        if nxt:
            a("s_waitcnt lgkmcnt(0)")

    def run(self, nstages, tag, sCnt, pre_dma=None):
        a = self.a
        self.prologue(pre_dma)
        npairs = (nstages - 2) // 2
        a("s_mov_b32 s%d, %d" % (sCnt, npairs))
        a.label(tag + "_loop")
        self.iteration(0, True, True, pre_dma)
        self.iteration(1, True, True, pre_dma)
        a("s_sub_u32 s%d, s%d, 1" % (sCnt, sCnt))
        a("s_cmp_lg_u32 s%d, 0" % sCnt)
        a("s_cbranch_scc1 %s_loop" % tag)
        self.iteration(0, False, True)
        self.iteration(1, False, False)


G1_ACC = 128
G1_FA = (32, 76)
G1_FB = (48, 92)
G1_VOA, G1_VOB = 8, 12
G1_VA = (16, 17)
G1_VB = (18, 19, 20, 21, 22, 23, 24)
G1_X = 240


def g1_common_addr(a):
    a("v_and_b32 v1, 63, v0")
    a("v_lshrrev_b32 v2, 6, v0")
    a("s_nop 0")
    a("v_readfirstlane_b32 s20, v2")
    a("v_and_b32 v3, 15, v1")
    a("v_lshrrev_b32 v4, 4, v1")


def gen_gemm1(a):
    L = "gemm1_kernel"
    kernel_head(a, L)
    a("s_cmp_ge_u32 s2, 256")
    a("s_cbranch_scc1 g1_done")
    a("s_load_dwordx2 s[4:5], s[0:1], %d" % KA_WS)
    a("s_load_dwordx2 s[6:7], s[0:1], %d" % KA_WQKV)
    a("s_load_dwordx2 s[30:31], s[0:1], %d" % KA_W1)
    a("s_load_dwordx2 s[32:33], s[0:1], %d" % KA_WPHI)
    a("s_load_dwordx2 s[34:35], s[0:1], %d" % KA_B1)
    g1_common_addr(a)
    a("s_and_b32 s21, s2, 7")
    a("s_lshr_b32 s22, s2, 3")
    a("s_and_b32 s23, s21, 1")
    a("s_lshl_b32 s23, s23, 2")
    a("s_and_b32 s24, s22, 3")
    a("s_add_u32 s23, s23, s24")
    a("s_lshr_b32 s24, s22, 2")
    a("s_lshr_b32 s25, s21, 1")
    a("s_lshl_b32 s25, s25, 2")
    a("s_and_b32 s26, s24, 3")
    a("s_add_u32 s25, s25, s26")
    a("s_lshr_b32 s21, s20, 1")
    a("s_and_b32 s22, s20, 1")
    a("s_lshl_b32 s27, s20, 12")
    a("v_lshrrev_b32 v5, 3, v1")
    a("s_lshl_b32 s28, s23, 8")
    a("s_lshl_b32 s29, s20, 5")
    a("s_add_u32 s28, s28, s29")
    a("v_add_u32 v5, s28, v5")
    a("v_lshlrev_b32 v5, 11, v5")
    a("v_and_b32 v6, 7, v1")
    for j in range(4):
        a("v_add_u32 v7, %d, v4" % (4 * j))
        a("v_and_b32 v7, 7, v7")
        a("v_xor_b32 v7, v7, v6")
        a("v_lshl_add_u32 v7, v7, 4, v5")
        a("v_add_u32 v%d, %d, v7" % (G1_VOA + j, j * 8 * 2048))
    a("v_lshrrev_b32 v5, 1, v3")
    a("v_xor_b32 v5, v5, v4")
    a("s_lshl_b32 s28, s21, 6")
    a("v_add_u32 v6, s28, v3")
    a("v_lshlrev_b32 v6, 7, v6")
    a("v_lshl_add_u32 v%d, v5, 4, v6" % G1_VA[0])
    a("v_xor_b32 v%d, 64, v%d" % (G1_VA[1], G1_VA[0]))
    a("v_bfe_u32 v5, v1, 2, 2")
    a("v_and_b32 v6, 1, v4")
    a("v_lshl_or_b32 v6, v6, 2, v5")
    a("v_lshl_add_u32 v5, v4, 3, v5")
    a("v_lshlrev_b32 v5, 9, v5")
    a("v_and_b32 v7, 3, v1")
    a("v_lshl_add_u32 v5, v7, 3, v5")
    a("v_add_u32 v5, 0x10000, v5")
    a("s_waitcnt lgkmcnt(0)")
    srd(a, 8, 4, WS_XN, SZ_XN)
    a("s_mov_b32 s16, 0")
    a("s_mov_b32 s17, 0")
    a("s_cmp_ge_u32 s24, 4")
    a("s_cbranch_scc1 g1_w1")

    def b_dma_rows(a, j):
        a("v_lshrrev_b32 v25, 5, v1")
        a("v_add_u32 v25, %d, v25" % (2 * j))
        a("v_and_b32 v26, 3, v25")
        a("v_and_b32 v27, 1, s20")
        a("v_lshl_or_b32 v26, v27, 2, v26")
        a("v_lshlrev_b32 v26, 1, v26")
        a("v_and_b32 v27, 31, v1")
        a("v_xor_b32 v26, v26, v27")
        a("s_lshl_b32 s28, s20, 3")
        a("v_add_u32 v25, s28, v25")

    def a_off(stage, mt):
        return stage * 32768 + mt * 2048

    def b_off(stage, ph, rd):
        return stage * 32768 + ph * 16384 + rd * 2048

    NT = 6
    for tt in range(NT):
        a("s_mul_i32 s28, s22, %d" % NT)
        a("s_add_u32 s28, s28, %d" % tt)
        a("v_xor_b32 v7, s28, v6")
        a("v_lshl_add_u32 v%d, v7, 5, v5" % G1_VB[tt])
    srd(a, 12, 6, 0, D * 3 * D * 2)
    for j in range(4):
        b_dma_rows(a, j)
        a("v_lshrrev_b32 v27, 2, v26")
        a("v_cmp_le_u32 vcc, 3, v27")
        a("s_nop 1")
        a("v_cndmask_b32 v28, 0, 1, vcc")
        a("v_mul_u32_u24 v29, 3, v28")
        a("v_sub_u32 v29, v27, v29")
        a("s_lshl_b32 s28, s25, 1")
        a("v_add_u32 v28, s28, v28")
        a("v_lshlrev_b32 v28, 6, v28")
        a("v_lshl_add_u32 v28, v29, 11, v28")
        a("v_and_b32 v29, 3, v26")
        a("v_lshl_add_u32 v28, v29, 4, v28")
        a("s_movk_i32 s28, 6144")
        a("v_mul_lo_u32 v29, v25, s28")
        a("v_add_u32 v28, v28, v29")
        a("v_cmp_gt_u32 vcc, 6, v27")
        a("v_mov_b32 v29, 0x7f000000")
        a("s_nop 0")
        a("v_cndmask_b32 v%d, v29, v28, vcc" % (G1_VOB + j))
    srd(a, 36, 32, 0, H * DH * DH * 2)
    a("s_lshl_b32 s28, s25, 1")
    a("s_add_u32 s28, s28, s22")
    a("s_lshl_b32 s28, s28, 11")
    a("v_lshlrev_b32 v25, 8, v4")
    a("v_lshl_add_u32 v25, v3, 1, v25")
    a("v_add_u32 v25, s28, v25")
    for ft in range(2):
        for j in range(8):
            d = (j & 3) + (16 if j >= 4 else 0)
            a("buffer_load_ushort v%d, v25, s[36:39], 0 offen offset:%d" % (224 + ft * 8 + j, d * 64 + ft * 32))
    g = Gemm(a, 4, NT, G1_ACC, G1_FA, G1_FB, G1_VA, G1_VB, G1_VOA, G1_VOB, a_off, b_off,
             lambda nt: nt < 4, 27, 16, 17, 8, 12, 128, 64 * 6144)
    g.run(16, "g1q", 18)
    g1_qkv_epilogue(a)
    a("s_branch g1_done")

    a.label("g1_w1")
    NT = 7
    for tt in range(NT):
        a("s_mul_i32 s28, s22, %d" % NT)
        a("s_add_u32 s28, s28, %d" % tt)
        a("v_xor_b32 v7, s28, v6")
        a("v_lshl_add_u32 v%d, v7, 5, v5" % G1_VB[tt])
    srd(a, 12, 30, 0, D * F * 2)
    for j in range(4):
        b_dma_rows(a, j)
        a("s_mul_i32 s28, s25, 448")
        a("v_lshlrev_b32 v28, 4, v26")
        a("v_add_u32 v28, s28, v28")
        a("s_movk_i32 s28, 7168")
        a("v_mul_lo_u32 v29, v25, s28")
        a("v_add_u32 v28, v28, v29")
        a("v_cmp_gt_u32 vcc, 28, v26")
        a("v_mov_b32 v29, 0x7f000000")
        a("s_nop 0")
        a("v_cndmask_b32 v%d, v29, v28, vcc" % (G1_VOB + j))
    srd(a, 36, 34, 0, F * 2)
    a("s_mul_i32 s28, s25, 448")
    a("s_mul_i32 s29, s22, 224")
    a("s_add_u32 s28, s28, s29")
    a("v_lshlrev_b32 v25, 3, v4")
    a("v_add_u32 v25, s28, v25")
    for tt in range(NT):
        a("buffer_load_dwordx2 %s, v25, s[36:39], 0 offen offset:%d" % (vr(G1_X + 2 * tt, 2), tt * 32))
    g = Gemm(a, 4, NT, G1_ACC, G1_FA, G1_FB, G1_VA, G1_VB, G1_VOA, G1_VOB, a_off, b_off,
             lambda nt: True, 27, 16, 17, 8, 12, 128, 64 * 7168)
    g.run(16, "g1w", 18)
    g1_w1_epilogue(a)
    a.label("g1_done")
    a("s_endpgm")
    return L, 256


def g1_w1_epilogue(a):
    NT = 7
    srd(a, 40, 4, WS_HC, SZ_HC)
    for tt in range(NT):
        for p in range(2):
            a("v_lshlrev_b32 v%d, 16, v%d" % (32 + tt * 4 + 2 * p, G1_X + 2 * tt + p))
            a("v_and_b32 v%d, 0xffff0000, v%d" % (33 + tt * 4 + 2 * p, G1_X + 2 * tt + p))
    a("s_lshl_b32 s28, s23, 8")
    a("s_lshl_b32 s29, s21, 6")
    a("s_add_u32 s28, s28, s29")
    a("v_add_u32 v5, s28, v3")
    a("s_movk_i32 s28, 9216")
    a("v_mul_lo_u32 v5, v5, s28")
    a("s_mul_i32 s28, s25, 448")
    a("s_mul_i32 s29, s22, 224")
    a("s_add_u32 s28, s28, s29")
    a("v_lshl_add_u32 v6, v4, 3, s28")
    a("v_add_u32 v5, v5, v6")
    import struct
    k0 = -2.0 * 0.7978845608028654 * 1.4426950408889634
    k1 = k0 * 0.044715
    a("s_mov_b32 s44, 0x%08x" % struct.unpack("<I", struct.pack("<f", k0))[0])
    a("s_mov_b32 s45, 0x%08x" % struct.unpack("<I", struct.pack("<f", k1))[0])
    a("v_mov_b32 v7, s44")
    a("s_nop 7")
    for mt in range(4):
        for tt in range(NT):
            c = G1_ACC + (mt * NT + tt) * 4
            T = 64 + ((mt * NT + tt) & 1) * 16
            for r in range(4):
                a("v_add_f32 v%d, v%d, v%d" % (T + r, c + r, 32 + tt * 4 + r))
            for r in range(4):
                a("v_mul_f32 v%d, v%d, v%d" % (T + 4 + r, T + r, T + r))
            for r in range(4):
                a("v_fma_f32 v%d, v%d, s45, v7" % (T + 4 + r, T + 4 + r))
            for r in range(4):
                a("v_mul_f32 v%d, v%d, v%d" % (T + 4 + r, T + 4 + r, T + r))
            for r in range(4):
                a("v_exp_f32 v%d, v%d" % (T + 4 + r, T + 4 + r))
            for r in range(4):
                a("v_add_f32 v%d, 1.0, v%d" % (T + 4 + r, T + 4 + r))
            for r in range(4):
                a("v_rcp_f32 v%d, v%d" % (T + 4 + r, T + 4 + r))
            for r in range(4):
                a("v_mul_f32 v%d, v%d, v%d" % (T + 4 + r, T + 4 + r, T + r))
            a("v_cvt_pk_bf16_f32 v%d, v%d, v%d" % (T + 8, T + 4, T + 5))
            a("v_cvt_pk_bf16_f32 v%d, v%d, v%d" % (T + 9, T + 6, T + 7))
            a("buffer_store_dwordx2 %s, v5, s[40:43], 0 offen offset:%d" % (vr(T + 8, 2), tt * 32))
        if mt < 3:
            a("v_add_u32 v5, %d, v5" % (16 * 9216))


def bf16_round_pair(a, x0, x1, t):
    a("v_cvt_pk_bf16_f32 v%d, v%d, v%d" % (t, x0, x1))
    a("v_lshlrev_b32 v%d, 16, v%d" % (x0, t))
    a("v_and_b32 v%d, 0xffff0000, v%d" % (x1, t))


def xlane_g(a, op, regs, temps):
    for sw in ("v_permlane16_swap_b32", "v_permlane32_swap_b32"):
        for v, t in zip(regs, temps):
            a("v_mov_b32 v%d, v%d" % (t, v))
        a("s_nop 1")
        for v, t in zip(regs, temps):
            a("%s v%d, v%d" % (sw, v, t))
        a("s_nop 1")
        for (v, t), o in zip(zip(regs, temps), op):
            a("%s v%d, v%d, v%d" % (o, v, v, t))


def dpp16(a, ops, regs):
    for ctl in ("quad_perm:[1,0,3,2]", "quad_perm:[2,3,0,1]", "row_half_mirror", "row_mirror"):
        if len(regs) < 3:
            a("s_nop 1")
        for v, o in zip(regs, ops):
            a("%s_dpp v%d, v%d, v%d %s row_mask:0xf bank_mask:0xf" % (o, v, v, v, ctl))


def g1_qkv_epilogue(a):
    NT = 6
    WP = (G1_X, G1_X + 4)

    def acc(mt, tt):
        return G1_ACC + (mt * NT + tt) * 4

    srd(a, 40, 4, WS_PQ, SZ_PQ)
    srd(a, 44, 4, WS_KV, SZ_KV)
    a("s_mov_b32 s48, 0x%08x" % LOG2E)
    a("s_lshl_b32 s28, s25, 1")
    a("s_add_u32 s49, s28, s22")
    a("s_lshl_b32 s28, s49, 11")
    a("s_lshl_b32 s29, s23, 8")
    a("s_add_u32 s28, s28, s29")
    a("s_lshl_b32 s29, s21, 6")
    a("s_add_u32 s28, s28, s29")
    a("v_add_u32 v5, s28, v3")
    a("v_lshlrev_b32 v5, 7, v5")
    a("v_lshl_add_u32 v5, v4, 3, v5")
    for i in range(8):
        a("v_lshl_or_b32 v%d, v%d, 16, v%d" % (G1_X + i, 224 + 2 * i + 1, 224 + 2 * i))
    a("s_nop 7")
    QF, P, MX, MN, T0, T1 = 32, 36, 44, 45, 46, 47
    EP, EN = 48, 56
    for mt in range(4):
        for h in range(2):
            for p in range(2):
                a("v_cvt_pk_bf16_f32 v%d, v%d, v%d" % (QF + h * 2 + p, acc(mt, h) + 2 * p, acc(mt, h) + 2 * p + 1))
        a("s_nop 1")
        for ft in range(2):
            a("v_mfma_f32_16x16x32_bf16 %s, %s, %s, 0" % (vr(P + ft * 4, 4), vr(WP[ft], 4), vr(QF, 4)))
        a("s_nop 7")
        a("s_nop 1")
        for i in range(4):
            bf16_round_pair(a, P + 2 * i, P + 2 * i + 1, T0)
        a("v_max3_f32 v%d, v%d, v%d, v%d" % (MX, P, P + 1, P + 2))
        a("v_min3_f32 v%d, v%d, v%d, v%d" % (MN, P, P + 1, P + 2))
        a("v_max3_f32 v%d, v%d, v%d, v%d" % (MX, MX, P + 3, P + 4))
        a("v_min3_f32 v%d, v%d, v%d, v%d" % (MN, MN, P + 3, P + 4))
        a("v_max3_f32 v%d, v%d, v%d, v%d" % (MX, MX, P + 5, P + 6))
        a("v_min3_f32 v%d, v%d, v%d, v%d" % (MN, MN, P + 5, P + 6))
        a("v_max_f32 v%d, v%d, v%d" % (MX, MX, P + 7))
        a("v_min_f32 v%d, v%d, v%d" % (MN, MN, P + 7))
        xlane_g(a, ("v_max_f32", "v_min_f32"), (MX, MN), (T0, T1))
        for i in range(8):
            a("v_sub_f32 v%d, v%d, v%d" % (EP + i, P + i, MX))
            a("v_sub_f32 v%d, v%d, v%d" % (EN + i, MN, P + i))
        for i in range(8):
            a("v_mul_f32 v%d, s48, v%d" % (EP + i, EP + i))
            a("v_mul_f32 v%d, s48, v%d" % (EN + i, EN + i))
        for i in range(8):
            a("v_exp_f32 v%d, v%d" % (EP + i, EP + i))
            a("v_exp_f32 v%d, v%d" % (EN + i, EN + i))
        a("s_nop 0")
        a("v_add_f32 v%d, v%d, v%d" % (MX, EP, EP + 1))
        a("v_add_f32 v%d, v%d, v%d" % (MN, EN, EN + 1))
        for i in range(2, 8):
            a("v_add_f32 v%d, v%d, v%d" % (MX, MX, EP + i))
            a("v_add_f32 v%d, v%d, v%d" % (MN, MN, EN + i))
        xlane_g(a, ("v_add_f32", "v_add_f32"), (MX, MN), (T0, T1))
        a("v_rcp_f32 v%d, v%d" % (MX, MX))
        a("v_rcp_f32 v%d, v%d" % (MN, MN))
        a("s_nop 0")
        for i in range(8):
            a("v_mul_f32 v%d, v%d, v%d" % (EP + i, EP + i, MX))
            a("v_mul_f32 v%d, v%d, v%d" % (EN + i, EN + i, MN))
        O = 64 + (mt & 1) * 8
        for i in range(4):
            a("v_cvt_pk_bf16_f32 v%d, v%d, v%d" % (O + i, EP + 2 * i, EP + 2 * i + 1))
            a("v_cvt_pk_bf16_f32 v%d, v%d, v%d" % (O + 4 + i, EN + 2 * i, EN + 2 * i + 1))
        for q in range(4):
            a("buffer_store_dwordx2 %s, v5, s[40:43], 0 offen offset:%d" % (vr(O + 2 * q, 2), q * 32))
        if mt < 3:
            a("v_add_u32 v5, 0x800, v5")
    KV = 80
    ZA = 112
    AF = 64
    BF = 8
    ONE = 16
    for i in range(48):
        a("v_mov_b32 v%d, 0" % (KV + i))
    for i in range(4):
        a("v_mov_b32 v%d, 0x3f803f80" % (ONE + i))
    M4, N4 = 20, 24
    a("s_nop 4")
    for mt in range(4):
        u, hf = mt >> 1, mt & 1
        for h in range(2):
            for p in range(2):
                a("v_cvt_pk_bf16_f32 v%d, v%d, v%d" % (QF + h * 2 + p, acc(mt, 2 + h) + 2 * p, acc(mt, 2 + h) + 2 * p + 1))
        a("s_nop 1")
        for ft in range(2):
            a("v_mfma_f32_16x16x32_bf16 %s, %s, %s, 0" % (vr(P + ft * 4, 4), vr(QF, 4), vr(WP[ft], 4)))
        for dt in range(2):
            for p in range(2):
                a("v_cvt_pk_bf16_f32 v%d, v%d, v%d" % (BF + dt * 4 + hf * 2 + p, acc(mt, 4 + dt) + 2 * p, acc(mt, 4 + dt) + 2 * p + 1))
        a("s_nop 7")
        for i in range(4):
            bf16_round_pair(a, P + 2 * i, P + 2 * i + 1, T0)
        for r in range(4):
            a("v_max_f32 v%d, v%d, v%d" % (M4 + r, P + r, P + 4 + r))
            a("v_min_f32 v%d, v%d, v%d" % (N4 + r, P + r, P + 4 + r))
        dpp16(a, ["v_max_f32"] * 4 + ["v_min_f32"] * 4, [M4 + r for r in range(4)] + [N4 + r for r in range(4)])
        for i in range(8):
            a("v_sub_f32 v%d, v%d, v%d" % (EP + i, P + i, M4 + (i & 3)))
            a("v_sub_f32 v%d, v%d, v%d" % (EN + i, N4 + (i & 3), P + i))
        for i in range(8):
            a("v_mul_f32 v%d, s48, v%d" % (EP + i, EP + i))
            a("v_mul_f32 v%d, s48, v%d" % (EN + i, EN + i))
        for i in range(8):
            a("v_exp_f32 v%d, v%d" % (EP + i, EP + i))
            a("v_exp_f32 v%d, v%d" % (EN + i, EN + i))
        a("s_nop 0")
        for r in range(4):
            a("v_add_f32 v%d, v%d, v%d" % (M4 + r, EP + r, EP + 4 + r))
            a("v_add_f32 v%d, v%d, v%d" % (N4 + r, EN + r, EN + 4 + r))
        dpp16(a, ["v_add_f32"] * 8, [M4 + r for r in range(4)] + [N4 + r for r in range(4)])
        for r in range(4):
            a("v_rcp_f32 v%d, v%d" % (M4 + r, M4 + r))
            a("v_rcp_f32 v%d, v%d" % (N4 + r, N4 + r))
        a("s_nop 0")
        for i in range(8):
            a("v_mul_f32 v%d, v%d, v%d" % (EP + i, EP + i, M4 + (i & 3)))
            a("v_mul_f32 v%d, v%d, v%d" % (EN + i, EN + i, N4 + (i & 3)))
        for ft in range(2):
            for p in range(2):
                a("v_cvt_pk_bf16_f32 v%d, v%d, v%d" % (AF + ft * 4 + hf * 2 + p, EP + ft * 4 + 2 * p, EP + ft * 4 + 2 * p + 1))
                a("v_cvt_pk_bf16_f32 v%d, v%d, v%d" % (AF + (2 + ft) * 4 + hf * 2 + p, EN + ft * 4 + 2 * p, EN + ft * 4 + 2 * p + 1))
        if hf == 1:
            a("s_nop 1")
            for fq in range(4):
                for dt in range(2):
                    c = KV + (fq * 2 + dt) * 4
                    a("v_mfma_f32_16x16x32_bf16 %s, %s, %s, %s" % (vr(c, 4), vr(AF + fq * 4, 4), vr(BF + dt * 4, 4), vr(c, 4)))
                c = ZA + fq * 4
                a("v_mfma_f32_16x16x32_bf16 %s, %s, %s, %s" % (vr(c, 4), vr(AF + fq * 4, 4), vr(ONE, 4), vr(c, 4)))
            a("s_nop 3")
    a("s_nop 7")
    a("s_barrier")
    a("v_lshlrev_b32 v6, 4, v1")
    a("s_cmp_eq_u32 s21, 0")
    a("s_cbranch_scc1 g1q_red")
    a("s_sub_u32 s28, s21, 1")
    a("s_lshl_b32 s28, s28, 1")
    a("s_add_u32 s28, s28, s22")
    a("s_mul_i32 s28, s28, 12288")
    a("v_add_u32 v6, s28, v6")
    for t in range(12):
        a("ds_write_b128 v6, %s offset:%d" % (vr(KV + t * 4, 4), t * 1024))
    a("s_waitcnt lgkmcnt(0)")
    a("s_barrier")
    a("s_branch g1_done")
    a.label("g1q_red")
    a("s_barrier")
    a("s_mul_i32 s28, s22, 12288")
    a("v_add_u32 v6, s28, v6")
    for w in range(3):
        for t in range(12):
            a("ds_read_b128 %s, v6 offset:%d" % (vr(128 + t * 4, 4), w * 24576 + t * 1024))
        a("s_waitcnt lgkmcnt(0)")
        for i in range(48):
            a("v_add_f32 v%d, v%d, v%d" % (KV + i, KV + i, 128 + i))
    a("s_lshl_b32 s28, s23, 5")
    a("s_add_u32 s28, s28, s49")
    a("s_lshl_b32 s28, s28, 14")
    a("v_lshlrev_b32 v6, 8, v3")
    a("v_lshl_add_u32 v6, v4, 4, v6")
    a("v_add_u32 v6, s28, v6")
    a("v_lshlrev_b32 v7, 4, v4")
    a("v_add_u32 v7, s28, v7")
    for fq in range(4):
        for dt in range(2):
            if dt == 0:
                a("buffer_store_dwordx4 %s, v6, s[44:47], 0 offen offset:%d" % (vr(KV + (fq * 2 + dt) * 4, 4), fq * 64))
            else:
                a("s_movk_i32 s29, 4096")
                a("buffer_store_dwordx4 %s, v6, s[44:47], s29 offen offset:%d" % (vr(KV + (fq * 2 + dt) * 4, 4), fq * 64))
        a("s_movk_i32 s29, 8192")
        a("buffer_store_dwordx4 %s, v7, s[44:47], s29 offen offset:%d" % (vr(ZA + fq * 4, 4), fq * 64))


def gen_apply(a):
    L = "apply_kernel"
    kernel_head(a, L)
    a("s_cmp_ge_u32 s2, 256")
    a("s_cbranch_scc1 ap_done")
    a("s_load_dwordx2 s[4:5], s[0:1], %d" % KA_WS)
    a("v_and_b32 v1, 63, v0")
    a("v_lshrrev_b32 v2, 6, v0")
    a("v_and_b32 v3, 15, v1")
    a("v_lshrrev_b32 v4, 4, v1")
    a("s_and_b32 s20, s2, 31")
    a("s_lshr_b32 s21, s2, 5")
    a("s_waitcnt lgkmcnt(0)")
    srd(a, 8, 4, WS_KV, SZ_KV)
    srd(a, 12, 4, WS_PQ, SZ_PQ)
    srd(a, 16, 4, WS_HC, SZ_HC)
    a("s_lshl_b32 s22, s20, 11")
    a("s_lshl_b32 s23, s21, 8")
    a("s_add_u32 s22, s22, s23")
    a("v_lshl_add_u32 v5, v2, 6, v3")
    a("v_add_u32 v5, s22, v5")
    a("v_lshlrev_b32 v5, 7, v5")
    a("v_lshl_add_u32 v5, v4, 4, v5")
    for st in range(4):
        for kk in range(2):
            if st < 2:
                a("buffer_load_dwordx4 %s, v5, s[12:15], 0 offen offset:%d" % (vr(64 + (st * 2 + kk) * 4, 4), st * 2048 + kk * 64))
            else:
                a("s_movk_i32 s24, 4096")
                a("buffer_load_dwordx4 %s, v5, s[12:15], s24 offen offset:%d" % (vr(64 + (st * 2 + kk) * 4, 4), (st - 2) * 2048 + kk * 64))
    a("s_lshl_b32 s22, s20, 14")
    a("v_lshlrev_b32 v6, 5, v0")
    a("v_add_u32 v6, s22, v6")
    for rb in range(8):
        a("s_mov_b32 s24, 0x%x" % (rb << 19))
        a("buffer_load_dwordx4 %s, v6, s[8:11], s24 offen" % vr(96 + rb * 8, 4))
        a("buffer_load_dwordx4 %s, v6, s[8:11], s24 offen offset:16" % vr(100 + rb * 8, 4))
    a("v_and_b32 v7, 7, v0")
    a("v_lshlrev_b32 v7, 5, v7")
    a("v_add_u32 v7, s22, v7")
    for rb in range(8):
        a("s_mov_b32 s24, 0x%x" % ((rb << 19) + 8192))
        a("buffer_load_dwordx4 %s, v7, s[8:11], s24 offen" % vr(160 + rb * 8, 4))
        a("buffer_load_dwordx4 %s, v7, s[8:11], s24 offen offset:16" % vr(164 + rb * 8, 4))
    a("s_waitcnt vmcnt(0)")
    for base in (96, 160):
        for rb in range(1, 8):
            for i in range(8):
                a("v_add_f32 v%d, v%d, v%d" % (base + i, base + i, base + rb * 8 + i))
    for i in range(4):
        a("v_cvt_pk_bf16_f32 v%d, v%d, v%d" % (8 + i, 96 + 2 * i, 97 + 2 * i))
        a("v_cvt_pk_bf16_f32 v%d, v%d, v%d" % (12 + i, 160 + 2 * i, 161 + 2 * i))
    a("v_lshlrev_b32 v6, 4, v0")
    a("ds_write_b128 v6, v[8:11]")
    a("v_and_b32 v7, 7, v0")
    a("v_lshlrev_b32 v7, 4, v7")
    a("ds_write_b128 v7, v[12:15] offset:4096")
    a("s_waitcnt lgkmcnt(0)")
    a("s_barrier")
    a("v_lshlrev_b32 v6, 7, v3")
    a("v_lshl_add_u32 v6, v4, 4, v6")
    a("v_lshlrev_b32 v7, 4, v4")
    for dt in range(2):
        for kk in range(2):
            a("ds_read_b128 %s, v6 offset:%d" % (vr(8 + (dt * 2 + kk) * 4, 4), dt * 2048 + kk * 64))
    for kk in range(2):
        a("ds_read_b128 %s, v7 offset:%d" % (vr(24 + kk * 4, 4), 4096 + kk * 64))
    a("s_lshl_b32 s23, s21, 8")
    a("v_lshl_add_u32 v5, v2, 6, v3")
    a("v_add_u32 v5, s23, v5")
    a("s_movk_i32 s24, 9216")
    a("v_mul_lo_u32 v5, v5, s24")
    a("s_lshl_b32 s23, s20, 6")
    a("s_add_u32 s23, s23, 7168")
    a("v_lshl_add_u32 v6, v4, 3, s23")
    a("v_add_u32 v5, v5, v6")
    a("s_waitcnt lgkmcnt(0)")
    for st in range(4):
        C = 96 + st * 12
        for t in range(3):
            a("v_mfma_f32_16x16x32_bf16 %s, %s, %s, 0" % (vr(C + t * 4, 4), vr(8 + t * 8, 4), vr(64 + st * 8, 4)))
        for t in range(3):
            a("v_mfma_f32_16x16x32_bf16 %s, %s, %s, %s" % (vr(C + t * 4, 4), vr(12 + t * 8, 4), vr(68 + st * 8, 4), vr(C + t * 4, 4)))
    a("s_nop 7")
    a("s_nop 7")
    for st in range(4):
        C = 96 + st * 12
        a("v_cvt_pk_bf16_f32 v32, v%d, v%d" % (C + 8, C + 8))
        a("v_lshlrev_b32 v32, 16, v32")
        a("v_add_f32 v32, 0x358637bd, v32")
        a("v_cvt_pk_bf16_f32 v32, v32, v32")
        a("v_lshlrev_b32 v32, 16, v32")
        a("v_rcp_f32 v32, v32")
        for i in range(4):
            bf16_round_pair(a, C + 2 * i, C + 2 * i + 1, 33)
        for i in range(8):
            a("v_mul_f32 v%d, v%d, v32" % (C + i, C + i))
        for i in range(4):
            a("v_cvt_pk_bf16_f32 v%d, v%d, v%d" % (40 + st * 4 + i, C + 2 * i, C + 2 * i + 1))
        a("buffer_store_dwordx2 %s, v5, s[16:19], 0 offen" % vr(40 + st * 4, 2))
        a("buffer_store_dwordx2 %s, v5, s[16:19], 0 offen offset:32" % vr(42 + st * 4, 2))
        if st < 3:
            a("v_add_u32 v5, %d, v5" % (16 * 9216))
    a.label("ap_done")
    a("s_endpgm")
    return L, 224


G2_ACC = 128
G2_FA = (32, 64)
G2_FB = (48, 80)
G2_VA = (16, 17)
G2_VB = (18, 19, 20, 21)


def gen_gemm2(a):
    L = "gemm2_kernel"
    kernel_head(a, L)
    a("s_cmp_ge_u32 s2, 256")
    a("s_cbranch_scc1 g2_done")
    a("s_load_dwordx2 s[4:5], s[0:1], %d" % KA_WS)
    a("s_load_dwordx2 s[6:7], s[0:1], %d" % KA_W2)
    a("s_load_dwordx2 s[30:31], s[0:1], %d" % KA_WO)
    g1_common_addr(a)
    a("s_and_b32 s21, s2, 7")
    a("s_lshr_b32 s22, s2, 3")
    a("s_and_b32 s23, s22, 1")
    a("s_bfe_u32 s24, s22, 0x20001")
    a("s_and_b32 s25, s21, 3")
    a("s_lshl_b32 s25, s25, 2")
    a("s_add_u32 s24, s24, s25")
    a("s_lshr_b32 s25, s22, 3")
    a("s_lshr_b32 s26, s21, 2")
    a("s_lshl_b32 s26, s26, 2")
    a("s_add_u32 s25, s25, s26")
    a("s_lshr_b32 s21, s20, 2")
    a("s_bfe_u32 s22, s20, 0x10001")
    a("s_and_b32 s26, s20, 1")
    a("s_lshl_b32 s27, s20, 12")
    a("s_lshl_b32 s28, s24, 7")
    a("s_lshl_b32 s29, s20, 4")
    a("s_add_u32 s28, s28, s29")
    a("v_add_u32 v5, s28, v4")
    a("s_movk_i32 s28, 9216")
    a("v_mul_lo_u32 v5, v5, s28")
    for j in range(4):
        a("v_add_u32 v7, %d, v4" % (4 * j))
        a("v_xor_b32 v7, v7, v3")
        a("v_lshl_add_u32 v7, v7, 4, v5")
        a("v_add_u32 v%d, %d, v7" % (8 + j, j * 4 * 9216))
    a("s_lshl_b32 s28, s20, 4")
    a("v_add_u32 v5, s28, v4")
    a("v_lshlrev_b32 v5, 11, v5")
    a("s_lshl_b32 s28, s25, 8")
    a("v_add_u32 v5, s28, v5")
    for j in range(4):
        a("v_or_b32 v7, %d, v4" % (((j >> 1) & 1) << 2))
        a("v_lshlrev_b32 v7, 1, v7")
        a("v_xor_b32 v7, v7, v3")
        a("v_lshl_add_u32 v7, v7, 4, v5")
        a("v_add_u32 v%d, %d, v7" % (12 + j, j * 4 * 2048))
    a("s_lshl_b32 s28, s21, 3")
    a("v_add_u32 v5, s28, v4")
    a("v_xor_b32 v5, v5, v3")
    a("s_lshl_b32 s28, s22, 6")
    a("v_add_u32 v6, s28, v3")
    a("v_lshlrev_b32 v6, 8, v6")
    a("v_lshl_add_u32 v%d, v5, 4, v6" % G2_VA[0])
    a("v_xor_b32 v%d, 64, v%d" % (G2_VA[1], G2_VA[0]))
    a("v_bfe_u32 v5, v1, 2, 2")
    a("v_and_b32 v6, 1, v4")
    a("v_lshl_or_b32 v6, v6, 2, v5")
    a("v_lshl_add_u32 v5, v4, 3, v5")
    a("s_lshl_b32 s28, s21, 6")
    a("v_add_u32 v5, s28, v5")
    a("v_lshlrev_b32 v5, 8, v5")
    a("v_and_b32 v7, 3, v1")
    a("v_lshl_add_u32 v5, v7, 3, v5")
    a("v_add_u32 v5, 0x10000, v5")
    for nt in range(4):
        a("s_lshl_b32 s28, s26, 2")
        a("s_add_u32 s28, s28, %d" % nt)
        a("v_xor_b32 v7, s28, v6")
        a("v_lshl_add_u32 v%d, v7, 5, v5" % G2_VB[nt])
    a("s_waitcnt lgkmcnt(0)")
    srd(a, 8, 4, WS_HC, SZ_HC)
    srd(a, 12, 6, 0, F * D * 2)
    a("s_and_b32 s31, s31, 0xffff")
    a("s_mul_i32 s16, s23, %d" % (2304 * 2))
    a("s_mul_i32 s17, s23, %d" % (2304 * 2048))
    a("s_mov_b32 s19, 1000")
    a("s_cmp_eq_u32 s23, 1")
    a("s_cselect_b32 s19, 10, s19")

    def pre_dma():
        return ["s_cmp_eq_u32 s19, 0",
                "s_cselect_b32 s12, s30, s12",
                "s_cselect_b32 s13, s31, s13",
                "s_cselect_b32 s14, 0x%x, s14" % (D * D * 2),
                "s_cselect_b32 s17, 0, s17",
                "s_sub_u32 s19, s19, 1"]

    def a_off(stage, mt):
        return stage * 32768 + mt * 4096

    def b_off(stage, ph, rd):
        return stage * 32768 + ph * 8192 + rd * 1024

    g = Gemm(a, 4, 4, G2_ACC, G2_FA, G2_FB, G2_VA, G2_VB, 8, 12, a_off, b_off,
             lambda nt: True, 27, 16, 17, 8, 12, 256, 128 * 2048)
    g.run(18, "g2", 18, pre_dma)
    a("s_nop 7")
    a("s_barrier")
    a("s_and_b32 s28, s20, 3")
    a("s_lshl_b32 s28, s28, 14")
    a("v_lshlrev_b32 v6, 4, v1")
    a("v_add_u32 v6, s28, v6")
    a("s_cmp_eq_u32 s21, 0")
    a("s_cbranch_scc1 g2_red")
    for t in range(16):
        a("ds_write_b128 v6, %s offset:%d" % (vr(G2_ACC + t * 4, 4), t * 1024))
    a("s_waitcnt lgkmcnt(0)")
    a("s_barrier")
    a("s_branch g2_done")
    a.label("g2_red")
    a("s_barrier")
    for t in range(16):
        a("ds_read_b128 %s, v6 offset:%d" % (vr(32 + t * 4, 4), t * 1024))
    srd(a, 40, 4, WS_P, SZ_P)
    a("s_lshl_b32 s28, s24, 7")
    a("s_lshl_b32 s29, s22, 6")
    a("s_add_u32 s28, s28, s29")
    a("v_add_u32 v5, s28, v3")
    a("v_lshlrev_b32 v5, 12, v5")
    a("s_lshl_b32 s28, s25, 9")
    a("s_lshl_b32 s29, s26, 8")
    a("s_add_u32 s28, s28, s29")
    a("s_lshl_b32 s29, s23, 23")
    a("s_add_u32 s28, s28, s29")
    a("v_lshl_add_u32 v6, v4, 4, s28")
    a("v_add_u32 v5, v5, v6")
    a("s_waitcnt lgkmcnt(0)")
    for i in range(64):
        a("v_add_f32 v%d, v%d, v%d" % (G2_ACC + i, G2_ACC + i, 32 + i))
    for mt in range(4):
        for nt in range(4):
            a("buffer_store_dwordx4 %s, v5, s[40:43], 0 offen offset:%d" % (vr(G2_ACC + (mt * 4 + nt) * 4, 4), nt * 64))
        if mt < 3:
            a("v_add_u32 v5, %d, v5" % (16 * 4096))
    a.label("g2_done")
    a("s_endpgm")
    return L, 192


def gen_combine(a):
    L = "combine_kernel"
    kernel_head(a, L)
    a("s_cmp_ge_u32 s2, 1024")
    a("s_cbranch_scc1 cb_done")
    a("s_load_dwordx2 s[4:5], s[0:1], %d" % KA_WS)
    a("s_load_dwordx2 s[6:7], s[0:1], %d" % KA_X)
    a("s_load_dwordx2 s[20:21], s[0:1], %d" % KA_B2)
    a("s_load_dwordx2 s[22:23], s[0:1], %d" % KA_OUT)
    a("s_lshl_b32 s3, s2, 8")
    a("v_add_u32 v1, s3, v0")
    a("v_lshlrev_b32 v2, 5, v1")
    a("v_lshlrev_b32 v3, 4, v1")
    a("v_and_b32 v4, 127, v1")
    a("v_lshlrev_b32 v4, 4, v4")
    a("s_waitcnt lgkmcnt(0)")
    srd(a, 8, 4, WS_P, SZ_P)
    srd(a, 12, 6, 0, S * D * 2)
    srd(a, 16, 20, 0, D * 2)
    srd(a, 24, 22, 0, S * D * 2)
    a("s_mov_b32 s28, 0x800000")
    a("buffer_load_dwordx4 v[8:11], v2, s[8:11], 0 offen")
    a("buffer_load_dwordx4 v[12:15], v2, s[8:11], 0 offen offset:16")
    a("buffer_load_dwordx4 v[16:19], v2, s[8:11], s28 offen")
    a("buffer_load_dwordx4 v[20:23], v2, s[8:11], s28 offen offset:16")
    a("buffer_load_dwordx4 v[24:27], v3, s[12:15], 0 offen")
    a("buffer_load_dwordx4 v[28:31], v4, s[16:19], 0 offen")
    a("s_waitcnt vmcnt(0)")
    for i in range(8):
        a("v_add_f32 v%d, v%d, v%d" % (8 + i, 8 + i, 16 + i))
    for i in range(4):
        a("v_lshlrev_b32 v32, 16, v%d" % (24 + i))
        a("v_and_b32 v33, 0xffff0000, v%d" % (24 + i))
        a("v_lshlrev_b32 v34, 16, v%d" % (28 + i))
        a("v_and_b32 v35, 0xffff0000, v%d" % (28 + i))
        a("v_add_f32 v32, v32, v34")
        a("v_add_f32 v33, v33, v35")
        a("v_add_f32 v%d, v%d, v32" % (8 + 2 * i, 8 + 2 * i))
        a("v_add_f32 v%d, v%d, v33" % (9 + 2 * i, 9 + 2 * i))
        a("v_cvt_pk_bf16_f32 v%d, v%d, v%d" % (36 + i, 8 + 2 * i, 9 + 2 * i))
    a("buffer_store_dwordx4 v[36:39], v3, s[24:27], 0 offen")
    a.label("cb_done")
    a("s_endpgm")
    return L, 40


def main():
    a = Asm()
    hdr = open("cdna_kernels/%s.s.ref" % NAME).read().split("\n")
    head = [l for l in hdr if l.startswith(";") and "@launch" not in l and "Override launch" not in l and "grid=ceil" not in l]
    launches = [
        "; @launch kernel=ln_kernel grid=(512,1,1) block=(256,1,1) lds=0",
        "; @launch kernel=gemm1_kernel grid=(256,1,1) block=(512,1,1) lds=131072",
        "; @launch kernel=apply_kernel grid=(256,1,1) block=(256,1,1) lds=8192",
        "; @launch kernel=gemm2_kernel grid=(256,1,1) block=(512,1,1) lds=131072",
        "; @launch kernel=combine_kernel grid=(1024,1,1) block=(256,1,1) lds=0",
    ]
    a.raw("\n".join(head + launches))
    a.raw('.amdgcn_target "amdgcn-amd-amdhsa--gfx950"')
    a.raw(".text")
    descs = []
    for g in (gen_ln, gen_gemm1, gen_apply, gen_gemm2, gen_combine):
        label, v = g(a)
        descs.append(kernel_desc(label, v))
    a.raw('.section .rodata,"a"')
    for d in descs:
        a.raw(".p2align 6")
        a.raw(d)
    open(OUT, "w").write(a.text())
    print("wrote", OUT, len(a.lines), "lines")


if __name__ == "__main__":
    main()
```

```python
import sys
import re
import os
FLAGS = set(os.environ.get("FLAGS", "").split(","))

NAME = "parallel_sum__linear_kernel_hedgehog__dense_activation_gelu__prompt"
OUT = os.environ.get("OUT", "cdna_kernels/%s.s" % NAME)

S, D, H, DH, F = 2048, 1024, 32, 32, 3584
KCAT = F + D
KA_X, KA_WQKV, KA_WPHI, KA_WO, KA_BX, KA_W1, KA_B1, KA_W2, KA_B2, KA_OUT, KA_DBG, KA_WS = [8 * i for i in range(12)]
WS_XN = 0x0000000
WS_HC = 0x0400000
WS_PQ = 0x1800000
WS_KV = 0x2000000
WS_P = 0x2400000
WS_FL = 0x3800000
SZ_FL = 65536
SZ_XN = S * D * 2
SZ_HC = S * KCAT * 2
SZ_PQ = H * S * 64 * 2
SZ_KV = 8 * 32 * 16384
SZ_P = S * D * 4

LOG2E = 0x3fb8aa3b


class Asm:
    def __init__(self):
        self.lines = []

    def __call__(self, s):
        m = re.search(r"offset:(\d+)", s)
        if m:
            lim = 4096 if s.startswith("buffer_") else 65536
            assert int(m.group(1)) < lim, s
        self.lines.append("    " + s)

    def label(self, s):
        self.lines.append(s + ":")

    def raw(self, s):
        self.lines.append(s)

    def text(self):
        return "\n".join(self.lines) + "\n"


def vr(b, n=1):
    return "v%d" % b if n == 1 else "v[%d:%d]" % (b, b + n - 1)


def sr(b, n=1):
    return "s%d" % b if n == 1 else "s[%d:%d]" % (b, b + n - 1)


def srd(a, d, base, off, size):
    if off:
        a("s_add_u32 s%d, s%d, 0x%x" % (d, base, off))
        a("s_addc_u32 s%d, s%d, 0" % (d + 1, base + 1))
    else:
        a("s_mov_b32 s%d, s%d" % (d, base))
        a("s_mov_b32 s%d, s%d" % (d + 1, base + 1))
    a("s_and_b32 s%d, s%d, 0xffff" % (d + 1, d + 1))
    a("s_mov_b32 s%d, 0x%x" % (d + 2, size))
    a("s_mov_b32 s%d, 0x00020000" % (d + 3))


def kernel_head(a, label):
    a.raw(".globl %s" % label)
    a.raw(".p2align 8")
    a.raw(".type %s,@function" % label)
    a.label(label)


def kernel_desc(label, vgpr, sgpr=102):
    acc = (vgpr + 3) // 4 * 4
    return """.amdhsa_kernel %s
  .amdhsa_next_free_vgpr %d
  .amdhsa_next_free_sgpr %d
  .amdhsa_accum_offset %d
  .amdhsa_group_segment_fixed_size 0
  .amdhsa_kernarg_size 96
  .amdhsa_user_sgpr_count 2
  .amdhsa_user_sgpr_kernarg_segment_ptr 1
  .amdhsa_system_sgpr_workgroup_id_x 1
.end_amdhsa_kernel
""" % (label, vgpr, sgpr, acc)


def stamp(a, i):
    if "STAMP" in FLAGS:
        a("s_memtime s[%d:%d]" % (60 + 2 * i, 61 + 2 * i))


def stamp_rt(a, i):
    if "STAMP" in FLAGS:
        a("s_memrealtime s[%d:%d]" % (60 + 2 * i, 61 + 2 * i))


def stamp_flush(a, n, kidx):
    if "STAMP" not in FLAGS:
        return
    a("s_waitcnt lgkmcnt(0)")
    srd(a, 88, 4, 0x8000000 + kidx * 0x100000, 0x100000)
    a("s_lshl_b32 s92, s2, 3")
    a("s_add_u32 s92, s92, s20")
    a("s_lshl_b32 s92, s92, 7")
    a("v_mov_b32 v2, s92")
    for i in range(n):
        a("v_mov_b32 v4, s%d" % (60 + 2 * i))
        a("v_mov_b32 v5, s%d" % (61 + 2 * i))
        a("buffer_store_dwordx2 v[4:5], v2, s[88:91], 0 offen offset:%d" % (8 * i))
        a("s_nop 1")


def allreduce64(a, op, v, t):
    for ctl in ("quad_perm:[1,0,3,2]", "quad_perm:[2,3,0,1]", "row_half_mirror", "row_mirror"):
        a("s_nop 1")
        a("%s_dpp %s, %s, %s %s row_mask:0xf bank_mask:0xf" % (op, vr(v), vr(v), vr(v), ctl))
    for sw in ("v_permlane16_swap_b32", "v_permlane32_swap_b32"):
        a("v_mov_b32 %s, %s" % (vr(t), vr(v)))
        a("s_nop 1")
        a("%s %s, %s" % (sw, vr(v), vr(t)))
        a("s_nop 1")
        a("%s %s, %s, %s" % (op, vr(v), vr(v), vr(t)))


def gen_ln(a):
    L = "ln_kernel"
    kernel_head(a, L)
    a("s_cmp_ge_u32 s2, 512")
    a("s_cbranch_scc1 ln_done")
    a("s_load_dwordx2 s[4:5], s[0:1], %d" % KA_X)
    a("s_load_dwordx2 s[6:7], s[0:1], %d" % KA_WS)
    a("v_lshrrev_b32 v1, 6, v0")
    a("v_and_b32 v2, 63, v0")
    a("s_lshl_b32 s3, s2, 2")
    a("v_add_u32 v1, s3, v1")
    a("v_lshlrev_b32 v1, 11, v1")
    a("v_lshl_add_u32 v1, v2, 4, v1")
    a("s_waitcnt lgkmcnt(0)")
    srd(a, 8, 4, 0, SZ_XN)
    srd(a, 12, 6, WS_XN, SZ_XN)
    a("buffer_load_dwordx4 v[4:7], v1, s[8:11], 0 offen")
    a("buffer_load_dwordx4 v[8:11], v1, s[8:11], 0 offen offset:1024")
    a("s_cmp_ge_u32 s2, 16")
    a("s_cbranch_scc1 ln_nz")
    srd(a, 16, 6, WS_FL, SZ_FL)
    a("s_lshl_b32 s3, s2, 12")
    a("v_lshl_add_u32 v12, v0, 4, s3")
    for i in range(4):
        a("v_mov_b32 v%d, 0" % (16 + i))
    a("buffer_store_dwordx4 v[16:19], v12, s[16:19], 0 offen")
    a.label("ln_nz")
    a("s_waitcnt vmcnt(0)")
    for i in range(8):
        a("v_lshlrev_b32 v%d, 16, v%d" % (16 + 2 * i, 4 + i))
        a("v_and_b32 v%d, 0xffff0000, v%d" % (17 + 2 * i, 4 + i))
    a("v_add_f32 v32, v16, v17")
    for i in range(2, 16):
        a("v_add_f32 v32, v32, v%d" % (16 + i))
    allreduce64(a, "v_add_f32", 32, 33)
    a("v_mul_f32 v32, 0x3a800000, v32")
    a("v_sub_f32 v34, v16, v32")
    a("v_mul_f32 v35, v34, v34")
    for i in range(1, 16):
        a("v_sub_f32 v34, v%d, v32" % (16 + i))
        a("v_fmac_f32 v35, v34, v34")
    allreduce64(a, "v_add_f32", 35, 33)
    a("v_mul_f32 v35, 0x3a800000, v35")
    a("v_cvt_pk_bf16_f32 v36, v32, v35")
    a("v_lshlrev_b32 v32, 16, v36")
    a("v_and_b32 v35, 0xffff0000, v36")
    a("v_add_f32 v35, 0x3727c5ac, v35")
    a("v_cvt_pk_bf16_f32 v36, v35, v35")
    a("v_lshlrev_b32 v35, 16, v36")
    a("v_sqrt_f32 v35, v35")
    a("s_nop 0")
    a("v_cvt_pk_bf16_f32 v36, v35, v35")
    a("v_lshlrev_b32 v35, 16, v36")
    a("v_rcp_f32 v35, v35")
    a("s_nop 0")
    for i in range(8):
        a("v_sub_f32 v%d, v%d, v32" % (16 + 2 * i, 16 + 2 * i))
        a("v_sub_f32 v%d, v%d, v32" % (17 + 2 * i, 17 + 2 * i))
        a("v_cvt_pk_bf16_f32 v36, v%d, v%d" % (16 + 2 * i, 17 + 2 * i))
        a("v_lshlrev_b32 v37, 16, v36")
        a("v_and_b32 v38, 0xffff0000, v36")
        a("v_mul_f32 v37, v37, v35")
        a("v_mul_f32 v38, v38, v35")
        a("v_cvt_pk_bf16_f32 v%d, v37, v38" % (4 + i))
    a("buffer_store_dwordx4 v[4:7], v1, s[12:15], 0 offen")
    a("buffer_store_dwordx4 v[8:11], v1, s[12:15], 0 offen offset:1024")
    a.label("ln_done")
    a("s_endpgm")
    return L, 40


def interleave(a, mfmas, fillers):
    n = len(mfmas)
    nf = len(fillers)
    fi = 0
    for i, m in enumerate(mfmas):
        a(m)
        want = ((i + 1) * nf + n - 1) // n if nf <= n else ((i + 1) * nf) // n
        want = min(nf, max(want, min(nf, i + 1)))
        while fi < want:
            for x in fillers[fi]:
                a(x)
            fi += 1
    while fi < nf:
        for x in fillers[fi]:
            a(x)
        fi += 1


def place(a, mfmas, slots):
    for i, m in enumerate(mfmas):
        a(m)
        for grp in slots.get(i, []):
            for x in grp:
                a(x)


class Gemm:
    def __init__(self, a, MT, NT, acc, fragA, fragB, vA, vB, voffA, voffB,
                 a_off, b_off, orient, sM0, sOffA, sOffB, srdA, srdB, stepA, stepB):
        self.__dict__.update(locals())

    def mfmas(self, st):
        out = []
        for mt in range(self.MT):
            for nt in range(self.NT):
                c = self.acc + (mt * self.NT + nt) * 4
                fa = self.fragA[st] + mt * 4
                fb = self.fragB[st] + nt * 4
                if self.orient(nt):
                    x, y = fb, fa
                else:
                    x, y = fa, fb
                out.append("v_mfma_f32_16x16x32_bf16 %s, %s, %s, %s" % (vr(c, 4), vr(x, 4), vr(y, 4), vr(c, 4)))
        return out

    def reads(self, st, stage, ph):
        out = []
        for mt in range(self.MT):
            out.append(["ds_read_b128 %s, %s offset:%d" % (vr(self.fragA[st] + mt * 4, 4), vr(self.vA[ph]), self.a_off(stage, mt))])
        for nt in range(self.NT):
            for rd in range(2):
                out.append(["ds_read_b64_tr_b16 %s, %s offset:%d" % (vr(self.fragB[st] + nt * 4 + rd * 2, 2), vr(self.vB[nt]), self.b_off(stage, ph, rd))])
        return out

    def dmas(self, stage):
        out = []
        for j in range(4):
            out.append(["s_add_u32 m0, s%d, %d" % (self.sM0, stage * 32768 + j * 1024),
                        "s_nop 0",
                        "buffer_load_dwordx4 %s, %s, s%d offen lds" % (vr(self.voffA + j), sr(self.srdA, 4), self.sOffA)])
        for j in range(4):
            out.append(["s_add_u32 m0, s%d, %d" % (self.sM0, 65536 + stage * 32768 + j * 1024),
                        "s_nop 0",
                        "buffer_load_dwordx4 %s, %s, s%d offen lds" % (vr(self.voffB + j), sr(self.srdB, 4), self.sOffB)])
        return out

    def advance(self):
        return [["s_add_u32 s%d, s%d, %d" % (self.sOffA, self.sOffA, self.stepA),
                 "s_add_u32 s%d, s%d, %d" % (self.sOffB, self.sOffB, self.stepB)]]

    def prologue(self, pre_dma=None):
        a = self.a
        for stage in range(2):
            if pre_dma:
                for x in pre_dma():
                    a(x)
            for f in self.dmas(stage) + self.advance():
                for x in f:
                    a(x)
        for i in range(self.MT * self.NT * 4):
            a("v_mov_b32 v%d, 0" % (self.acc + i))
        stamp(a, 1)
        a("s_waitcnt vmcnt(8)")
        a("s_barrier")
        stamp(a, 2)
        for f in self.reads(0, 0, 0):
            for x in f:
                a(x)
        a("s_waitcnt lgkmcnt(0)")

    def iteration(self, stage, dma, nxt, pre_dma=None):
        a = self.a
        interleave(a, self.mfmas(0), self.reads(1, stage, 1) if "NOREAD" not in FLAGS else [])
        if nxt:
            a("s_waitcnt vmcnt(0) lgkmcnt(0)")
            if "NOBAR" not in FLAGS:
                a("s_barrier")
        else:
            a("s_waitcnt lgkmcnt(0)")
        mf = self.mfmas(1)
        n = len(mf)
        slots = {}
        dpos = [(j * (n - 4)) // 8 for j in range(8)]
        if dma and "NODMA" not in FLAGS:
            d = self.dmas(stage)
            for j in range(8):
                slots.setdefault(dpos[j], []).append(d[j])
            slots.setdefault(dpos[7], []).append(self.advance()[0])
        if nxt and "NOREAD" not in FLAGS:
            r = self.reads(0, stage ^ 1, 0)
            pos = [p for p in range(n) if p not in dpos]
            while len(pos) < len(r):
                pos = sorted(pos + pos[:len(r) - len(pos)])
            for p, x in zip(pos, r):
                slots.setdefault(p, []).append(x)
        place(a, mf, slots)
        if nxt:
            a("s_waitcnt lgkmcnt(0)")

    def run(self, nstages, tag, sCnt, pre_dma=None):
        a = self.a
        self.prologue(pre_dma)
        npairs = (nstages - 2) // 2
        a("s_mov_b32 s%d, %d" % (sCnt, npairs))
        a.label(tag + "_loop")
        self.iteration(0, True, True, pre_dma)
        self.iteration(1, True, True, pre_dma)
        a("s_sub_u32 s%d, s%d, 1" % (sCnt, sCnt))
        a("s_cmp_lg_u32 s%d, 0" % sCnt)
        a("s_cbranch_scc1 %s_loop" % tag)
        self.iteration(0, False, True)
        self.iteration(1, False, False)
        stamp(a, 3)


G1_ACC = 128
G1_FA = (32, 76)
G1_FB = (48, 92)
G1_VOA, G1_VOB = 8, 12
G1_VA = (16, 17)
G1_VB = (18, 19, 20, 21, 22, 23, 24)
G1_X = 240


def g1_common_addr(a):
    a("v_and_b32 v1, 63, v0")
    a("v_lshrrev_b32 v2, 6, v0")
    a("s_nop 0")
    a("v_readfirstlane_b32 s20, v2")
    a("v_and_b32 v3, 15, v1")
    a("v_lshrrev_b32 v4, 4, v1")


def gen_gemm1(a):
    L = "gemm1_kernel"
    kernel_head(a, L)
    a("s_cmp_ge_u32 s2, 256")
    a("s_cbranch_scc1 g1_done")
    stamp(a, 0)
    stamp_rt(a, 6)
    a("s_load_dwordx2 s[4:5], s[0:1], %d" % KA_WS)
    a("s_load_dwordx2 s[6:7], s[0:1], %d" % KA_WQKV)
    a("s_load_dwordx2 s[30:31], s[0:1], %d" % KA_W1)
    a("s_load_dwordx2 s[32:33], s[0:1], %d" % KA_WPHI)
    a("s_load_dwordx2 s[34:35], s[0:1], %d" % KA_B1)
    g1_common_addr(a)
    a("s_and_b32 s21, s2, 7")
    a("s_lshr_b32 s22, s2, 3")
    a("s_and_b32 s23, s21, 1")
    a("s_lshl_b32 s23, s23, 2")
    a("s_and_b32 s24, s22, 3")
    a("s_add_u32 s23, s23, s24")
    a("s_lshr_b32 s24, s22, 2")
    a("s_lshr_b32 s25, s21, 1")
    a("s_lshl_b32 s25, s25, 2")
    a("s_and_b32 s26, s24, 3")
    a("s_add_u32 s25, s25, s26")
    a("s_lshr_b32 s21, s20, 1")
    a("s_and_b32 s22, s20, 1")
    a("s_lshl_b32 s27, s20, 12")
    a("v_lshrrev_b32 v5, 3, v1")
    a("s_lshl_b32 s28, s23, 8")
    a("s_lshl_b32 s29, s20, 5")
    a("s_add_u32 s28, s28, s29")
    a("v_add_u32 v5, s28, v5")
    a("v_lshlrev_b32 v5, 11, v5")
    a("v_and_b32 v6, 7, v1")
    for j in range(4):
        a("v_add_u32 v7, %d, v4" % (4 * j))
        a("v_and_b32 v7, 7, v7")
        a("v_xor_b32 v7, v7, v6")
        a("v_lshl_add_u32 v7, v7, 4, v5")
        a("v_add_u32 v%d, %d, v7" % (G1_VOA + j, j * 8 * 2048))
    a("v_lshrrev_b32 v5, 1, v3")
    a("v_xor_b32 v5, v5, v4")
    a("s_lshl_b32 s28, s21, 6")
    a("v_add_u32 v6, s28, v3")
    a("v_lshlrev_b32 v6, 7, v6")
    a("v_lshl_add_u32 v%d, v5, 4, v6" % G1_VA[0])
    a("v_xor_b32 v%d, 64, v%d" % (G1_VA[1], G1_VA[0]))
    a("v_bfe_u32 v5, v1, 2, 2")
    a("v_and_b32 v6, 1, v4")
    a("v_lshl_or_b32 v6, v6, 2, v5")
    a("v_lshl_add_u32 v5, v4, 3, v5")
    a("v_lshlrev_b32 v5, 9, v5")
    a("v_and_b32 v7, 3, v1")
    a("v_lshl_add_u32 v5, v7, 3, v5")
    a("v_add_u32 v5, 0x10000, v5")
    a("s_waitcnt lgkmcnt(0)")
    srd(a, 8, 4, WS_XN, SZ_XN)
    a("s_mov_b32 s16, 0")
    a("s_mov_b32 s17, 0")
    a("s_cmp_ge_u32 s24, 4")
    a("s_cbranch_scc1 g1_w1")

    def b_dma_rows(a, j):
        a("v_lshrrev_b32 v25, 5, v1")
        a("v_add_u32 v25, %d, v25" % (2 * j))
        a("v_and_b32 v26, 3, v25")
        a("v_and_b32 v27, 1, s20")
        a("v_lshl_or_b32 v26, v27, 2, v26")
        a("v_lshlrev_b32 v26, 1, v26")
        a("v_and_b32 v27, 31, v1")
        a("v_xor_b32 v26, v26, v27")
        a("s_lshl_b32 s28, s20, 3")
        a("v_add_u32 v25, s28, v25")

    def a_off(stage, mt):
        return stage * 32768 + mt * 2048

    def b_off(stage, ph, rd):
        return stage * 32768 + ph * 16384 + rd * 2048

    NT = 6
    for tt in range(NT):
        a("s_mul_i32 s28, s22, %d" % NT)
        a("s_add_u32 s28, s28, %d" % tt)
        a("v_xor_b32 v7, s28, v6")
        a("v_lshl_add_u32 v%d, v7, 5, v5" % G1_VB[tt])
    srd(a, 12, 6, 0, D * 3 * D * 2)
    for j in range(4):
        b_dma_rows(a, j)
        a("v_lshrrev_b32 v27, 2, v26")
        a("v_cmp_le_u32 vcc, 3, v27")
        a("s_nop 1")
        a("v_cndmask_b32 v28, 0, 1, vcc")
        a("v_mul_u32_u24 v29, 3, v28")
        a("v_sub_u32 v29, v27, v29")
        a("s_lshl_b32 s28, s25, 1")
        a("v_add_u32 v28, s28, v28")
        a("v_lshlrev_b32 v28, 6, v28")
        a("v_lshl_add_u32 v28, v29, 11, v28")
        a("v_and_b32 v29, 3, v26")
        a("v_lshl_add_u32 v28, v29, 4, v28")
        a("s_movk_i32 s28, 6144")
        a("v_mul_lo_u32 v29, v25, s28")
        a("v_add_u32 v28, v28, v29")
        a("v_cmp_gt_u32 vcc, 6, v27")
        a("v_mov_b32 v29, 0x7f000000")
        a("s_nop 0")
        a("v_cndmask_b32 v%d, v29, v28, vcc" % (G1_VOB + j))
    srd(a, 36, 32, 0, H * DH * DH * 2)
    a("s_lshl_b32 s28, s25, 1")
    a("s_add_u32 s28, s28, s22")
    a("s_lshl_b32 s28, s28, 11")
    a("v_lshlrev_b32 v25, 8, v4")
    a("v_lshl_add_u32 v25, v3, 1, v25")
    a("v_add_u32 v25, s28, v25")
    for ft in range(2):
        for j in range(8):
            d = (j & 3) + (16 if j >= 4 else 0)
            a("buffer_load_ushort v%d, v25, s[36:39], 0 offen offset:%d" % (224 + ft * 8 + j, d * 64 + ft * 32))
    g = Gemm(a, 4, NT, G1_ACC, G1_FA, G1_FB, G1_VA, G1_VB, G1_VOA, G1_VOB, a_off, b_off,
             lambda nt: nt < 4, 27, 16, 17, 8, 12, 128, 64 * 6144)
    g.run(16, "g1q", 18)
    if "NOEPI" not in FLAGS:
        g1_qkv_epilogue(a)
    a("s_branch g1_fin")

    a.label("g1_w1")
    NT = 7
    for tt in range(NT):
        a("s_mul_i32 s28, s22, %d" % NT)
        a("s_add_u32 s28, s28, %d" % tt)
        a("v_xor_b32 v7, s28, v6")
        a("v_lshl_add_u32 v%d, v7, 5, v5" % G1_VB[tt])
    srd(a, 12, 30, 0, D * F * 2)
    for j in range(4):
        b_dma_rows(a, j)
        a("s_mul_i32 s28, s25, 448")
        a("v_lshlrev_b32 v28, 4, v26")
        a("v_add_u32 v28, s28, v28")
        a("s_movk_i32 s28, 7168")
        a("v_mul_lo_u32 v29, v25, s28")
        a("v_add_u32 v28, v28, v29")
        a("v_cmp_gt_u32 vcc, 28, v26")
        a("v_mov_b32 v29, 0x7f000000")
        a("s_nop 0")
        a("v_cndmask_b32 v%d, v29, v28, vcc" % (G1_VOB + j))
    srd(a, 36, 34, 0, F * 2)
    a("s_mul_i32 s28, s25, 448")
    a("s_mul_i32 s29, s22, 224")
    a("s_add_u32 s28, s28, s29")
    a("v_lshlrev_b32 v25, 3, v4")
    a("v_add_u32 v25, s28, v25")
    for tt in range(NT):
        a("buffer_load_dwordx2 %s, v25, s[36:39], 0 offen offset:%d" % (vr(G1_X + 2 * tt, 2), tt * 32))
    g = Gemm(a, 4, NT, G1_ACC, G1_FA, G1_FB, G1_VA, G1_VB, G1_VOA, G1_VOB, a_off, b_off,
             lambda nt: True, 27, 16, 17, 8, 12, 128, 64 * 7168)
    g.run(16, "g1w", 18)
    if "NOEPI" not in FLAGS:
        g1_w1_epilogue(a)
    a.label("g1_fin")
    a("s_waitcnt vmcnt(0)")
    stamp(a, 4)
    stamp_rt(a, 5)
    stamp_flush(a, 7, 0)
    a.label("g1_done")
    a("s_endpgm")
    return L, 256


def f32bits(x):
    import struct
    return struct.unpack("<I", struct.pack("<f", x))[0]


def g1_w1_epilogue(a):
    NT = 7
    RS = 240
    srd(a, 40, 4, WS_HC, SZ_HC)
    for tt in range(NT):
        for p in range(2):
            a("v_lshlrev_b32 v%d, 16, v%d" % (32 + tt * 4 + 2 * p, G1_X + 2 * tt + p))
            a("v_and_b32 v%d, 0xffff0000, v%d" % (33 + tt * 4 + 2 * p, G1_X + 2 * tt + p))
    a("s_mul_i32 s28, s20, %d" % (64 * RS))
    a("s_movk_i32 s29, %d" % RS)
    a("v_mul_lo_u32 v6, v3, s29")
    a("v_lshl_add_u32 v6, v4, 3, v6")
    a("v_add_u32 v6, s28, v6")
    a("v_subrev_u32 v7, 56, v1")
    a("v_cmp_gt_u32 vcc, 56, v1")
    a("s_nop 1")
    a("v_cndmask_b32 v7, v7, v1, vcc")
    a("v_mul_u32_u24 v8, 0x4a, v7")
    a("v_lshrrev_b32 v8, 10, v8")
    a("v_mul_u32_u24 v9, 14, v8")
    a("v_sub_u32 v9, v7, v9")
    a("v_mul_lo_u32 v7, v8, s29")
    a("v_lshl_add_u32 v7, v9, 4, v7")
    a("v_add_u32 v7, s28, v7")
    a("s_lshl_b32 s28, s23, 8")
    a("s_lshl_b32 s29, s21, 6")
    a("s_add_u32 s28, s28, s29")
    a("v_add_u32 v5, s28, v8")
    a("s_movk_i32 s28, 9216")
    a("v_mul_lo_u32 v5, v5, s28")
    a("s_mul_i32 s28, s25, 448")
    a("s_mul_i32 s29, s22, 224")
    a("s_add_u32 s28, s28, s29")
    a("v_lshl_add_u32 v9, v9, 4, s28")
    a("v_add_u32 v5, v5, v9")
    k0 = -2.0 * 0.7978845608028654 * 1.4426950408889634
    k1 = k0 * 0.044715
    a("s_mov_b32 s44, 0x%08x" % f32bits(k1))
    a("s_mov_b32 s45, 0x%08x" % f32bits(k1))
    a("s_mov_b32 s46, 1.0")
    a("s_mov_b32 s47, 1.0")
    a("v_mov_b32 v8, 0x%08x" % f32bits(k0))
    a("v_mov_b32 v9, 0x%08x" % f32bits(k0))
    a("s_barrier")

    def flush(mt):
        for j in range(4):
            a("ds_read_b128 %s, v7 offset:%d" % (vr(96 + j * 4, 4), (mt * 16 + j * 4) * RS))
        for j in range(4):
            a("s_waitcnt lgkmcnt(%d)" % (3 - j))
            a("s_mov_b32 s28, 0x%x" % ((mt * 16 + j * 4) * 9216))
            a("buffer_store_dwordx4 %s, v5, s[40:43], s28 offen" % vr(96 + j * 4, 4))

    for mt in range(4):
        for tt in range(NT):
            c = G1_ACC + (mt * NT + tt) * 4
            T = 64 + ((mt * NT + tt) & 1) * 16
            for p in range(2):
                a("v_pk_add_f32 %s, %s, %s" % (vr(T + 2 * p, 2), vr(c + 2 * p, 2), vr(32 + tt * 4 + 2 * p, 2)))
            for p in range(2):
                a("v_pk_mul_f32 %s, %s, %s" % (vr(T + 4 + 2 * p, 2), vr(T + 2 * p, 2), vr(T + 2 * p, 2)))
            for p in range(2):
                a("v_pk_fma_f32 %s, %s, s[44:45], v[8:9]" % (vr(T + 4 + 2 * p, 2), vr(T + 4 + 2 * p, 2)))
            for p in range(2):
                a("v_pk_mul_f32 %s, %s, %s" % (vr(T + 4 + 2 * p, 2), vr(T + 4 + 2 * p, 2), vr(T + 2 * p, 2)))
            for r in range(4):
                a("v_exp_f32 v%d, v%d" % (T + 4 + r, T + 4 + r))
            a("s_nop 0")
            for p in range(2):
                a("v_pk_add_f32 %s, %s, s[46:47]" % (vr(T + 4 + 2 * p, 2), vr(T + 4 + 2 * p, 2)))
            for r in range(4):
                a("v_rcp_f32 v%d, v%d" % (T + 4 + r, T + 4 + r))
            a("s_nop 0")
            for p in range(2):
                a("v_pk_mul_f32 %s, %s, %s" % (vr(T + 4 + 2 * p, 2), vr(T + 4 + 2 * p, 2), vr(T + 2 * p, 2)))
            a("v_cvt_pk_bf16_f32 v%d, v%d, v%d" % (T + 8, T + 4, T + 5))
            a("v_cvt_pk_bf16_f32 v%d, v%d, v%d" % (T + 9, T + 6, T + 7))
            a("ds_write_b64 v6, %s offset:%d" % (vr(T + 8, 2), mt * 16 * RS + tt * 32))
            if tt == 2 and mt > 0:
                flush(mt - 1)
        a("s_waitcnt lgkmcnt(0)")
    flush(3)


def bf16_round_pair(a, x0, x1, t):
    a("v_cvt_pk_bf16_f32 v%d, v%d, v%d" % (t, x0, x1))
    a("v_lshlrev_b32 v%d, 16, v%d" % (x0, t))
    a("v_and_b32 v%d, 0xffff0000, v%d" % (x1, t))


def xlane_g(a, op, regs, temps):
    for sw in ("v_permlane16_swap_b32", "v_permlane32_swap_b32"):
        for v, t in zip(regs, temps):
            a("v_mov_b32 v%d, v%d" % (t, v))
        a("s_nop 1")
        for v, t in zip(regs, temps):
            a("%s v%d, v%d" % (sw, v, t))
        a("s_nop 1")
        for (v, t), o in zip(zip(regs, temps), op):
            a("%s v%d, v%d, v%d" % (o, v, v, t))


def dpp16(a, ops, regs):
    for ctl in ("quad_perm:[1,0,3,2]", "quad_perm:[2,3,0,1]", "row_half_mirror", "row_mirror"):
        if len(regs) < 3:
            a("s_nop 1")
        for v, o in zip(regs, ops):
            a("%s_dpp v%d, v%d, v%d %s row_mask:0xf bank_mask:0xf" % (o, v, v, v, ctl))


def g1_softmax_batch(a, acc, WP, tt0):
    E = lambda mt: 32 + mt * 16
    FR = lambda mt: 96 + mt * 4
    MX = lambda mt: 112 + 2 * mt
    MN = lambda mt: 120 + 2 * mt
    P = lambda mt: acc(mt, tt0)
    R = range(4)
    for mt in R:
        for i in range(4):
            a("v_cvt_pk_bf16_f32 v%d, v%d, v%d" % (FR(mt) + i, P(mt) + 2 * i, P(mt) + 2 * i + 1))
    a("s_nop 1")
    for mt in R:
        for ft in range(2):
            a("v_mfma_f32_16x16x32_bf16 %s, %s, %s, 0" % (vr(P(mt) + ft * 4, 4), vr(WP[ft], 4), vr(FR(mt), 4)))
    a("s_nop 7")
    for mt in R:
        for i in range(4):
            a("v_cvt_pk_bf16_f32 v%d, v%d, v%d" % (E(mt) + i, P(mt) + 2 * i, P(mt) + 2 * i + 1))
    for mt in R:
        for i in range(4):
            a("v_lshlrev_b32 v%d, 16, v%d" % (P(mt) + 2 * i, E(mt) + i))
            a("v_and_b32 v%d, 0xffff0000, v%d" % (P(mt) + 2 * i + 1, E(mt) + i))
    for op3, op2, M in (("v_max3_f32", "v_max_f32", MX), ("v_min3_f32", "v_min_f32", MN)):
        for mt in R:
            a("%s v%d, v%d, v%d, v%d" % (op3, M(mt), P(mt), P(mt) + 1, P(mt) + 2))
        for mt in R:
            a("%s v%d, v%d, v%d, v%d" % (op3, M(mt), M(mt), P(mt) + 3, P(mt) + 4))
        for mt in R:
            a("%s v%d, v%d, v%d, v%d" % (op3, M(mt), M(mt), P(mt) + 5, P(mt) + 6))
        for mt in R:
            a("%s v%d, v%d, v%d" % (op2, M(mt), M(mt), P(mt) + 7))

    def xl(opx, opn):
        regs = [(MX(mt), opx) for mt in R] + [(MN(mt), opn) for mt in R]
        for sw in ("v_permlane16_swap_b32", "v_permlane32_swap_b32"):
            for v, o in regs:
                a("v_mov_b32 v%d, v%d" % (v + 1, v))
            a("s_nop 0")
            for v, o in regs:
                a("%s v%d, v%d" % (sw, v, v + 1))
            a("s_nop 0")
            for v, o in regs:
                a("%s v%d, v%d, v%d" % (o, v, v, v + 1))
    xl("v_max_f32", "v_min_f32")
    for mt in R:
        a("v_mul_f32 v%d, s48, v%d" % (MX(mt), MX(mt)))
        a("v_mul_f32 v%d, s48, v%d" % (MN(mt), MN(mt)))
    for mt in R:
        for i in range(4):
            a("v_pk_fma_f32 %s, %s, s[48:49], %s op_sel_hi:[1,1,0] neg_lo:[0,0,1] neg_hi:[0,0,1]" % (
                vr(E(mt) + 2 * i, 2), vr(P(mt) + 2 * i, 2), vr(MX(mt), 2)))
            a("v_pk_fma_f32 %s, %s, s[48:49], %s op_sel_hi:[1,1,0] neg_lo:[1,0,0] neg_hi:[1,0,0]" % (
                vr(E(mt) + 8 + 2 * i, 2), vr(P(mt) + 2 * i, 2), vr(MN(mt), 2)))
    for mt in R:
        for i in range(16):
            a("v_exp_f32 v%d, v%d" % (E(mt) + i, E(mt) + i))
    a("s_nop 0")
    for M, o in ((MX, 0), (MN, 8)):
        for mt in R:
            a("v_pk_add_f32 %s, %s, %s" % (vr(M(mt), 2), vr(E(mt) + o, 2), vr(E(mt) + o + 2, 2)))
        for mt in R:
            a("v_pk_add_f32 %s, %s, %s" % (vr(M(mt), 2), vr(M(mt), 2), vr(E(mt) + o + 4, 2)))
        for mt in R:
            a("v_pk_add_f32 %s, %s, %s" % (vr(M(mt), 2), vr(M(mt), 2), vr(E(mt) + o + 6, 2)))
        for mt in R:
            a("v_add_f32 v%d, v%d, v%d" % (M(mt), M(mt), M(mt) + 1))
    xl("v_add_f32", "v_add_f32")
    for mt in R:
        a("v_rcp_f32 v%d, v%d" % (MX(mt), MX(mt)))
        a("v_rcp_f32 v%d, v%d" % (MN(mt), MN(mt)))
    a("s_nop 0")
    for mt in R:
        for i in range(4):
            a("v_pk_mul_f32 %s, %s, %s op_sel_hi:[1,0]" % (vr(E(mt) + 2 * i, 2), vr(E(mt) + 2 * i, 2), vr(MX(mt), 2)))
            a("v_pk_mul_f32 %s, %s, %s op_sel_hi:[1,0]" % (vr(E(mt) + 8 + 2 * i, 2), vr(E(mt) + 8 + 2 * i, 2), vr(MN(mt), 2)))
    for mt in R:
        for i in range(8):
            a("v_cvt_pk_bf16_f32 v%d, v%d, v%d" % (P(mt) + i, E(mt) + 2 * i, E(mt) + 2 * i + 1))


def g1_qkv_epilogue(a):
    NT = 6
    WP = (G1_X, G1_X + 4)
    KS = 160
    SH = 98304

    def acc(mt, tt):
        return G1_ACC + (mt * NT + tt) * 4

    srd(a, 40, 4, WS_HC, SZ_HC)
    srd(a, 44, 4, WS_KV, SZ_KV)
    srd(a, 52, 4, WS_FL, SZ_FL)
    a("s_mov_b32 s48, 0x%08x" % LOG2E)
    a("s_mov_b32 s49, 0x%08x" % LOG2E)
    a("s_mul_i32 s50, s20, 12288")
    for i in range(8):
        a("v_lshl_or_b32 v%d, v%d, 16, v%d" % (G1_X + i, 224 + 2 * i + 1, 224 + 2 * i))
    a("s_movk_i32 s28, %d" % KS)
    a("v_mul_lo_u32 v5, v3, s28")
    a("v_lshl_add_u32 v5, v4, 3, v5")
    a("v_add_u32 v5, s50, v5")
    a("v_bfe_u32 v6, v1, 2, 2")
    a("v_lshl_add_u32 v6, v4, 2, v6")
    a("v_mul_lo_u32 v6, v6, s28")
    a("v_and_b32 v7, 3, v1")
    a("v_lshl_add_u32 v6, v7, 3, v6")
    a("v_add_u32 v6, s50, v6")
    a("v_lshlrev_b32 v7, 4, v1")
    a("s_barrier")
    g1_softmax_batch(a, acc, WP, 2)
    for mt in range(4):
        for q in range(4):
            a("ds_write_b64 v5, %s offset:%d" % (vr(acc(mt, 2) + 2 * q, 2), mt * 16 * KS + q * 32))
    KV, AF, BF, ONE = 64, 32, 112, 16
    for u in range(2):
        for dt in range(2):
            for hf in range(2):
                for p in range(2):
                    c = acc(2 * u + hf, 4 + dt) + 2 * p
                    a("v_cvt_pk_bf16_f32 v%d, v%d, v%d" % (BF + (u * 2 + dt) * 4 + hf * 2 + p, c, c + 1))
    for i in range(4):
        a("v_mov_b32 v%d, 0x3f803f80" % (ONE + i))
    a("s_waitcnt lgkmcnt(0)")
    for u in range(2):
        for fq in range(4):
            for hf in range(2):
                a("ds_read_b64_tr_b16 %s, v6 offset:%d" % (vr(AF + (u * 4 + fq) * 4 + hf * 2, 2), (2 * u + hf) * 16 * KS + fq * 32))
    a("s_waitcnt lgkmcnt(8)")
    for u in range(2):
        if u == 1:
            a("s_waitcnt lgkmcnt(0)")
        for fq in range(4):
            for t in range(3):
                c = KV + (fq * 2 + t) * 4 if t < 2 else KV + (8 + fq) * 4
                b = BF + (u * 2 + t) * 4 if t < 2 else ONE
                a("v_mfma_f32_16x16x32_bf16 %s, %s, %s, %s" % (vr(c, 4), vr(AF + (u * 4 + fq) * 4, 4), vr(b, 4), vr(c, 4) if u else "0"))
    a("v_add_u32 v8, s50, v7")
    a("s_nop 7")
    for t in range(12):
        a("ds_write_b128 v8, %s offset:%d" % (vr(KV + t * 4, 4), t * 1024))
    a("s_lshr_b32 s28, s20, 2")
    a("s_mul_i32 s28, s28, 12288")
    a("s_and_b32 s29, s20, 3")
    a("s_mul_i32 s29, s29, 3072")
    a("s_add_u32 s28, s28, s29")
    a("v_add_u32 v8, s28, v7")
    a("v_add_u32 v9, 0xc000, v8")
    a("s_lshl_b32 s28, s25, 3")
    a("s_add_u32 s28, s28, s23")
    a("s_mul_i32 s28, s28, 24")
    a("s_mul_i32 s29, s20, 3")
    a("s_add_u32 s28, s28, s29")
    a("s_lshl_b32 s28, s28, 10")
    a("v_add_u32 v10, s28, v7")
    a("s_lshl_b32 s28, s25, 8")
    a("s_add_u32 s28, s28, 32768")
    a("v_mov_b32 v11, s28")
    a("s_waitcnt lgkmcnt(0)")
    a("s_barrier")
    for wm in range(4):
        for i in range(3):
            a("ds_read_b128 %s, %s offset:%d" % (vr(32 + (wm * 3 + i) * 4, 4), "v9" if wm >= 2 else "v8", (wm & 1) * 24576 + i * 1024))
    a("s_waitcnt lgkmcnt(0)")
    for wm in range(1, 4):
        for i in range(6):
            a("v_pk_add_f32 %s, %s, %s" % (vr(32 + 2 * i, 2), vr(32 + 2 * i, 2), vr(32 + wm * 12 + 2 * i, 2)))
    for i in range(3):
        a("buffer_store_dwordx4 %s, v10, s[44:47], 0 offen offset:%d sc1" % (vr(32 + i * 4, 4), i * 1024))
    a("s_waitcnt vmcnt(0)")
    a("s_barrier")
    a("s_cmp_lg_u32 s20, 0")
    a("s_cbranch_scc1 g1q_sig")
    a("v_mov_b32 v12, 1")
    a("s_mov_b64 exec, 1")
    a("buffer_atomic_add v12, v11, s[52:55], 0 offen sc1")
    a("s_mov_b64 exec, -1")
    a.label("g1q_sig")
    g1_softmax_batch(a, acc, WP, 0)
    a("s_mov_b32 s29, 0")
    a.label("g1q_spin")
    a("buffer_load_dword v12, v11, s[52:55], 0 offen sc1")
    a("s_waitcnt vmcnt(0)")
    a("v_readfirstlane_b32 s28, v12")
    a("s_add_u32 s29, s29, 1")
    a("s_cmp_ge_u32 s28, 8")
    a("s_cbranch_scc1 g1q_go")
    a("s_sleep 2")
    a("s_cmp_lt_u32 s29, 0x100000")
    a("s_cbranch_scc1 g1q_spin")
    a.label("g1q_go")
    a("s_mul_i32 s28, s25, %d" % (8 * 24))
    a("s_mul_i32 s29, s20, 3")
    a("s_add_u32 s28, s28, s29")
    a("s_lshl_b32 s28, s28, 10")
    a("v_add_u32 v10, s28, v7")
    for rb in range(8):
        a("s_mov_b32 s28, 0x%x" % (rb * 24576))
        for i in range(3):
            a("buffer_load_dwordx4 %s, v10, s[44:47], s28 offen offset:%d sc1" % (vr(32 + (rb * 3 + i) * 4, 4), i * 1024))
    a("s_mul_i32 s28, s20, 1536")
    a("s_add_u32 s28, s28, %d" % SH)
    a("v_lshl_add_u32 v8, v1, 3, s28")
    a("s_mul_i32 s28, s22, 6144")
    a("s_add_u32 s28, s28, %d" % SH)
    a("v_lshl_add_u32 v9, v1, 3, s28")
    for rb in range(1, 8):
        a("s_waitcnt vmcnt(%d)" % ((7 - rb) * 3))
        for i in range(6):
            a("v_pk_add_f32 %s, %s, %s" % (vr(32 + 2 * i, 2), vr(32 + 2 * i, 2), vr(32 + rb * 12 + 2 * i, 2)))
    for i in range(6):
        a("v_cvt_pk_bf16_f32 v%d, v%d, v%d" % (16 + i, 32 + 2 * i, 33 + 2 * i))
    for i in range(3):
        a("ds_write_b64 v8, %s offset:%d" % (vr(16 + 2 * i, 2), i * 512))
    a("s_waitcnt lgkmcnt(0)")
    a("s_barrier")
    for t in range(3):
        for kk in range(2):
            for hf in range(2):
                fq = 2 * kk + hf
                tile = fq * 2 + t if t < 2 else 8 + fq
                a("ds_read_b64 %s, v9 offset:%d" % (vr(32 + (t * 2 + kk) * 4 + hf * 2, 2), tile * 512))
    a("s_movk_i32 s28, 80")
    a("v_mul_lo_u32 v5, v3, s28")
    a("v_lshl_add_u32 v5, v4, 3, v5")
    a("v_add_u32 v5, s50, v5")
    a("v_lshrrev_b32 v12, 2, v1")
    a("v_mul_lo_u32 v6, v12, s28")
    a("v_and_b32 v13, 3, v1")
    a("v_lshl_add_u32 v6, v13, 4, v6")
    a("v_add_u32 v6, s50, v6")
    a("s_lshl_b32 s28, s23, 8")
    a("s_lshl_b32 s29, s21, 6")
    a("s_add_u32 s28, s28, s29")
    a("v_add_u32 v12, s28, v12")
    a("s_movk_i32 s28, 9216")
    a("v_mul_lo_u32 v12, v12, s28")
    a("s_lshl_b32 s28, s25, 1")
    a("s_add_u32 s28, s28, s22")
    a("s_lshl_b32 s28, s28, 6")
    a("s_add_u32 s28, s28, 7168")
    a("v_lshl_add_u32 v13, v13, 4, s28")
    a("v_add_u32 v12, v12, v13")
    a("s_waitcnt lgkmcnt(0)")
    for kk in range(2):
        for mt in range(4):
            for t in range(3):
                c = 64 + (mt * 3 + t) * 4
                a("v_mfma_f32_16x16x32_bf16 %s, %s, %s, %s" % (vr(c, 4), vr(32 + (t * 2 + kk) * 4, 4), vr(acc(mt, 0) + kk * 4, 4), vr(c, 4) if kk else "0"))
    a("s_nop 7")
    R = range(4)
    for mt in R:
        a("v_cvt_pk_bf16_f32 v%d, v%d, v%d" % (112 + 2 * mt, 72 + mt * 12, 72 + mt * 12))
    for mt in R:
        a("v_lshlrev_b32 v%d, 16, v%d" % (112 + 2 * mt, 112 + 2 * mt))
    for mt in R:
        a("v_add_f32 v%d, 0x358637bd, v%d" % (112 + 2 * mt, 112 + 2 * mt))
    for mt in R:
        a("v_cvt_pk_bf16_f32 v%d, v%d, v%d" % (112 + 2 * mt, 112 + 2 * mt, 112 + 2 * mt))
    for mt in R:
        a("v_lshlrev_b32 v%d, 16, v%d" % (112 + 2 * mt, 112 + 2 * mt))
    for mt in R:
        a("v_rcp_f32 v%d, v%d" % (112 + 2 * mt, 112 + 2 * mt))
    for mt in R:
        for i in range(4):
            a("v_cvt_pk_bf16_f32 v%d, v%d, v%d" % (16 + i, 64 + mt * 12 + 2 * i, 65 + mt * 12 + 2 * i))
        for i in range(4):
            a("v_lshlrev_b32 v%d, 16, v%d" % (64 + mt * 12 + 2 * i, 16 + i))
            a("v_and_b32 v%d, 0xffff0000, v%d" % (65 + mt * 12 + 2 * i, 16 + i))
        for i in range(4):
            a("v_pk_mul_f32 %s, %s, %s op_sel_hi:[1,0]" % (vr(64 + mt * 12 + 2 * i, 2), vr(64 + mt * 12 + 2 * i, 2), vr(112 + 2 * mt, 2)))
        for i in range(4):
            a("v_cvt_pk_bf16_f32 v%d, v%d, v%d" % (20 + (mt & 1) * 4 + i, 64 + mt * 12 + 2 * i, 65 + mt * 12 + 2 * i))
        for dt in range(2):
            a("ds_write_b64 v5, %s offset:%d" % (vr(20 + (mt & 1) * 4 + 2 * dt, 2), mt * 16 * 80 + dt * 32))
    a("s_waitcnt lgkmcnt(0)")
    for j in range(4):
        a("ds_read_b128 %s, v6 offset:%d" % (vr(32 + j * 4, 4), j * 16 * 80))
    for j in range(4):
        a("s_waitcnt lgkmcnt(%d)" % (3 - j))
        a("s_mov_b32 s28, 0x%x" % (j * 16 * 9216))
        a("buffer_store_dwordx4 %s, v12, s[40:43], s28 offen" % vr(32 + j * 4, 4))


def gen_apply(a):
    L = "apply_kernel"
    kernel_head(a, L)
    a("s_cmp_ge_u32 s2, 256")
    a("s_cbranch_scc1 ap_done")
    a("s_load_dwordx2 s[4:5], s[0:1], %d" % KA_WS)
    a("v_and_b32 v1, 63, v0")
    a("v_lshrrev_b32 v2, 6, v0")
    a("v_and_b32 v3, 15, v1")
    a("v_lshrrev_b32 v4, 4, v1")
    a("s_and_b32 s20, s2, 31")
    a("s_lshr_b32 s21, s2, 5")
    a("s_waitcnt lgkmcnt(0)")
    srd(a, 8, 4, WS_KV, SZ_KV)
    srd(a, 12, 4, WS_PQ, SZ_PQ)
    srd(a, 16, 4, WS_HC, SZ_HC)
    a("s_lshl_b32 s22, s20, 11")
    a("s_lshl_b32 s23, s21, 8")
    a("s_add_u32 s22, s22, s23")
    a("v_lshl_add_u32 v5, v2, 6, v3")
    a("v_add_u32 v5, s22, v5")
    a("v_lshlrev_b32 v5, 7, v5")
    a("v_lshl_add_u32 v5, v4, 4, v5")
    for st in range(4):
        for kk in range(2):
            if st < 2:
                a("buffer_load_dwordx4 %s, v5, s[12:15], 0 offen offset:%d" % (vr(64 + (st * 2 + kk) * 4, 4), st * 2048 + kk * 64))
            else:
                a("s_movk_i32 s24, 4096")
                a("buffer_load_dwordx4 %s, v5, s[12:15], s24 offen offset:%d" % (vr(64 + (st * 2 + kk) * 4, 4), (st - 2) * 2048 + kk * 64))
    a("s_lshl_b32 s22, s20, 14")
    a("v_lshlrev_b32 v6, 5, v0")
    a("v_add_u32 v6, s22, v6")
    for rb in range(8):
        a("s_mov_b32 s24, 0x%x" % (rb << 19))
        a("buffer_load_dwordx4 %s, v6, s[8:11], s24 offen" % vr(96 + rb * 8, 4))
        a("buffer_load_dwordx4 %s, v6, s[8:11], s24 offen offset:16" % vr(100 + rb * 8, 4))
    a("v_and_b32 v7, 7, v0")
    a("v_lshlrev_b32 v7, 5, v7")
    a("v_add_u32 v7, s22, v7")
    for rb in range(8):
        a("s_mov_b32 s24, 0x%x" % ((rb << 19) + 8192))
        a("buffer_load_dwordx4 %s, v7, s[8:11], s24 offen" % vr(160 + rb * 8, 4))
        a("buffer_load_dwordx4 %s, v7, s[8:11], s24 offen offset:16" % vr(164 + rb * 8, 4))
    a("s_waitcnt vmcnt(0)")
    for base in (96, 160):
        for rb in range(1, 8):
            for i in range(8):
                a("v_add_f32 v%d, v%d, v%d" % (base + i, base + i, base + rb * 8 + i))
    for i in range(4):
        a("v_cvt_pk_bf16_f32 v%d, v%d, v%d" % (8 + i, 96 + 2 * i, 97 + 2 * i))
        a("v_cvt_pk_bf16_f32 v%d, v%d, v%d" % (12 + i, 160 + 2 * i, 161 + 2 * i))
    a("v_lshlrev_b32 v6, 4, v0")
    a("ds_write_b128 v6, v[8:11]")
    a("v_and_b32 v7, 7, v0")
    a("v_lshlrev_b32 v7, 4, v7")
    a("ds_write_b128 v7, v[12:15] offset:4096")
    a("s_waitcnt lgkmcnt(0)")
    a("s_barrier")
    a("v_lshlrev_b32 v6, 7, v3")
    a("v_lshl_add_u32 v6, v4, 4, v6")
    a("v_lshlrev_b32 v7, 4, v4")
    for dt in range(2):
        for kk in range(2):
            a("ds_read_b128 %s, v6 offset:%d" % (vr(8 + (dt * 2 + kk) * 4, 4), dt * 2048 + kk * 64))
    for kk in range(2):
        a("ds_read_b128 %s, v7 offset:%d" % (vr(24 + kk * 4, 4), 4096 + kk * 64))
    a("s_lshl_b32 s23, s21, 8")
    a("v_lshl_add_u32 v5, v2, 6, v3")
    a("v_add_u32 v5, s23, v5")
    a("s_movk_i32 s24, 9216")
    a("v_mul_lo_u32 v5, v5, s24")
    a("s_lshl_b32 s23, s20, 6")
    a("s_add_u32 s23, s23, 7168")
    a("v_lshl_add_u32 v6, v4, 3, s23")
    a("v_add_u32 v5, v5, v6")
    a("s_waitcnt lgkmcnt(0)")
    for st in range(4):
        C = 96 + st * 12
        for t in range(3):
            a("v_mfma_f32_16x16x32_bf16 %s, %s, %s, 0" % (vr(C + t * 4, 4), vr(8 + t * 8, 4), vr(64 + st * 8, 4)))
        for t in range(3):
            a("v_mfma_f32_16x16x32_bf16 %s, %s, %s, %s" % (vr(C + t * 4, 4), vr(12 + t * 8, 4), vr(68 + st * 8, 4), vr(C + t * 4, 4)))
    a("s_nop 7")
    a("s_nop 7")
    for st in range(4):
        C = 96 + st * 12
        a("v_cvt_pk_bf16_f32 v32, v%d, v%d" % (C + 8, C + 8))
        a("v_lshlrev_b32 v32, 16, v32")
        a("v_add_f32 v32, 0x358637bd, v32")
        a("v_cvt_pk_bf16_f32 v32, v32, v32")
        a("v_lshlrev_b32 v32, 16, v32")
        a("v_rcp_f32 v32, v32")
        for i in range(4):
            bf16_round_pair(a, C + 2 * i, C + 2 * i + 1, 33)
        for i in range(8):
            a("v_mul_f32 v%d, v%d, v32" % (C + i, C + i))
        for i in range(4):
            a("v_cvt_pk_bf16_f32 v%d, v%d, v%d" % (40 + st * 4 + i, C + 2 * i, C + 2 * i + 1))
        a("buffer_store_dwordx2 %s, v5, s[16:19], 0 offen" % vr(40 + st * 4, 2))
        a("buffer_store_dwordx2 %s, v5, s[16:19], 0 offen offset:32" % vr(42 + st * 4, 2))
        if st < 3:
            a("v_add_u32 v5, %d, v5" % (16 * 9216))
    a.label("ap_done")
    a("s_endpgm")
    return L, 224


G2_ACC = 128
G2_FA = (32, 64)
G2_FB = (48, 80)
G2_VA = 16
G2_VB = (18, 19, 20, 21)
G2_N0 = 28
G2_DMAPOS = (1, 5, 9, 13)


def g2_mfmas(st):
    out = []
    for mt in range(4):
        for nt in range(4):
            c = G2_ACC + (mt * 4 + nt) * 4
            out.append("v_mfma_f32_16x16x32_bf16 %s, %s, %s, %s" % (
                vr(c, 4), vr(G2_FB[st] + nt * 4, 4), vr(G2_FA[st] + mt * 4, 4), vr(c, 4)))
    return out


def g2_reads(st, buf):
    out = []
    for mt in range(4):
        out.append(["ds_read_b128 %s, %s offset:%d" % (vr(G2_FA[st] + mt * 4, 4), vr(G2_VA), buf * 16384 + mt * 2048)])
    for nt in range(4):
        for rd in range(2):
            out.append(["ds_read_b64_tr_b16 %s, %s offset:%d" % (vr(G2_FB[st] + nt * 4 + rd * 2, 2), vr(G2_VB[nt]), buf * 16384 + rd * 1024)])
    return out


def g2_dmas(buf):
    out = [["s_cmp_eq_u32 s19, 0",
            "s_cselect_b32 s12, s30, s12",
            "s_cselect_b32 s13, s31, s13",
            "s_cselect_b32 s14, 0x%x, s14" % (D * D * 2),
            "s_cselect_b32 s17, 0, s17",
            "s_sub_u32 s19, s19, 1"]]
    for j in range(2):
        out.append(["s_add_u32 m0, s27, %d" % (buf * 16384 + j * 1024),
                    "s_nop 0",
                    "buffer_load_dwordx4 v%d, s[8:11], s16 offen lds" % (8 + j)])
    for j in range(2):
        out.append(["s_add_u32 m0, s27, %d" % (65536 + buf * 16384 + j * 1024),
                    "s_nop 0",
                    "buffer_load_dwordx4 v%d, s[12:15], s17 offen lds" % (12 + j)])
    out.append(["s_add_u32 s16, s16, 128", "s_add_u32 s17, s17, %d" % (64 * 2048)])
    return out


def g2_iter(a, i, dma, nxt, vm):
    slots = {}
    if dma and "NODMA" not in FLAGS:
        d = g2_dmas(i % 4)
        slots.setdefault(0, []).append(d[0])
        for j in range(4):
            slots.setdefault(G2_DMAPOS[j], []).append(d[1 + j])
        slots.setdefault(G2_DMAPOS[3], []).append(d[5])
    if nxt:
        r = g2_reads((i + 1) & 1, (i + 1) % 4)
        pos = [p for p in range(16) if p not in G2_DMAPOS][:12]
        for p, x in zip(pos, r):
            slots.setdefault(p, []).append(x)
    place(a, g2_mfmas(i & 1), slots)
    if nxt:
        if vm is None:
            a("s_waitcnt lgkmcnt(0)")
        else:
            a("s_waitcnt vmcnt(%d) lgkmcnt(0)" % vm)
        a("s_barrier")


def gen_gemm2(a):
    L = "gemm2_kernel"
    kernel_head(a, L)
    a("s_cmp_ge_u32 s2, 256")
    a("s_cbranch_scc1 g2_done")
    stamp(a, 0)
    stamp_rt(a, 6)
    a("s_load_dwordx2 s[4:5], s[0:1], %d" % KA_WS)
    a("s_load_dwordx2 s[6:7], s[0:1], %d" % KA_W2)
    a("s_load_dwordx2 s[30:31], s[0:1], %d" % KA_WO)
    a("s_load_dwordx2 s[32:33], s[0:1], %d" % KA_X)
    a("s_load_dwordx2 s[34:35], s[0:1], %d" % KA_B2)
    a("s_load_dwordx2 s[36:37], s[0:1], %d" % KA_OUT)
    g1_common_addr(a)
    a("s_and_b32 s21, s2, 7")
    a("s_lshr_b32 s23, s2, 7")
    a("s_bfe_u32 s24, s2, 0x20003")
    a("s_and_b32 s25, s21, 3")
    a("s_lshl_b32 s25, s25, 2")
    a("s_add_u32 s24, s24, s25")
    a("s_bfe_u32 s25, s2, 0x20005")
    a("s_lshr_b32 s26, s21, 2")
    a("s_lshl_b32 s26, s26, 2")
    a("s_add_u32 s25, s25, s26")
    if "SAMETILE" in FLAGS:
        a("s_mov_b32 s24, 0")
        a("s_mov_b32 s25, 0")
        a("s_mov_b32 s23, 0")
    a("s_lshr_b32 s21, s20, 2")
    a("s_bfe_u32 s22, s20, 0x10001")
    a("s_and_b32 s26, s20, 1")
    a("s_lshl_b32 s27, s20, 11")
    a("v_lshrrev_b32 v5, 3, v1")
    a("s_lshl_b32 s28, s24, 7")
    a("s_lshl_b32 s29, s20, 4")
    a("s_add_u32 s28, s28, s29")
    a("v_add_u32 v5, s28, v5")
    a("s_movk_i32 s28, 9216")
    a("v_mul_lo_u32 v5, v5, s28")
    a("v_and_b32 v6, 7, v1")
    for j in range(2):
        a("v_add_u32 v7, %d, v4" % (4 * j))
        a("v_and_b32 v7, 7, v7")
        a("v_xor_b32 v7, v7, v6")
        a("v_lshl_add_u32 v7, v7, 4, v5")
        a("v_add_u32 v%d, %d, v7" % (8 + j, j * 8 * 9216))
    a("s_lshl_b32 s28, s20, 3")
    a("v_add_u32 v5, s28, v4")
    a("v_lshlrev_b32 v5, 11, v5")
    a("s_lshl_b32 s28, s25, 8")
    a("v_add_u32 v5, s28, v5")
    a("s_lshl_b32 s28, s26, 2")
    a("v_or_b32 v7, s28, v4")
    a("v_lshlrev_b32 v7, 1, v7")
    a("v_xor_b32 v7, v7, v3")
    a("v_lshl_add_u32 v12, v7, 4, v5")
    a("v_add_u32 v13, %d, v12" % (4 * 2048))
    a("s_lshl_b32 s28, s21, 2")
    a("v_add_u32 v5, s28, v4")
    a("v_lshrrev_b32 v6, 1, v3")
    a("v_xor_b32 v5, v5, v6")
    a("s_lshl_b32 s28, s22, 6")
    a("v_add_u32 v6, s28, v3")
    a("v_lshlrev_b32 v6, 7, v6")
    a("v_lshl_add_u32 v%d, v5, 4, v6" % G2_VA)
    a("v_bfe_u32 v5, v1, 2, 2")
    a("v_and_b32 v6, 1, v4")
    a("v_lshl_or_b32 v6, v6, 2, v5")
    a("v_lshl_add_u32 v5, v4, 3, v5")
    a("s_lshl_b32 s28, s21, 5")
    a("v_add_u32 v5, s28, v5")
    a("v_lshlrev_b32 v5, 8, v5")
    a("v_and_b32 v7, 3, v1")
    a("v_lshl_add_u32 v5, v7, 3, v5")
    a("v_add_u32 v5, 0x10000, v5")
    for nt in range(4):
        a("s_lshl_b32 s28, s26, 2")
        a("s_add_u32 s28, s28, %d" % nt)
        a("v_xor_b32 v7, s28, v6")
        a("v_lshl_add_u32 v%d, v7, 5, v5" % G2_VB[nt])
    a("s_waitcnt lgkmcnt(0)")
    srd(a, 8, 4, WS_HC, SZ_HC)
    srd(a, 12, 6, 0, F * D * 2)
    a("s_and_b32 s31, s31, 0xffff")
    a("s_mul_i32 s16, s23, %d" % (G2_N0 * 64 * 2))
    a("s_mul_i32 s17, s23, %d" % (G2_N0 * 64 * 2048))
    a("s_mov_b32 s19, 1000")
    a("s_mov_b32 s18, %d" % ((G2_N0 - 4) // 4))
    a("s_cmp_eq_u32 s23, 1")
    a("s_cselect_b32 s19, %d, s19" % (56 - G2_N0))
    a("s_cselect_b32 s18, %d, s18" % ((72 - G2_N0 - 4) // 4))
    srd(a, 44, 4, WS_FL, SZ_FL)
    srd(a, 40, 4, WS_P, SZ_P)
    a("s_lshl_b32 s28, s24, 3")
    a("s_add_u32 s28, s28, s25")
    a("s_lshl_b32 s38, s28, 8")
    a("s_lshl_b32 s39, s28, 16")
    a("s_lshl_b32 s28, s20, 13")
    a("s_add_u32 s39, s39, s28")
    a("v_mov_b32 v22, s38")
    a("v_lshlrev_b32 v24, 4, v1")
    a("v_add_u32 v24, s39, v24")
    a("s_movk_i32 s39, 4096")
    srd(a, 48, 32, 0, S * D * 2)
    srd(a, 52, 34, 0, D * 2)
    srd(a, 56, 36, 0, S * D * 2)
    a("s_lshl_b32 s28, s24, 7")
    a("s_lshl_b32 s29, s20, 4")
    a("s_add_u32 s28, s28, s29")
    a("v_add_u32 v25, s28, v4")
    a("v_lshlrev_b32 v25, 11, v25")
    a("s_lshl_b32 s28, s25, 8")
    a("v_lshl_add_u32 v26, v3, 4, s28")
    a("v_add_u32 v25, v25, v26")
    for st in range(4):
        for f in g2_dmas(st):
            for x in f:
                a(x)
    for i in range(64):
        a("v_mov_b32 v%d, 0" % (G2_ACC + i))
    stamp(a, 1)
    a("s_waitcnt vmcnt(12)")
    a("s_barrier")
    stamp(a, 2)
    for f in g2_reads(0, 0):
        for x in f:
            a(x)
    a("s_waitcnt vmcnt(8) lgkmcnt(0)")
    a("s_barrier")
    a.label("g2_loop")
    for i in range(4):
        g2_iter(a, i, True, True, 8)
    a("s_sub_u32 s18, s18, 1")
    a("s_cmp_lg_u32 s18, 0")
    a("s_cbranch_scc1 g2_loop")
    stamp(a, 8)
    a("buffer_load_dword v23, v22, s[44:47], 0 offen sc1")
    g2_iter(a, 0, False, True, 5)
    a("s_cmp_eq_u32 s23, 0")
    a("s_cbranch_scc1 g2_pubtail")
    for j in range(4):
        a("s_mov_b32 s38, 0x%x" % (j * 4 * 2048))
        a("buffer_load_dwordx4 %s, v25, s[48:51], s38 offen" % vr(224 + j * 4, 4))
    a("buffer_load_dwordx4 v[240:243], v26, s[52:55], 0 offen")
    g2_iter(a, 1, False, True, 5)
    stamp(a, 7)
    a("s_mov_b32 s29, 0")
    a("s_branch g2_chk")
    a.label("g2_spin")
    a("buffer_load_dword v23, v22, s[44:47], 0 offen sc1")
    a("s_waitcnt vmcnt(0)")
    a.label("g2_chk")
    a("v_readfirstlane_b32 s28, v23")
    a("s_add_u32 s29, s29, 1")
    a("s_cmp_ge_u32 s28, 1")
    a("s_cbranch_scc1 g2_go")
    a("s_sleep 2")
    a("s_cmp_lt_u32 s29, 0x100000")
    a("s_cbranch_scc1 g2_spin")
    a.label("g2_go")
    stamp(a, 9)
    for t in range(8):
        a("buffer_load_dwordx4 %s, v24, s[40:43], %s offen offset:%d sc1" % (vr(192 + t * 4, 4), "s39" if t >= 4 else "0", (t % 4) * 1024))
    a("s_branch g2_tail")
    a.label("g2_pubtail")
    g2_iter(a, 1, False, True, 0)
    a.label("g2_tail")
    g2_iter(a, 2, False, True, None)
    g2_iter(a, 3, False, False, None)
    stamp(a, 3)
    a("s_nop 7")
    a("s_barrier")
    a("s_mul_i32 s28, s21, %d" % (128 * 528))
    a("s_mul_i32 s29, s22, %d" % (64 * 528))
    a("s_add_u32 s28, s28, s29")
    a("s_lshl_b32 s29, s26, 8")
    a("s_add_u32 s28, s28, s29")
    a("s_movk_i32 s29, 528")
    a("v_mul_lo_u32 v6, v3, s29")
    a("v_lshl_add_u32 v6, v4, 4, v6")
    a("v_add_u32 v6, s28, v6")
    for mt in range(4):
        for nt in range(4):
            a("ds_write_b128 v6, %s offset:%d" % (vr(G2_ACC + (mt * 4 + nt) * 4, 4), mt * 16 * 528 + nt * 64))
    a("s_lshl_b32 s28, s20, 4")
    a("v_add_u32 v7, s28, v4")
    a("v_mul_lo_u32 v7, v7, s29")
    a("v_lshl_add_u32 v7, v3, 5, v7")
    a("v_add_u32 v6, %d, v7" % (128 * 528))
    a("s_waitcnt lgkmcnt(0)")
    a("s_barrier")
    for j in range(4):
        for hf in range(2):
            a("ds_read_b128 %s, v7 offset:%d" % (vr(128 + j * 8 + hf * 4, 4), j * 4 * 528 + hf * 16))
            a("ds_read_b128 %s, v6 offset:%d" % (vr(32 + j * 8 + hf * 4, 4), j * 4 * 528 + hf * 16))
    a("s_waitcnt lgkmcnt(0)")
    for i in range(32):
        a("v_add_f32 v%d, v%d, v%d" % (128 + i, 128 + i, 32 + i))
    a("s_cmp_lg_u32 s23, 0")
    a("s_cbranch_scc1 g2_second")
    for t in range(8):
        a("buffer_store_dwordx4 %s, v24, s[40:43], %s offen offset:%d sc1" % (vr(128 + t * 4, 4), "s39" if t >= 4 else "0", (t % 4) * 1024))
    a("s_waitcnt vmcnt(0)")
    stamp(a, 8)
    a("s_barrier")
    a("s_cmp_lg_u32 s20, 0")
    a("s_cbranch_scc1 g2_fin")
    a("v_mov_b32 v23, 1")
    a("s_mov_b64 exec, 1")
    a("buffer_atomic_add v23, v22, s[44:47], 0 offen sc1")
    a("s_mov_b64 exec, -1")
    a("s_branch g2_fin")
    a.label("g2_second")
    a("s_waitcnt vmcnt(0)")
    for p in range(4):
        a("v_lshlrev_b32 v%d, 16, v%d" % (32 + 2 * p, 240 + p))
        a("v_and_b32 v%d, 0xffff0000, v%d" % (33 + 2 * p, 240 + p))
    for j in range(4):
        for p in range(4):
            c = 128 + j * 8 + 2 * p
            a("v_lshlrev_b32 v12, 16, v%d" % (224 + j * 4 + p))
            a("v_and_b32 v13, 0xffff0000, v%d" % (224 + j * 4 + p))
            a("v_add_f32 v12, v12, v%d" % (32 + 2 * p))
            a("v_add_f32 v13, v13, v%d" % (33 + 2 * p))
            a("v_add_f32 v%d, v%d, v%d" % (c, c, 192 + j * 8 + 2 * p))
            a("v_add_f32 v%d, v%d, v%d" % (c + 1, c + 1, 193 + j * 8 + 2 * p))
            a("v_add_f32 v%d, v%d, v12" % (c, c))
            a("v_add_f32 v%d, v%d, v13" % (c + 1, c + 1))
            a("v_cvt_pk_bf16_f32 v%d, v%d, v%d" % (64 + j * 4 + p, c, c + 1))
        a("s_mov_b32 s38, 0x%x" % (j * 4 * 2048))
        a("buffer_store_dwordx4 %s, v25, s[56:59], s38 offen" % vr(64 + j * 4, 4))
    a.label("g2_fin")
    a("s_waitcnt vmcnt(0)")
    stamp(a, 4)
    stamp_rt(a, 5)
    stamp_flush(a, 10, 1)
    a.label("g2_done")
    a("s_endpgm")
    return L, 248


def gen_combine(a):
    L = "combine_kernel"
    kernel_head(a, L)
    a("s_cmp_ge_u32 s2, 1024")
    a("s_cbranch_scc1 cb_done")
    a("s_load_dwordx2 s[4:5], s[0:1], %d" % KA_WS)
    a("s_load_dwordx2 s[6:7], s[0:1], %d" % KA_X)
    a("s_load_dwordx2 s[20:21], s[0:1], %d" % KA_B2)
    a("s_load_dwordx2 s[22:23], s[0:1], %d" % KA_OUT)
    a("s_lshl_b32 s3, s2, 8")
    a("v_add_u32 v1, s3, v0")
    a("v_lshlrev_b32 v2, 5, v1")
    a("v_lshlrev_b32 v3, 4, v1")
    a("v_and_b32 v4, 127, v1")
    a("v_lshlrev_b32 v4, 4, v4")
    a("s_waitcnt lgkmcnt(0)")
    srd(a, 8, 4, WS_P, SZ_P)
    srd(a, 12, 6, 0, S * D * 2)
    srd(a, 16, 20, 0, D * 2)
    srd(a, 24, 22, 0, S * D * 2)
    a("s_mov_b32 s28, 0x800000")
    a("buffer_load_dwordx4 v[8:11], v2, s[8:11], 0 offen")
    a("buffer_load_dwordx4 v[12:15], v2, s[8:11], 0 offen offset:16")
    a("buffer_load_dwordx4 v[16:19], v2, s[8:11], s28 offen")
    a("buffer_load_dwordx4 v[20:23], v2, s[8:11], s28 offen offset:16")
    a("buffer_load_dwordx4 v[24:27], v3, s[12:15], 0 offen")
    a("buffer_load_dwordx4 v[28:31], v4, s[16:19], 0 offen")
    a("s_waitcnt vmcnt(0)")
    for i in range(8):
        a("v_add_f32 v%d, v%d, v%d" % (8 + i, 8 + i, 16 + i))
    for i in range(4):
        a("v_lshlrev_b32 v32, 16, v%d" % (24 + i))
        a("v_and_b32 v33, 0xffff0000, v%d" % (24 + i))
        a("v_lshlrev_b32 v34, 16, v%d" % (28 + i))
        a("v_and_b32 v35, 0xffff0000, v%d" % (28 + i))
        a("v_add_f32 v32, v32, v34")
        a("v_add_f32 v33, v33, v35")
        a("v_add_f32 v%d, v%d, v32" % (8 + 2 * i, 8 + 2 * i))
        a("v_add_f32 v%d, v%d, v33" % (9 + 2 * i, 9 + 2 * i))
        a("v_cvt_pk_bf16_f32 v%d, v%d, v%d" % (36 + i, 8 + 2 * i, 9 + 2 * i))
    a("buffer_store_dwordx4 v[36:39], v3, s[24:27], 0 offen")
    a.label("cb_done")
    a("s_endpgm")
    return L, 40


def main():
    a = Asm()
    hdr = open("cdna_kernels/%s.s.ref" % NAME).read().split("\n")
    head = [l for l in hdr if l.startswith(";") and "@launch" not in l and "Override launch" not in l and "grid=ceil" not in l]
    launches = [
        "; @launch kernel=ln_kernel grid=(512,1,1) block=(256,1,1) lds=0",
        "; @launch kernel=gemm1_kernel grid=(256,1,1) block=(512,1,1) lds=131072",
        "; @launch kernel=gemm2_kernel grid=(256,1,1) block=(512,1,1) lds=135168",
    ]
    a.raw("\n".join(head + launches))
    a.raw('.amdgcn_target "amdgcn-amd-amdhsa--gfx950"')
    a.raw(".text")
    descs = []
    for g in (gen_ln, gen_gemm1, gen_gemm2):
        label, v = g(a)
        descs.append(kernel_desc(label, v))
    a.raw('.section .rodata,"a"')
    for d in descs:
        a.raw(".p2align 6")
        a.raw(d)
    open(OUT, "w").write(a.text())
    print("wrote", OUT, len(a.lines), "lines")


if __name__ == "__main__":
    main()
```

```python
import sys
import re
import os
FLAGS = set(os.environ.get("FLAGS", "").split(","))

NAME = "parallel_sum__linear_kernel_hedgehog__dense_activation_gelu__prompt"
OUT = os.environ.get("OUT", "cdna_kernels/%s.s" % NAME)

S, D, H, DH, F = 2048, 1024, 32, 32, 3584
KCAT = F + D
KA_X, KA_WQKV, KA_WPHI, KA_WO, KA_BX, KA_W1, KA_B1, KA_W2, KA_B2, KA_OUT, KA_DBG, KA_WS = [8 * i for i in range(12)]
WS_XN = 0x0000000
WS_HC = 0x0400000
WS_PQ = 0x1800000
WS_KV = 0x2000000
WS_P = 0x2400000
WS_FL = 0x3800000
SZ_FL = 65536
SZ_XN = S * D * 2
SZ_HC = S * KCAT * 2
SZ_PQ = H * S * 64 * 2
SZ_KV = 8 * 32 * 16384
SZ_P = S * D * 4

LOG2E = 0x3fb8aa3b


class Asm:
    def __init__(self):
        self.lines = []

    def __call__(self, s):
        m = re.search(r"offset:(\d+)", s)
        if m:
            lim = 4096 if s.startswith("buffer_") else 65536
            assert int(m.group(1)) < lim, s
        self.lines.append("    " + s)

    def label(self, s):
        self.lines.append(s + ":")

    def raw(self, s):
        self.lines.append(s)

    def text(self):
        return "\n".join(self.lines) + "\n"


def vr(b, n=1):
    return "v%d" % b if n == 1 else "v[%d:%d]" % (b, b + n - 1)


def sr(b, n=1):
    return "s%d" % b if n == 1 else "s[%d:%d]" % (b, b + n - 1)


def srd(a, d, base, off, size):
    if off:
        a("s_add_u32 s%d, s%d, 0x%x" % (d, base, off))
        a("s_addc_u32 s%d, s%d, 0" % (d + 1, base + 1))
    else:
        a("s_mov_b32 s%d, s%d" % (d, base))
        a("s_mov_b32 s%d, s%d" % (d + 1, base + 1))
    a("s_and_b32 s%d, s%d, 0xffff" % (d + 1, d + 1))
    a("s_mov_b32 s%d, 0x%x" % (d + 2, size))
    a("s_mov_b32 s%d, 0x00020000" % (d + 3))


def kernel_head(a, label):
    a.raw(".globl %s" % label)
    a.raw(".p2align 8")
    a.raw(".type %s,@function" % label)
    a.label(label)


def kernel_desc(label, vgpr, sgpr=102):
    acc = (vgpr + 3) // 4 * 4
    return """.amdhsa_kernel %s
  .amdhsa_next_free_vgpr %d
  .amdhsa_next_free_sgpr %d
  .amdhsa_accum_offset %d
  .amdhsa_group_segment_fixed_size 0
  .amdhsa_kernarg_size 96
  .amdhsa_user_sgpr_count 2
  .amdhsa_user_sgpr_kernarg_segment_ptr 1
  .amdhsa_system_sgpr_workgroup_id_x 1
.end_amdhsa_kernel
""" % (label, vgpr, sgpr, acc)


def stamp(a, i):
    if "STAMP" in FLAGS:
        a("s_memtime s[%d:%d]" % (60 + 2 * i, 61 + 2 * i))


def stamp_rt(a, i):
    if "STAMP" in FLAGS:
        a("s_memrealtime s[%d:%d]" % (60 + 2 * i, 61 + 2 * i))


def stamp_flush(a, n, kidx):
    if "STAMP" not in FLAGS:
        return
    a("s_waitcnt lgkmcnt(0)")
    srd(a, 88, 4, 0x8000000 + kidx * 0x100000, 0x100000)
    a("s_lshl_b32 s92, s2, 3")
    a("s_add_u32 s92, s92, s20")
    a("s_lshl_b32 s92, s92, 7")
    a("v_mov_b32 v2, s92")
    for i in range(n):
        a("v_mov_b32 v4, s%d" % (60 + 2 * i))
        a("v_mov_b32 v5, s%d" % (61 + 2 * i))
        a("buffer_store_dwordx2 v[4:5], v2, s[88:91], 0 offen offset:%d" % (8 * i))
        a("s_nop 1")


def allreduce64(a, op, v, t):
    for ctl in ("quad_perm:[1,0,3,2]", "quad_perm:[2,3,0,1]", "row_half_mirror", "row_mirror"):
        a("s_nop 1")
        a("%s_dpp %s, %s, %s %s row_mask:0xf bank_mask:0xf" % (op, vr(v), vr(v), vr(v), ctl))
    for sw in ("v_permlane16_swap_b32", "v_permlane32_swap_b32"):
        a("v_mov_b32 %s, %s" % (vr(t), vr(v)))
        a("s_nop 1")
        a("%s %s, %s" % (sw, vr(v), vr(t)))
        a("s_nop 1")
        a("%s %s, %s, %s" % (op, vr(v), vr(v), vr(t)))


def gen_ln(a):
    L = "ln_kernel"
    kernel_head(a, L)
    a("s_cmp_ge_u32 s2, 512")
    a("s_cbranch_scc1 ln_done")
    a("s_load_dwordx2 s[4:5], s[0:1], %d" % KA_X)
    a("s_load_dwordx2 s[6:7], s[0:1], %d" % KA_WS)
    a("s_load_dwordx2 s[20:21], s[0:1], %d" % KA_WQKV)
    a("s_load_dwordx2 s[22:23], s[0:1], %d" % KA_W1)
    a("v_lshrrev_b32 v1, 6, v0")
    a("v_and_b32 v2, 63, v0")
    a("s_lshl_b32 s3, s2, 2")
    a("v_add_u32 v1, s3, v1")
    a("v_lshlrev_b32 v3, 12, v1")
    a("v_lshl_add_u32 v3, v2, 6, v3")
    a("v_lshlrev_b32 v1, 11, v1")
    a("v_lshl_add_u32 v1, v2, 4, v1")
    a("s_waitcnt lgkmcnt(0)")
    srd(a, 8, 4, 0, SZ_XN)
    srd(a, 12, 6, WS_XN, SZ_XN)
    a("buffer_load_dwordx4 v[4:7], v1, s[8:11], 0 offen")
    a("buffer_load_dwordx4 v[8:11], v1, s[8:11], 0 offen offset:1024")
    if "NOPF" not in FLAGS:
        srd(a, 24, 20, 0, D * 3 * D * 2)
        srd(a, 28, 22, 0, D * F * 2)
        a("buffer_load_dword v39, v3, s[24:27], 0 offen")
        a("buffer_load_dword v39, v3, s[28:31], 0 offen")
    a("s_cmp_ge_u32 s2, 16")
    a("s_cbranch_scc1 ln_nz")
    srd(a, 16, 6, WS_FL, SZ_FL)
    a("s_lshl_b32 s3, s2, 12")
    a("v_lshl_add_u32 v12, v0, 4, s3")
    for i in range(4):
        a("v_mov_b32 v%d, 0" % (16 + i))
    a("buffer_store_dwordx4 v[16:19], v12, s[16:19], 0 offen")
    a("s_waitcnt vmcnt(3)")
    a.label("ln_nz")
    a("s_waitcnt vmcnt(%d)" % (0 if "NOPF" in FLAGS else 2))
    for i in range(8):
        a("v_lshlrev_b32 v%d, 16, v%d" % (16 + 2 * i, 4 + i))
        a("v_and_b32 v%d, 0xffff0000, v%d" % (17 + 2 * i, 4 + i))
    a("v_add_f32 v32, v16, v17")
    for i in range(2, 16):
        a("v_add_f32 v32, v32, v%d" % (16 + i))
    allreduce64(a, "v_add_f32", 32, 33)
    a("v_mul_f32 v32, 0x3a800000, v32")
    a("v_sub_f32 v34, v16, v32")
    a("v_mul_f32 v35, v34, v34")
    for i in range(1, 16):
        a("v_sub_f32 v34, v%d, v32" % (16 + i))
        a("v_fmac_f32 v35, v34, v34")
    allreduce64(a, "v_add_f32", 35, 33)
    a("v_mul_f32 v35, 0x3a800000, v35")
    a("v_cvt_pk_bf16_f32 v36, v32, v35")
    a("v_lshlrev_b32 v32, 16, v36")
    a("v_and_b32 v35, 0xffff0000, v36")
    a("v_add_f32 v35, 0x3727c5ac, v35")
    a("v_cvt_pk_bf16_f32 v36, v35, v35")
    a("v_lshlrev_b32 v35, 16, v36")
    a("v_sqrt_f32 v35, v35")
    a("s_nop 0")
    a("v_cvt_pk_bf16_f32 v36, v35, v35")
    a("v_lshlrev_b32 v35, 16, v36")
    a("v_rcp_f32 v35, v35")
    a("s_nop 0")
    for i in range(8):
        a("v_sub_f32 v%d, v%d, v32" % (16 + 2 * i, 16 + 2 * i))
        a("v_sub_f32 v%d, v%d, v32" % (17 + 2 * i, 17 + 2 * i))
        a("v_cvt_pk_bf16_f32 v36, v%d, v%d" % (16 + 2 * i, 17 + 2 * i))
        a("v_lshlrev_b32 v37, 16, v36")
        a("v_and_b32 v38, 0xffff0000, v36")
        a("v_mul_f32 v37, v37, v35")
        a("v_mul_f32 v38, v38, v35")
        a("v_cvt_pk_bf16_f32 v%d, v37, v38" % (4 + i))
    a("buffer_store_dwordx4 v[4:7], v1, s[12:15], 0 offen")
    a("buffer_store_dwordx4 v[8:11], v1, s[12:15], 0 offen offset:1024")
    a.label("ln_done")
    a("s_endpgm")
    return L, 40


def interleave(a, mfmas, fillers):
    n = len(mfmas)
    nf = len(fillers)
    fi = 0
    for i, m in enumerate(mfmas):
        a(m)
        want = ((i + 1) * nf + n - 1) // n if nf <= n else ((i + 1) * nf) // n
        want = min(nf, max(want, min(nf, i + 1)))
        while fi < want:
            for x in fillers[fi]:
                a(x)
            fi += 1
    while fi < nf:
        for x in fillers[fi]:
            a(x)
        fi += 1


def place(a, mfmas, slots):
    for i, m in enumerate(mfmas):
        a(m)
        for grp in slots.get(i, []):
            for x in grp:
                a(x)


class Gemm:
    def __init__(self, a, MT, NT, acc, fragA, fragB, vA, vB, voffA, voffB,
                 a_off, b_off, orient, sM0, sOffA, sOffB, srdA, srdB, stepA, stepB):
        self.__dict__.update(locals())

    def mfmas(self, st):
        out = []
        for mt in range(self.MT):
            for nt in range(self.NT):
                c = self.acc + (mt * self.NT + nt) * 4
                fa = self.fragA[st] + mt * 4
                fb = self.fragB[st] + nt * 4
                if self.orient(nt):
                    x, y = fb, fa
                else:
                    x, y = fa, fb
                out.append("v_mfma_f32_16x16x32_bf16 %s, %s, %s, %s" % (vr(c, 4), vr(x, 4), vr(y, 4), vr(c, 4)))
        return out

    def reads(self, st, stage, ph):
        out = []
        for mt in range(self.MT):
            out.append(["ds_read_b128 %s, %s offset:%d" % (vr(self.fragA[st] + mt * 4, 4), vr(self.vA[ph]), self.a_off(stage, mt))])
        for nt in range(self.NT):
            for rd in range(2):
                out.append(["ds_read_b64_tr_b16 %s, %s offset:%d" % (vr(self.fragB[st] + nt * 4 + rd * 2, 2), vr(self.vB[nt]), self.b_off(stage, ph, rd))])
        return out

    def dmas(self, stage):
        out = []
        for j in range(4):
            out.append(["s_add_u32 m0, s%d, %d" % (self.sM0, stage * 32768 + j * 1024),
                        "s_nop 0",
                        "buffer_load_dwordx4 %s, %s, s%d offen lds" % (vr(self.voffA + j), sr(self.srdA, 4), self.sOffA)])
        for j in range(4):
            out.append(["s_add_u32 m0, s%d, %d" % (self.sM0, 65536 + stage * 32768 + j * 1024),
                        "s_nop 0",
                        "buffer_load_dwordx4 %s, %s, s%d offen lds" % (vr(self.voffB + j), sr(self.srdB, 4), self.sOffB)])
        return out

    def advance(self):
        return [["s_add_u32 s%d, s%d, %d" % (self.sOffA, self.sOffA, self.stepA),
                 "s_add_u32 s%d, s%d, %d" % (self.sOffB, self.sOffB, self.stepB)]]

    def prologue(self, pre_dma=None):
        a = self.a
        for stage in range(2):
            if pre_dma:
                for x in pre_dma():
                    a(x)
            for f in self.dmas(stage) + self.advance():
                for x in f:
                    a(x)
        for i in range(self.MT * self.NT * 4):
            a("v_mov_b32 v%d, 0" % (self.acc + i))
        stamp(a, 1)
        a("s_waitcnt vmcnt(8)")
        a("s_barrier")
        stamp(a, 2)
        for f in self.reads(0, 0, 0):
            for x in f:
                a(x)
        a("s_waitcnt lgkmcnt(0)")

    def iteration(self, stage, dma, nxt, pre_dma=None):
        a = self.a
        interleave(a, self.mfmas(0), self.reads(1, stage, 1) if "NOREAD" not in FLAGS else [])
        if nxt:
            a("s_waitcnt vmcnt(0) lgkmcnt(0)")
            if "NOBAR" not in FLAGS:
                a("s_barrier")
        else:
            a("s_waitcnt lgkmcnt(0)")
        mf = self.mfmas(1)
        n = len(mf)
        slots = {}
        dpos = [(j * (n - 4)) // 8 for j in range(8)]
        if dma and "NODMA" not in FLAGS:
            d = self.dmas(stage)
            for j in range(8):
                slots.setdefault(dpos[j], []).append(d[j])
            slots.setdefault(dpos[7], []).append(self.advance()[0])
        if nxt and "NOREAD" not in FLAGS:
            r = self.reads(0, stage ^ 1, 0)
            pos = [p for p in range(n) if p not in dpos]
            while len(pos) < len(r):
                pos = sorted(pos + pos[:len(r) - len(pos)])
            for p, x in zip(pos, r):
                slots.setdefault(p, []).append(x)
        place(a, mf, slots)
        if nxt:
            a("s_waitcnt lgkmcnt(0)")

    def run(self, nstages, tag, sCnt, pre_dma=None):
        a = self.a
        self.prologue(pre_dma)
        npairs = (nstages - 2) // 2
        a("s_mov_b32 s%d, %d" % (sCnt, npairs))
        a.label(tag + "_loop")
        self.iteration(0, True, True, pre_dma)
        self.iteration(1, True, True, pre_dma)
        a("s_sub_u32 s%d, s%d, 1" % (sCnt, sCnt))
        a("s_cmp_lg_u32 s%d, 0" % sCnt)
        a("s_cbranch_scc1 %s_loop" % tag)
        self.iteration(0, False, True)
        self.iteration(1, False, False)
        stamp(a, 3)


G1_ACC = 128
G1_FA = (32, 76)
G1_FB = (48, 92)
G1_VOA, G1_VOB = 8, 12
G1_VA = (16, 17)
G1_VB = (18, 19, 20, 21, 22, 23, 24)
G1_X = 240


def g1_common_addr(a):
    a("v_and_b32 v1, 63, v0")
    a("v_lshrrev_b32 v2, 6, v0")
    a("s_nop 0")
    a("v_readfirstlane_b32 s20, v2")
    a("v_and_b32 v3, 15, v1")
    a("v_lshrrev_b32 v4, 4, v1")


def gen_gemm1(a):
    L = "gemm1_kernel"
    kernel_head(a, L)
    a("s_cmp_ge_u32 s2, 256")
    a("s_cbranch_scc1 g1_done")
    stamp(a, 0)
    stamp_rt(a, 6)
    a("s_load_dwordx2 s[4:5], s[0:1], %d" % KA_WS)
    a("s_load_dwordx2 s[6:7], s[0:1], %d" % KA_WQKV)
    a("s_load_dwordx2 s[30:31], s[0:1], %d" % KA_W1)
    a("s_load_dwordx2 s[32:33], s[0:1], %d" % KA_WPHI)
    a("s_load_dwordx2 s[34:35], s[0:1], %d" % KA_B1)
    g1_common_addr(a)
    a("s_and_b32 s21, s2, 7")
    a("s_lshr_b32 s22, s2, 3")
    a("s_and_b32 s23, s21, 1")
    a("s_lshl_b32 s23, s23, 2")
    a("s_and_b32 s24, s22, 3")
    a("s_add_u32 s23, s23, s24")
    a("s_lshr_b32 s24, s22, 2")
    a("s_lshr_b32 s25, s21, 1")
    a("s_lshl_b32 s25, s25, 2")
    a("s_and_b32 s26, s24, 3")
    a("s_add_u32 s25, s25, s26")
    a("s_lshr_b32 s21, s20, 1")
    a("s_and_b32 s22, s20, 1")
    a("s_lshl_b32 s27, s20, 12")
    a("v_lshrrev_b32 v5, 3, v1")
    a("s_lshl_b32 s28, s23, 8")
    a("s_lshl_b32 s29, s20, 5")
    a("s_add_u32 s28, s28, s29")
    a("v_add_u32 v5, s28, v5")
    a("v_lshlrev_b32 v5, 11, v5")
    a("v_and_b32 v6, 7, v1")
    for j in range(4):
        a("v_add_u32 v7, %d, v4" % (4 * j))
        a("v_and_b32 v7, 7, v7")
        a("v_xor_b32 v7, v7, v6")
        a("v_lshl_add_u32 v7, v7, 4, v5")
        a("v_add_u32 v%d, %d, v7" % (G1_VOA + j, j * 8 * 2048))
    a("v_lshrrev_b32 v5, 1, v3")
    a("v_xor_b32 v5, v5, v4")
    a("s_lshl_b32 s28, s21, 6")
    a("v_add_u32 v6, s28, v3")
    a("v_lshlrev_b32 v6, 7, v6")
    a("v_lshl_add_u32 v%d, v5, 4, v6" % G1_VA[0])
    a("v_xor_b32 v%d, 64, v%d" % (G1_VA[1], G1_VA[0]))
    a("v_bfe_u32 v5, v1, 2, 2")
    a("v_and_b32 v6, 1, v4")
    a("v_lshl_or_b32 v6, v6, 2, v5")
    a("v_lshl_add_u32 v5, v4, 3, v5")
    a("v_lshlrev_b32 v5, 9, v5")
    a("v_and_b32 v7, 3, v1")
    a("v_lshl_add_u32 v5, v7, 3, v5")
    a("v_add_u32 v5, 0x10000, v5")
    a("s_waitcnt lgkmcnt(0)")
    srd(a, 8, 4, WS_XN, SZ_XN)
    a("s_mov_b32 s16, 0")
    a("s_mov_b32 s17, 0")
    a("s_cmp_ge_u32 s24, 4")
    a("s_cbranch_scc1 g1_w1")

    def b_dma_rows(a, j):
        a("v_lshrrev_b32 v25, 5, v1")
        a("v_add_u32 v25, %d, v25" % (2 * j))
        a("v_and_b32 v26, 3, v25")
        a("v_and_b32 v27, 1, s20")
        a("v_lshl_or_b32 v26, v27, 2, v26")
        a("v_lshlrev_b32 v26, 1, v26")
        a("v_and_b32 v27, 31, v1")
        a("v_xor_b32 v26, v26, v27")
        a("s_lshl_b32 s28, s20, 3")
        a("v_add_u32 v25, s28, v25")

    def a_off(stage, mt):
        return stage * 32768 + mt * 2048

    def b_off(stage, ph, rd):
        return stage * 32768 + ph * 16384 + rd * 2048

    NT = 6
    for tt in range(NT):
        a("s_mul_i32 s28, s22, %d" % NT)
        a("s_add_u32 s28, s28, %d" % tt)
        a("v_xor_b32 v7, s28, v6")
        a("v_lshl_add_u32 v%d, v7, 5, v5" % G1_VB[tt])
    srd(a, 12, 6, 0, D * 3 * D * 2)
    for j in range(4):
        b_dma_rows(a, j)
        a("v_lshrrev_b32 v27, 2, v26")
        a("v_cmp_le_u32 vcc, 3, v27")
        a("s_nop 1")
        a("v_cndmask_b32 v28, 0, 1, vcc")
        a("v_mul_u32_u24 v29, 3, v28")
        a("v_sub_u32 v29, v27, v29")
        a("s_lshl_b32 s28, s25, 1")
        a("v_add_u32 v28, s28, v28")
        a("v_lshlrev_b32 v28, 6, v28")
        a("v_lshl_add_u32 v28, v29, 11, v28")
        a("v_and_b32 v29, 3, v26")
        a("v_lshl_add_u32 v28, v29, 4, v28")
        a("s_movk_i32 s28, 6144")
        a("v_mul_lo_u32 v29, v25, s28")
        a("v_add_u32 v28, v28, v29")
        a("v_cmp_gt_u32 vcc, 6, v27")
        a("v_mov_b32 v29, 0x7f000000")
        a("s_nop 0")
        a("v_cndmask_b32 v%d, v29, v28, vcc" % (G1_VOB + j))
    srd(a, 36, 32, 0, H * DH * DH * 2)
    a("s_lshl_b32 s28, s25, 1")
    a("s_add_u32 s28, s28, s22")
    a("s_lshl_b32 s28, s28, 11")
    a("v_lshlrev_b32 v25, 8, v4")
    a("v_lshl_add_u32 v25, v3, 1, v25")
    a("v_add_u32 v25, s28, v25")
    for ft in range(2):
        for j in range(8):
            d = (j & 3) + (16 if j >= 4 else 0)
            a("buffer_load_ushort v%d, v25, s[36:39], 0 offen offset:%d" % (224 + ft * 8 + j, d * 64 + ft * 32))
    g = Gemm(a, 4, NT, G1_ACC, G1_FA, G1_FB, G1_VA, G1_VB, G1_VOA, G1_VOB, a_off, b_off,
             lambda nt: nt < 4, 27, 16, 17, 8, 12, 128, 64 * 6144)
    g.run(16, "g1q", 18)
    if "NOEPI" not in FLAGS:
        g1_qkv_epilogue(a)
    a("s_branch g1_fin")

    a.label("g1_w1")
    NT = 7
    for tt in range(NT):
        a("s_mul_i32 s28, s22, %d" % NT)
        a("s_add_u32 s28, s28, %d" % tt)
        a("v_xor_b32 v7, s28, v6")
        a("v_lshl_add_u32 v%d, v7, 5, v5" % G1_VB[tt])
    srd(a, 12, 30, 0, D * F * 2)
    for j in range(4):
        b_dma_rows(a, j)
        a("s_mul_i32 s28, s25, 448")
        a("v_lshlrev_b32 v28, 4, v26")
        a("v_add_u32 v28, s28, v28")
        a("s_movk_i32 s28, 7168")
        a("v_mul_lo_u32 v29, v25, s28")
        a("v_add_u32 v28, v28, v29")
        a("v_cmp_gt_u32 vcc, 28, v26")
        a("v_mov_b32 v29, 0x7f000000")
        a("s_nop 0")
        a("v_cndmask_b32 v%d, v29, v28, vcc" % (G1_VOB + j))
    srd(a, 36, 34, 0, F * 2)
    a("s_mul_i32 s28, s25, 448")
    a("s_mul_i32 s29, s22, 224")
    a("s_add_u32 s28, s28, s29")
    a("v_lshlrev_b32 v25, 3, v4")
    a("v_add_u32 v25, s28, v25")
    for tt in range(NT):
        a("buffer_load_dwordx2 %s, v25, s[36:39], 0 offen offset:%d" % (vr(G1_X + 2 * tt, 2), tt * 32))
    g = Gemm(a, 4, NT, G1_ACC, G1_FA, G1_FB, G1_VA, G1_VB, G1_VOA, G1_VOB, a_off, b_off,
             lambda nt: True, 27, 16, 17, 8, 12, 128, 64 * 7168)
    g.run(16, "g1w", 18)
    if "NOEPI" not in FLAGS:
        g1_w1_epilogue(a)
    a.label("g1_fin")
    if "STAMP" in FLAGS:
        a("s_waitcnt vmcnt(0)")
    stamp(a, 4)
    stamp_rt(a, 5)
    stamp_flush(a, 12, 0)
    a.label("g1_done")
    a("s_endpgm")
    return L, 256


def f32bits(x):
    import struct
    return struct.unpack("<I", struct.pack("<f", x))[0]


def g1_w1_epilogue(a):
    NT = 7
    RS = 240
    srd(a, 40, 4, WS_HC, SZ_HC)
    for tt in range(NT):
        for p in range(2):
            a("v_lshlrev_b32 v%d, 16, v%d" % (32 + tt * 4 + 2 * p, G1_X + 2 * tt + p))
            a("v_and_b32 v%d, 0xffff0000, v%d" % (33 + tt * 4 + 2 * p, G1_X + 2 * tt + p))
    a("s_mul_i32 s28, s20, %d" % (64 * RS))
    a("s_movk_i32 s29, %d" % RS)
    a("v_mul_lo_u32 v6, v3, s29")
    a("v_lshl_add_u32 v6, v4, 3, v6")
    a("v_add_u32 v6, s28, v6")
    a("v_subrev_u32 v7, 56, v1")
    a("v_cmp_gt_u32 vcc, 56, v1")
    a("s_nop 1")
    a("v_cndmask_b32 v7, v7, v1, vcc")
    a("v_mul_u32_u24 v8, 0x4a, v7")
    a("v_lshrrev_b32 v8, 10, v8")
    a("v_mul_u32_u24 v9, 14, v8")
    a("v_sub_u32 v9, v7, v9")
    a("v_mul_lo_u32 v7, v8, s29")
    a("v_lshl_add_u32 v7, v9, 4, v7")
    a("v_add_u32 v7, s28, v7")
    a("s_lshl_b32 s28, s23, 8")
    a("s_lshl_b32 s29, s21, 6")
    a("s_add_u32 s28, s28, s29")
    a("v_add_u32 v5, s28, v8")
    a("s_movk_i32 s28, 9216")
    a("v_mul_lo_u32 v5, v5, s28")
    a("s_mul_i32 s28, s25, 448")
    a("s_mul_i32 s29, s22, 224")
    a("s_add_u32 s28, s28, s29")
    a("v_lshl_add_u32 v9, v9, 4, s28")
    a("v_add_u32 v5, v5, v9")
    k0 = -2.0 * 0.7978845608028654 * 1.4426950408889634
    k1 = k0 * 0.044715
    a("s_mov_b32 s44, 0x%08x" % f32bits(k1))
    a("s_mov_b32 s45, 0x%08x" % f32bits(k1))
    a("s_mov_b32 s46, 1.0")
    a("s_mov_b32 s47, 1.0")
    a("v_mov_b32 v8, 0x%08x" % f32bits(k0))
    a("v_mov_b32 v9, 0x%08x" % f32bits(k0))
    a("s_barrier")

    def flush(mt):
        for j in range(4):
            a("ds_read_b128 %s, v7 offset:%d" % (vr(96 + j * 4, 4), (mt * 16 + j * 4) * RS))
        for j in range(4):
            a("s_waitcnt lgkmcnt(%d)" % (3 - j))
            a("s_mov_b32 s28, 0x%x" % ((mt * 16 + j * 4) * 9216))
            a("buffer_store_dwordx4 %s, v5, s[40:43], s28 offen" % vr(96 + j * 4, 4))

    for mt in range(4):
        for tt in range(NT):
            c = G1_ACC + (mt * NT + tt) * 4
            T = 64 + ((mt * NT + tt) & 1) * 16
            for p in range(2):
                a("v_pk_add_f32 %s, %s, %s" % (vr(T + 2 * p, 2), vr(c + 2 * p, 2), vr(32 + tt * 4 + 2 * p, 2)))
            for p in range(2):
                a("v_pk_mul_f32 %s, %s, %s" % (vr(T + 4 + 2 * p, 2), vr(T + 2 * p, 2), vr(T + 2 * p, 2)))
            for p in range(2):
                a("v_pk_fma_f32 %s, %s, s[44:45], v[8:9]" % (vr(T + 4 + 2 * p, 2), vr(T + 4 + 2 * p, 2)))
            for p in range(2):
                a("v_pk_mul_f32 %s, %s, %s" % (vr(T + 4 + 2 * p, 2), vr(T + 4 + 2 * p, 2), vr(T + 2 * p, 2)))
            for r in range(4):
                a("v_exp_f32 v%d, v%d" % (T + 4 + r, T + 4 + r))
            a("s_nop 0")
            for p in range(2):
                a("v_pk_add_f32 %s, %s, s[46:47]" % (vr(T + 4 + 2 * p, 2), vr(T + 4 + 2 * p, 2)))
            for r in range(4):
                a("v_rcp_f32 v%d, v%d" % (T + 4 + r, T + 4 + r))
            a("s_nop 0")
            for p in range(2):
                a("v_pk_mul_f32 %s, %s, %s" % (vr(T + 4 + 2 * p, 2), vr(T + 4 + 2 * p, 2), vr(T + 2 * p, 2)))
            a("v_cvt_pk_bf16_f32 v%d, v%d, v%d" % (T + 8, T + 4, T + 5))
            a("v_cvt_pk_bf16_f32 v%d, v%d, v%d" % (T + 9, T + 6, T + 7))
            a("ds_write_b64 v6, %s offset:%d" % (vr(T + 8, 2), mt * 16 * RS + tt * 32))
            if tt == 2 and mt > 0:
                flush(mt - 1)
        a("s_waitcnt lgkmcnt(0)")
    flush(3)
    if "NOPF" not in FLAGS:
        a("s_load_dwordx2 s[30:31], s[0:1], %d" % KA_W2)
        a("s_load_dwordx2 s[32:33], s[0:1], %d" % KA_WO)
        a("s_lshl_b32 s28, s23, 4")
        a("s_add_u32 s28, s28, s25")
        a("s_lshl_b32 s28, s28, 3")
        a("s_add_u32 s28, s28, s20")
        a("s_lshl_b32 s28, s28, 12")
        a("v_lshl_add_u32 v8, v1, 6, s28")
        a("s_mov_b32 s29, 0x400000")
        a("s_waitcnt lgkmcnt(0)")
        srd(a, 44, 30, 0, F * D * 2)
        srd(a, 48, 32, 0, D * D * 2)
        a("buffer_load_dword v9, v8, s[44:47], 0 offen")
        a("buffer_load_dword v9, v8, s[44:47], s29 offen")
        a("buffer_load_dword v9, v8, s[48:51], 0 offen")


def bf16_round_pair(a, x0, x1, t):
    a("v_cvt_pk_bf16_f32 v%d, v%d, v%d" % (t, x0, x1))
    a("v_lshlrev_b32 v%d, 16, v%d" % (x0, t))
    a("v_and_b32 v%d, 0xffff0000, v%d" % (x1, t))


def xlane_g(a, op, regs, temps):
    for sw in ("v_permlane16_swap_b32", "v_permlane32_swap_b32"):
        for v, t in zip(regs, temps):
            a("v_mov_b32 v%d, v%d" % (t, v))
        a("s_nop 1")
        for v, t in zip(regs, temps):
            a("%s v%d, v%d" % (sw, v, t))
        a("s_nop 1")
        for (v, t), o in zip(zip(regs, temps), op):
            a("%s v%d, v%d, v%d" % (o, v, v, t))


def dpp16(a, ops, regs):
    for ctl in ("quad_perm:[1,0,3,2]", "quad_perm:[2,3,0,1]", "row_half_mirror", "row_mirror"):
        if len(regs) < 3:
            a("s_nop 1")
        for v, o in zip(regs, ops):
            a("%s_dpp v%d, v%d, v%d %s row_mask:0xf bank_mask:0xf" % (o, v, v, v, ctl))


def g1_softmax_batch(a, acc, WP, tt0):
    E = lambda mt: 32 + mt * 16
    FR = lambda mt: 96 + mt * 4
    MX = lambda mt: 112 + 2 * mt
    MN = lambda mt: 120 + 2 * mt
    P = lambda mt: acc(mt, tt0)
    R = range(4)
    for mt in R:
        for i in range(4):
            a("v_cvt_pk_bf16_f32 v%d, v%d, v%d" % (FR(mt) + i, P(mt) + 2 * i, P(mt) + 2 * i + 1))
    a("s_nop 1")
    for mt in R:
        for ft in range(2):
            a("v_mfma_f32_16x16x32_bf16 %s, %s, %s, 0" % (vr(P(mt) + ft * 4, 4), vr(WP[ft], 4), vr(FR(mt), 4)))
    a("s_nop 7")
    for mt in R:
        for i in range(4):
            a("v_cvt_pk_bf16_f32 v%d, v%d, v%d" % (E(mt) + i, P(mt) + 2 * i, P(mt) + 2 * i + 1))
    for mt in R:
        for i in range(4):
            a("v_lshlrev_b32 v%d, 16, v%d" % (P(mt) + 2 * i, E(mt) + i))
            a("v_and_b32 v%d, 0xffff0000, v%d" % (P(mt) + 2 * i + 1, E(mt) + i))
    for op3, op2, M in (("v_max3_f32", "v_max_f32", MX), ("v_min3_f32", "v_min_f32", MN)):
        for mt in R:
            a("%s v%d, v%d, v%d, v%d" % (op3, M(mt), P(mt), P(mt) + 1, P(mt) + 2))
        for mt in R:
            a("%s v%d, v%d, v%d, v%d" % (op3, M(mt), M(mt), P(mt) + 3, P(mt) + 4))
        for mt in R:
            a("%s v%d, v%d, v%d, v%d" % (op3, M(mt), M(mt), P(mt) + 5, P(mt) + 6))
        for mt in R:
            a("%s v%d, v%d, v%d" % (op2, M(mt), M(mt), P(mt) + 7))

    def xl(opx, opn):
        regs = [(MX(mt), opx) for mt in R] + [(MN(mt), opn) for mt in R]
        for sw in ("v_permlane16_swap_b32", "v_permlane32_swap_b32"):
            for v, o in regs:
                a("v_mov_b32 v%d, v%d" % (v + 1, v))
            a("s_nop 0")
            for v, o in regs:
                a("%s v%d, v%d" % (sw, v, v + 1))
            a("s_nop 0")
            for v, o in regs:
                a("%s v%d, v%d, v%d" % (o, v, v, v + 1))
    xl("v_max_f32", "v_min_f32")
    for mt in R:
        a("v_mul_f32 v%d, s48, v%d" % (MX(mt), MX(mt)))
        a("v_mul_f32 v%d, s48, v%d" % (MN(mt), MN(mt)))
    for mt in R:
        for i in range(4):
            a("v_pk_fma_f32 %s, %s, s[48:49], %s op_sel_hi:[1,1,0] neg_lo:[0,0,1] neg_hi:[0,0,1]" % (
                vr(E(mt) + 2 * i, 2), vr(P(mt) + 2 * i, 2), vr(MX(mt), 2)))
            a("v_pk_fma_f32 %s, %s, s[48:49], %s op_sel_hi:[1,1,0] neg_lo:[1,0,0] neg_hi:[1,0,0]" % (
                vr(E(mt) + 8 + 2 * i, 2), vr(P(mt) + 2 * i, 2), vr(MN(mt), 2)))
    for mt in R:
        for i in range(16):
            a("v_exp_f32 v%d, v%d" % (E(mt) + i, E(mt) + i))
    a("s_nop 0")
    for M, o in ((MX, 0), (MN, 8)):
        for mt in R:
            a("v_pk_add_f32 %s, %s, %s" % (vr(M(mt), 2), vr(E(mt) + o, 2), vr(E(mt) + o + 2, 2)))
        for mt in R:
            a("v_pk_add_f32 %s, %s, %s" % (vr(M(mt), 2), vr(M(mt), 2), vr(E(mt) + o + 4, 2)))
        for mt in R:
            a("v_pk_add_f32 %s, %s, %s" % (vr(M(mt), 2), vr(M(mt), 2), vr(E(mt) + o + 6, 2)))
        for mt in R:
            a("v_add_f32 v%d, v%d, v%d" % (M(mt), M(mt), M(mt) + 1))
    xl("v_add_f32", "v_add_f32")
    for mt in R:
        a("v_rcp_f32 v%d, v%d" % (MX(mt), MX(mt)))
        a("v_rcp_f32 v%d, v%d" % (MN(mt), MN(mt)))
    a("s_nop 0")
    for mt in R:
        for i in range(4):
            a("v_pk_mul_f32 %s, %s, %s op_sel_hi:[1,0]" % (vr(E(mt) + 2 * i, 2), vr(E(mt) + 2 * i, 2), vr(MX(mt), 2)))
            a("v_pk_mul_f32 %s, %s, %s op_sel_hi:[1,0]" % (vr(E(mt) + 8 + 2 * i, 2), vr(E(mt) + 8 + 2 * i, 2), vr(MN(mt), 2)))
    for mt in R:
        for i in range(8):
            a("v_cvt_pk_bf16_f32 v%d, v%d, v%d" % (P(mt) + i, E(mt) + 2 * i, E(mt) + 2 * i + 1))


def g1_qkv_epilogue(a):
    NT = 6
    WP = (G1_X, G1_X + 4)
    KS = 160
    SH = 98304

    def acc(mt, tt):
        return G1_ACC + (mt * NT + tt) * 4

    srd(a, 40, 4, WS_HC, SZ_HC)
    srd(a, 44, 4, WS_KV, SZ_KV)
    srd(a, 52, 4, WS_FL, SZ_FL)
    a("s_mov_b32 s48, 0x%08x" % LOG2E)
    a("s_mov_b32 s49, 0x%08x" % LOG2E)
    a("s_mul_i32 s50, s20, 12288")
    for i in range(8):
        a("v_lshl_or_b32 v%d, v%d, 16, v%d" % (G1_X + i, 224 + 2 * i + 1, 224 + 2 * i))
    a("s_movk_i32 s28, %d" % KS)
    a("v_mul_lo_u32 v5, v3, s28")
    a("v_lshl_add_u32 v5, v4, 3, v5")
    a("v_add_u32 v5, s50, v5")
    a("v_bfe_u32 v6, v1, 2, 2")
    a("v_lshl_add_u32 v6, v4, 2, v6")
    a("v_mul_lo_u32 v6, v6, s28")
    a("v_and_b32 v7, 3, v1")
    a("v_lshl_add_u32 v6, v7, 3, v6")
    a("v_add_u32 v6, s50, v6")
    a("v_lshlrev_b32 v7, 4, v1")
    a("s_barrier")
    g1_softmax_batch(a, acc, WP, 2)
    stamp(a, 7)
    for mt in range(4):
        for q in range(4):
            a("ds_write_b64 v5, %s offset:%d" % (vr(acc(mt, 2) + 2 * q, 2), mt * 16 * KS + q * 32))
    KV, AF, BF, ONE = 64, 32, 112, 16
    for u in range(2):
        for dt in range(2):
            for hf in range(2):
                for p in range(2):
                    c = acc(2 * u + hf, 4 + dt) + 2 * p
                    a("v_cvt_pk_bf16_f32 v%d, v%d, v%d" % (BF + (u * 2 + dt) * 4 + hf * 2 + p, c, c + 1))
    for i in range(4):
        a("v_mov_b32 v%d, 0x3f803f80" % (ONE + i))
    a("s_waitcnt lgkmcnt(0)")
    for u in range(2):
        for fq in range(4):
            for hf in range(2):
                a("ds_read_b64_tr_b16 %s, v6 offset:%d" % (vr(AF + (u * 4 + fq) * 4 + hf * 2, 2), (2 * u + hf) * 16 * KS + fq * 32))
    a("s_waitcnt lgkmcnt(8)")
    for u in range(2):
        if u == 1:
            a("s_waitcnt lgkmcnt(0)")
        for fq in range(4):
            for t in range(3):
                c = KV + (fq * 2 + t) * 4 if t < 2 else KV + (8 + fq) * 4
                b = BF + (u * 2 + t) * 4 if t < 2 else ONE
                a("v_mfma_f32_16x16x32_bf16 %s, %s, %s, %s" % (vr(c, 4), vr(AF + (u * 4 + fq) * 4, 4), vr(b, 4), vr(c, 4) if u else "0"))
    a("v_add_u32 v8, s50, v7")
    a("s_nop 7")
    for t in range(12):
        a("ds_write_b128 v8, %s offset:%d" % (vr(KV + t * 4, 4), t * 1024))
    a("s_lshr_b32 s28, s20, 2")
    a("s_mul_i32 s28, s28, 12288")
    a("s_and_b32 s29, s20, 3")
    a("s_mul_i32 s29, s29, 3072")
    a("s_add_u32 s28, s28, s29")
    a("v_add_u32 v8, s28, v7")
    a("v_add_u32 v9, 0xc000, v8")
    a("s_lshl_b32 s28, s25, 3")
    a("s_add_u32 s28, s28, s23")
    a("s_mul_i32 s28, s28, 24")
    a("s_mul_i32 s29, s20, 3")
    a("s_add_u32 s28, s28, s29")
    a("s_lshl_b32 s28, s28, 10")
    a("v_add_u32 v10, s28, v7")
    a("s_lshl_b32 s28, s25, 8")
    a("s_add_u32 s28, s28, 32768")
    a("v_mov_b32 v11, s28")
    a("s_waitcnt lgkmcnt(0)")
    a("s_barrier")
    for wm in range(4):
        for i in range(3):
            a("ds_read_b128 %s, %s offset:%d" % (vr(32 + (wm * 3 + i) * 4, 4), "v9" if wm >= 2 else "v8", (wm & 1) * 24576 + i * 1024))
    a("s_waitcnt lgkmcnt(0)")
    for wm in range(1, 4):
        for i in range(6):
            a("v_pk_add_f32 %s, %s, %s" % (vr(32 + 2 * i, 2), vr(32 + 2 * i, 2), vr(32 + wm * 12 + 2 * i, 2)))
    for i in range(3):
        a("buffer_store_dwordx4 %s, v10, s[44:47], 0 offen offset:%d sc1" % (vr(32 + i * 4, 4), i * 1024))
    a("s_waitcnt vmcnt(0)")
    a("s_barrier")
    a("s_cmp_lg_u32 s20, 0")
    a("s_cbranch_scc1 g1q_sig")
    a("v_mov_b32 v12, 1")
    a("s_mov_b64 exec, 1")
    a("buffer_atomic_add v12, v11, s[52:55], 0 offen sc1")
    a("s_mov_b64 exec, -1")
    a.label("g1q_sig")
    stamp(a, 8)
    g1_softmax_batch(a, acc, WP, 0)
    stamp(a, 9)
    a("s_mov_b32 s29, 0")
    a.label("g1q_spin")
    a("buffer_load_dword v12, v11, s[52:55], 0 offen sc1")
    a("s_waitcnt vmcnt(0)")
    a("v_readfirstlane_b32 s28, v12")
    a("s_add_u32 s29, s29, 1")
    a("s_cmp_ge_u32 s28, 8")
    a("s_cbranch_scc1 g1q_go")
    a("s_sleep 2")
    a("s_cmp_lt_u32 s29, 0x100000")
    a("s_cbranch_scc1 g1q_spin")
    a.label("g1q_go")
    stamp(a, 10)
    a("s_mul_i32 s28, s25, %d" % (8 * 24))
    a("s_mul_i32 s29, s20, 3")
    a("s_add_u32 s28, s28, s29")
    a("s_lshl_b32 s28, s28, 10")
    a("v_add_u32 v10, s28, v7")
    for rb in range(8):
        a("s_mov_b32 s28, 0x%x" % (rb * 24576))
        for i in range(3):
            a("buffer_load_dwordx4 %s, v10, s[44:47], s28 offen offset:%d sc1" % (vr(32 + (rb * 3 + i) * 4, 4), i * 1024))
    a("s_mul_i32 s28, s20, 1536")
    a("s_add_u32 s28, s28, %d" % SH)
    a("v_lshl_add_u32 v8, v1, 3, s28")
    a("s_mul_i32 s28, s22, 6144")
    a("s_add_u32 s28, s28, %d" % SH)
    a("v_lshl_add_u32 v9, v1, 3, s28")
    for rb in range(1, 8):
        a("s_waitcnt vmcnt(%d)" % ((7 - rb) * 3))
        for i in range(6):
            a("v_pk_add_f32 %s, %s, %s" % (vr(32 + 2 * i, 2), vr(32 + 2 * i, 2), vr(32 + rb * 12 + 2 * i, 2)))
    for i in range(6):
        a("v_cvt_pk_bf16_f32 v%d, v%d, v%d" % (16 + i, 32 + 2 * i, 33 + 2 * i))
    for i in range(3):
        a("ds_write_b64 v8, %s offset:%d" % (vr(16 + 2 * i, 2), i * 512))
    a("s_waitcnt lgkmcnt(0)")
    a("s_barrier")
    stamp(a, 11)
    for t in range(3):
        for kk in range(2):
            for hf in range(2):
                fq = 2 * kk + hf
                tile = fq * 2 + t if t < 2 else 8 + fq
                a("ds_read_b64 %s, v9 offset:%d" % (vr(32 + (t * 2 + kk) * 4 + hf * 2, 2), tile * 512))
    a("s_movk_i32 s28, 80")
    a("v_mul_lo_u32 v5, v3, s28")
    a("v_lshl_add_u32 v5, v4, 3, v5")
    a("v_add_u32 v5, s50, v5")
    a("v_lshrrev_b32 v12, 2, v1")
    a("v_mul_lo_u32 v6, v12, s28")
    a("v_and_b32 v13, 3, v1")
    a("v_lshl_add_u32 v6, v13, 4, v6")
    a("v_add_u32 v6, s50, v6")
    a("s_lshl_b32 s28, s23, 8")
    a("s_lshl_b32 s29, s21, 6")
    a("s_add_u32 s28, s28, s29")
    a("v_add_u32 v12, s28, v12")
    a("s_movk_i32 s28, 9216")
    a("v_mul_lo_u32 v12, v12, s28")
    a("s_lshl_b32 s28, s25, 1")
    a("s_add_u32 s28, s28, s22")
    a("s_lshl_b32 s28, s28, 6")
    a("s_add_u32 s28, s28, 7168")
    a("v_lshl_add_u32 v13, v13, 4, s28")
    a("v_add_u32 v12, v12, v13")
    a("s_waitcnt lgkmcnt(0)")
    for kk in range(2):
        for mt in range(4):
            for t in range(3):
                c = 64 + (mt * 3 + t) * 4
                a("v_mfma_f32_16x16x32_bf16 %s, %s, %s, %s" % (vr(c, 4), vr(32 + (t * 2 + kk) * 4, 4), vr(acc(mt, 0) + kk * 4, 4), vr(c, 4) if kk else "0"))
    a("s_nop 7")
    R = range(4)
    for mt in R:
        a("v_cvt_pk_bf16_f32 v%d, v%d, v%d" % (112 + 2 * mt, 72 + mt * 12, 72 + mt * 12))
    for mt in R:
        a("v_lshlrev_b32 v%d, 16, v%d" % (112 + 2 * mt, 112 + 2 * mt))
    for mt in R:
        a("v_add_f32 v%d, 0x358637bd, v%d" % (112 + 2 * mt, 112 + 2 * mt))
    for mt in R:
        a("v_cvt_pk_bf16_f32 v%d, v%d, v%d" % (112 + 2 * mt, 112 + 2 * mt, 112 + 2 * mt))
    for mt in R:
        a("v_lshlrev_b32 v%d, 16, v%d" % (112 + 2 * mt, 112 + 2 * mt))
    for mt in R:
        a("v_rcp_f32 v%d, v%d" % (112 + 2 * mt, 112 + 2 * mt))
    for mt in R:
        for i in range(4):
            a("v_cvt_pk_bf16_f32 v%d, v%d, v%d" % (16 + i, 64 + mt * 12 + 2 * i, 65 + mt * 12 + 2 * i))
        for i in range(4):
            a("v_lshlrev_b32 v%d, 16, v%d" % (64 + mt * 12 + 2 * i, 16 + i))
            a("v_and_b32 v%d, 0xffff0000, v%d" % (65 + mt * 12 + 2 * i, 16 + i))
        for i in range(4):
            a("v_pk_mul_f32 %s, %s, %s op_sel_hi:[1,0]" % (vr(64 + mt * 12 + 2 * i, 2), vr(64 + mt * 12 + 2 * i, 2), vr(112 + 2 * mt, 2)))
        for i in range(4):
            a("v_cvt_pk_bf16_f32 v%d, v%d, v%d" % (20 + (mt & 1) * 4 + i, 64 + mt * 12 + 2 * i, 65 + mt * 12 + 2 * i))
        for dt in range(2):
            a("ds_write_b64 v5, %s offset:%d" % (vr(20 + (mt & 1) * 4 + 2 * dt, 2), mt * 16 * 80 + dt * 32))
    a("s_waitcnt lgkmcnt(0)")
    for j in range(4):
        a("ds_read_b128 %s, v6 offset:%d" % (vr(32 + j * 4, 4), j * 16 * 80))
    for j in range(4):
        a("s_waitcnt lgkmcnt(%d)" % (3 - j))
        a("s_mov_b32 s28, 0x%x" % (j * 16 * 9216))
        a("buffer_store_dwordx4 %s, v12, s[40:43], s28 offen" % vr(32 + j * 4, 4))


def gen_apply(a):
    L = "apply_kernel"
    kernel_head(a, L)
    a("s_cmp_ge_u32 s2, 256")
    a("s_cbranch_scc1 ap_done")
    a("s_load_dwordx2 s[4:5], s[0:1], %d" % KA_WS)
    a("v_and_b32 v1, 63, v0")
    a("v_lshrrev_b32 v2, 6, v0")
    a("v_and_b32 v3, 15, v1")
    a("v_lshrrev_b32 v4, 4, v1")
    a("s_and_b32 s20, s2, 31")
    a("s_lshr_b32 s21, s2, 5")
    a("s_waitcnt lgkmcnt(0)")
    srd(a, 8, 4, WS_KV, SZ_KV)
    srd(a, 12, 4, WS_PQ, SZ_PQ)
    srd(a, 16, 4, WS_HC, SZ_HC)
    a("s_lshl_b32 s22, s20, 11")
    a("s_lshl_b32 s23, s21, 8")
    a("s_add_u32 s22, s22, s23")
    a("v_lshl_add_u32 v5, v2, 6, v3")
    a("v_add_u32 v5, s22, v5")
    a("v_lshlrev_b32 v5, 7, v5")
    a("v_lshl_add_u32 v5, v4, 4, v5")
    for st in range(4):
        for kk in range(2):
            if st < 2:
                a("buffer_load_dwordx4 %s, v5, s[12:15], 0 offen offset:%d" % (vr(64 + (st * 2 + kk) * 4, 4), st * 2048 + kk * 64))
            else:
                a("s_movk_i32 s24, 4096")
                a("buffer_load_dwordx4 %s, v5, s[12:15], s24 offen offset:%d" % (vr(64 + (st * 2 + kk) * 4, 4), (st - 2) * 2048 + kk * 64))
    a("s_lshl_b32 s22, s20, 14")
    a("v_lshlrev_b32 v6, 5, v0")
    a("v_add_u32 v6, s22, v6")
    for rb in range(8):
        a("s_mov_b32 s24, 0x%x" % (rb << 19))
        a("buffer_load_dwordx4 %s, v6, s[8:11], s24 offen" % vr(96 + rb * 8, 4))
        a("buffer_load_dwordx4 %s, v6, s[8:11], s24 offen offset:16" % vr(100 + rb * 8, 4))
    a("v_and_b32 v7, 7, v0")
    a("v_lshlrev_b32 v7, 5, v7")
    a("v_add_u32 v7, s22, v7")
    for rb in range(8):
        a("s_mov_b32 s24, 0x%x" % ((rb << 19) + 8192))
        a("buffer_load_dwordx4 %s, v7, s[8:11], s24 offen" % vr(160 + rb * 8, 4))
        a("buffer_load_dwordx4 %s, v7, s[8:11], s24 offen offset:16" % vr(164 + rb * 8, 4))
    a("s_waitcnt vmcnt(0)")
    for base in (96, 160):
        for rb in range(1, 8):
            for i in range(8):
                a("v_add_f32 v%d, v%d, v%d" % (base + i, base + i, base + rb * 8 + i))
    for i in range(4):
        a("v_cvt_pk_bf16_f32 v%d, v%d, v%d" % (8 + i, 96 + 2 * i, 97 + 2 * i))
        a("v_cvt_pk_bf16_f32 v%d, v%d, v%d" % (12 + i, 160 + 2 * i, 161 + 2 * i))
    a("v_lshlrev_b32 v6, 4, v0")
    a("ds_write_b128 v6, v[8:11]")
    a("v_and_b32 v7, 7, v0")
    a("v_lshlrev_b32 v7, 4, v7")
    a("ds_write_b128 v7, v[12:15] offset:4096")
    a("s_waitcnt lgkmcnt(0)")
    a("s_barrier")
    a("v_lshlrev_b32 v6, 7, v3")
    a("v_lshl_add_u32 v6, v4, 4, v6")
    a("v_lshlrev_b32 v7, 4, v4")
    for dt in range(2):
        for kk in range(2):
            a("ds_read_b128 %s, v6 offset:%d" % (vr(8 + (dt * 2 + kk) * 4, 4), dt * 2048 + kk * 64))
    for kk in range(2):
        a("ds_read_b128 %s, v7 offset:%d" % (vr(24 + kk * 4, 4), 4096 + kk * 64))
    a("s_lshl_b32 s23, s21, 8")
    a("v_lshl_add_u32 v5, v2, 6, v3")
    a("v_add_u32 v5, s23, v5")
    a("s_movk_i32 s24, 9216")
    a("v_mul_lo_u32 v5, v5, s24")
    a("s_lshl_b32 s23, s20, 6")
    a("s_add_u32 s23, s23, 7168")
    a("v_lshl_add_u32 v6, v4, 3, s23")
    a("v_add_u32 v5, v5, v6")
    a("s_waitcnt lgkmcnt(0)")
    for st in range(4):
        C = 96 + st * 12
        for t in range(3):
            a("v_mfma_f32_16x16x32_bf16 %s, %s, %s, 0" % (vr(C + t * 4, 4), vr(8 + t * 8, 4), vr(64 + st * 8, 4)))
        for t in range(3):
            a("v_mfma_f32_16x16x32_bf16 %s, %s, %s, %s" % (vr(C + t * 4, 4), vr(12 + t * 8, 4), vr(68 + st * 8, 4), vr(C + t * 4, 4)))
    a("s_nop 7")
    a("s_nop 7")
    for st in range(4):
        C = 96 + st * 12
        a("v_cvt_pk_bf16_f32 v32, v%d, v%d" % (C + 8, C + 8))
        a("v_lshlrev_b32 v32, 16, v32")
        a("v_add_f32 v32, 0x358637bd, v32")
        a("v_cvt_pk_bf16_f32 v32, v32, v32")
        a("v_lshlrev_b32 v32, 16, v32")
        a("v_rcp_f32 v32, v32")
        for i in range(4):
            bf16_round_pair(a, C + 2 * i, C + 2 * i + 1, 33)
        for i in range(8):
            a("v_mul_f32 v%d, v%d, v32" % (C + i, C + i))
        for i in range(4):
            a("v_cvt_pk_bf16_f32 v%d, v%d, v%d" % (40 + st * 4 + i, C + 2 * i, C + 2 * i + 1))
        a("buffer_store_dwordx2 %s, v5, s[16:19], 0 offen" % vr(40 + st * 4, 2))
        a("buffer_store_dwordx2 %s, v5, s[16:19], 0 offen offset:32" % vr(42 + st * 4, 2))
        if st < 3:
            a("v_add_u32 v5, %d, v5" % (16 * 9216))
    a.label("ap_done")
    a("s_endpgm")
    return L, 224


G2_ACC = 128
G2_FA = (32, 64)
G2_FB = (48, 80)
G2_VA = 16
G2_VB = (18, 19, 20, 21)
G2_N0 = 28
G2_DMAPOS = (1, 5, 9, 13)


def g2_mfmas(st):
    out = []
    for mt in range(4):
        for nt in range(4):
            c = G2_ACC + (mt * 4 + nt) * 4
            out.append("v_mfma_f32_16x16x32_bf16 %s, %s, %s, %s" % (
                vr(c, 4), vr(G2_FB[st] + nt * 4, 4), vr(G2_FA[st] + mt * 4, 4), vr(c, 4)))
    return out


def g2_reads(st, buf):
    out = []
    for mt in range(4):
        out.append(["ds_read_b128 %s, %s offset:%d" % (vr(G2_FA[st] + mt * 4, 4), vr(G2_VA), buf * 16384 + mt * 2048)])
    for nt in range(4):
        for rd in range(2):
            out.append(["ds_read_b64_tr_b16 %s, %s offset:%d" % (vr(G2_FB[st] + nt * 4 + rd * 2, 2), vr(G2_VB[nt]), buf * 16384 + rd * 1024)])
    return out


def g2_dmas(buf):
    out = [["s_cmp_eq_u32 s19, 0",
            "s_cselect_b32 s12, s30, s12",
            "s_cselect_b32 s13, s31, s13",
            "s_cselect_b32 s14, 0x%x, s14" % (D * D * 2),
            "s_cselect_b32 s17, 0, s17",
            "s_sub_u32 s19, s19, 1"]]
    for j in range(2):
        out.append(["s_add_u32 m0, s27, %d" % (buf * 16384 + j * 1024),
                    "s_nop 0",
                    "buffer_load_dwordx4 v%d, s[8:11], s16 offen lds" % (8 + j)])
    for j in range(2):
        out.append(["s_add_u32 m0, s27, %d" % (65536 + buf * 16384 + j * 1024),
                    "s_nop 0",
                    "buffer_load_dwordx4 v%d, s[12:15], s17 offen lds" % (12 + j)])
    out.append(["s_add_u32 s16, s16, 128", "s_add_u32 s17, s17, %d" % (64 * 2048)])
    return out


def g2_iter(a, i, dma, nxt, vm):
    slots = {}
    if dma and "NODMA" not in FLAGS:
        d = g2_dmas(i % 4)
        slots.setdefault(0, []).append(d[0])
        for j in range(4):
            slots.setdefault(G2_DMAPOS[j], []).append(d[1 + j])
        slots.setdefault(G2_DMAPOS[3], []).append(d[5])
    if nxt:
        r = g2_reads((i + 1) & 1, (i + 1) % 4)
        pos = [p for p in range(16) if p not in G2_DMAPOS][:12]
        for p, x in zip(pos, r):
            slots.setdefault(p, []).append(x)
    place(a, g2_mfmas(i & 1), slots)
    if nxt:
        if vm is None:
            a("s_waitcnt lgkmcnt(0)")
        else:
            a("s_waitcnt vmcnt(%d) lgkmcnt(0)" % vm)
        a("s_barrier")


def gen_gemm2(a):
    L = "gemm2_kernel"
    kernel_head(a, L)
    a("s_cmp_ge_u32 s2, 256")
    a("s_cbranch_scc1 g2_done")
    stamp(a, 0)
    stamp_rt(a, 6)
    a("s_load_dwordx2 s[4:5], s[0:1], %d" % KA_WS)
    a("s_load_dwordx2 s[6:7], s[0:1], %d" % KA_W2)
    a("s_load_dwordx2 s[30:31], s[0:1], %d" % KA_WO)
    a("s_load_dwordx2 s[32:33], s[0:1], %d" % KA_X)
    a("s_load_dwordx2 s[34:35], s[0:1], %d" % KA_B2)
    a("s_load_dwordx2 s[36:37], s[0:1], %d" % KA_OUT)
    g1_common_addr(a)
    a("s_and_b32 s21, s2, 7")
    a("s_lshr_b32 s23, s2, 7")
    a("s_bfe_u32 s24, s2, 0x20003")
    a("s_and_b32 s25, s21, 3")
    a("s_lshl_b32 s25, s25, 2")
    a("s_add_u32 s24, s24, s25")
    a("s_bfe_u32 s25, s2, 0x20005")
    a("s_lshr_b32 s26, s21, 2")
    a("s_lshl_b32 s26, s26, 2")
    a("s_add_u32 s25, s25, s26")
    if "SAMETILE" in FLAGS:
        a("s_mov_b32 s24, 0")
        a("s_mov_b32 s25, 0")
        a("s_mov_b32 s23, 0")
    a("s_lshr_b32 s21, s20, 2")
    a("s_bfe_u32 s22, s20, 0x10001")
    a("s_and_b32 s26, s20, 1")
    a("s_lshl_b32 s27, s20, 11")
    a("v_lshrrev_b32 v5, 3, v1")
    a("s_lshl_b32 s28, s24, 7")
    a("s_lshl_b32 s29, s20, 4")
    a("s_add_u32 s28, s28, s29")
    a("v_add_u32 v5, s28, v5")
    a("s_movk_i32 s28, 9216")
    a("v_mul_lo_u32 v5, v5, s28")
    a("v_and_b32 v6, 7, v1")
    for j in range(2):
        a("v_add_u32 v7, %d, v4" % (4 * j))
        a("v_and_b32 v7, 7, v7")
        a("v_xor_b32 v7, v7, v6")
        a("v_lshl_add_u32 v7, v7, 4, v5")
        a("v_add_u32 v%d, %d, v7" % (8 + j, j * 8 * 9216))
    a("s_lshl_b32 s28, s20, 3")
    a("v_add_u32 v5, s28, v4")
    a("v_lshlrev_b32 v5, 11, v5")
    a("s_lshl_b32 s28, s25, 8")
    a("v_add_u32 v5, s28, v5")
    a("s_lshl_b32 s28, s26, 2")
    a("v_or_b32 v7, s28, v4")
    a("v_lshlrev_b32 v7, 1, v7")
    a("v_xor_b32 v7, v7, v3")
    a("v_lshl_add_u32 v12, v7, 4, v5")
    a("v_add_u32 v13, %d, v12" % (4 * 2048))
    a("s_lshl_b32 s28, s21, 2")
    a("v_add_u32 v5, s28, v4")
    a("v_lshrrev_b32 v6, 1, v3")
    a("v_xor_b32 v5, v5, v6")
    a("s_lshl_b32 s28, s22, 6")
    a("v_add_u32 v6, s28, v3")
    a("v_lshlrev_b32 v6, 7, v6")
    a("v_lshl_add_u32 v%d, v5, 4, v6" % G2_VA)
    a("v_bfe_u32 v5, v1, 2, 2")
    a("v_and_b32 v6, 1, v4")
    a("v_lshl_or_b32 v6, v6, 2, v5")
    a("v_lshl_add_u32 v5, v4, 3, v5")
    a("s_lshl_b32 s28, s21, 5")
    a("v_add_u32 v5, s28, v5")
    a("v_lshlrev_b32 v5, 8, v5")
    a("v_and_b32 v7, 3, v1")
    a("v_lshl_add_u32 v5, v7, 3, v5")
    a("v_add_u32 v5, 0x10000, v5")
    for nt in range(4):
        a("s_lshl_b32 s28, s26, 2")
        a("s_add_u32 s28, s28, %d" % nt)
        a("v_xor_b32 v7, s28, v6")
        a("v_lshl_add_u32 v%d, v7, 5, v5" % G2_VB[nt])
    a("s_waitcnt lgkmcnt(0)")
    srd(a, 8, 4, WS_HC, SZ_HC)
    srd(a, 12, 6, 0, F * D * 2)
    a("s_and_b32 s31, s31, 0xffff")
    a("s_mul_i32 s16, s23, %d" % (G2_N0 * 64 * 2))
    a("s_mul_i32 s17, s23, %d" % (G2_N0 * 64 * 2048))
    a("s_mov_b32 s19, 1000")
    a("s_mov_b32 s18, %d" % ((G2_N0 - 4) // 4))
    a("s_cmp_eq_u32 s23, 1")
    a("s_cselect_b32 s19, %d, s19" % (56 - G2_N0))
    a("s_cselect_b32 s18, %d, s18" % ((72 - G2_N0 - 4) // 4))
    srd(a, 44, 4, WS_FL, SZ_FL)
    srd(a, 40, 4, WS_P, SZ_P)
    a("s_lshl_b32 s28, s24, 3")
    a("s_add_u32 s28, s28, s25")
    a("s_lshl_b32 s38, s28, 8")
    a("s_lshl_b32 s39, s28, 16")
    a("s_lshl_b32 s28, s20, 13")
    a("s_add_u32 s39, s39, s28")
    a("v_mov_b32 v22, s38")
    a("v_lshlrev_b32 v24, 4, v1")
    a("v_add_u32 v24, s39, v24")
    a("s_movk_i32 s39, 4096")
    srd(a, 48, 32, 0, S * D * 2)
    srd(a, 52, 34, 0, D * 2)
    srd(a, 56, 36, 0, S * D * 2)
    a("s_lshl_b32 s28, s24, 7")
    a("s_lshl_b32 s29, s20, 4")
    a("s_add_u32 s28, s28, s29")
    a("v_add_u32 v25, s28, v4")
    a("v_lshlrev_b32 v25, 11, v25")
    a("s_lshl_b32 s28, s25, 8")
    a("v_lshl_add_u32 v26, v3, 4, s28")
    a("v_add_u32 v25, v25, v26")
    for st in range(4):
        for f in g2_dmas(st):
            for x in f:
                a(x)
    for i in range(64):
        a("v_mov_b32 v%d, 0" % (G2_ACC + i))
    stamp(a, 1)
    a("s_waitcnt vmcnt(12)")
    a("s_barrier")
    stamp(a, 2)
    for f in g2_reads(0, 0):
        for x in f:
            a(x)
    a("s_waitcnt vmcnt(8) lgkmcnt(0)")
    a("s_barrier")
    a.label("g2_loop")
    for i in range(4):
        g2_iter(a, i, True, True, 8)
    a("s_sub_u32 s18, s18, 1")
    a("s_cmp_lg_u32 s18, 0")
    a("s_cbranch_scc1 g2_loop")
    stamp(a, 8)
    a("buffer_load_dword v23, v22, s[44:47], 0 offen sc1")
    g2_iter(a, 0, False, True, 5)
    a("s_cmp_eq_u32 s23, 0")
    a("s_cbranch_scc1 g2_pubtail")
    for j in range(4):
        a("s_mov_b32 s38, 0x%x" % (j * 4 * 2048))
        a("buffer_load_dwordx4 %s, v25, s[48:51], s38 offen" % vr(224 + j * 4, 4))
    a("buffer_load_dwordx4 v[240:243], v26, s[52:55], 0 offen")
    g2_iter(a, 1, False, True, 5)
    stamp(a, 7)
    a("s_mov_b32 s29, 0")
    a("s_branch g2_chk")
    a.label("g2_spin")
    a("buffer_load_dword v23, v22, s[44:47], 0 offen sc1")
    a("s_waitcnt vmcnt(0)")
    a.label("g2_chk")
    a("v_readfirstlane_b32 s28, v23")
    a("s_add_u32 s29, s29, 1")
    a("s_cmp_ge_u32 s28, 1")
    a("s_cbranch_scc1 g2_go")
    a("s_sleep 2")
    a("s_cmp_lt_u32 s29, 0x100000")
    a("s_cbranch_scc1 g2_spin")
    a.label("g2_go")
    stamp(a, 9)
    for t in range(8):
        a("buffer_load_dwordx4 %s, v24, s[40:43], %s offen offset:%d sc1" % (vr(192 + t * 4, 4), "s39" if t >= 4 else "0", (t % 4) * 1024))
    a("s_branch g2_tail")
    a.label("g2_pubtail")
    g2_iter(a, 1, False, True, 0)
    a.label("g2_tail")
    g2_iter(a, 2, False, True, None)
    g2_iter(a, 3, False, False, None)
    stamp(a, 3)
    a("s_nop 7")
    a("s_barrier")
    a("s_mul_i32 s28, s21, %d" % (128 * 528))
    a("s_mul_i32 s29, s22, %d" % (64 * 528))
    a("s_add_u32 s28, s28, s29")
    a("s_lshl_b32 s29, s26, 8")
    a("s_add_u32 s28, s28, s29")
    a("s_movk_i32 s29, 528")
    a("v_mul_lo_u32 v6, v3, s29")
    a("v_lshl_add_u32 v6, v4, 4, v6")
    a("v_add_u32 v6, s28, v6")
    for mt in range(4):
        for nt in range(4):
            a("ds_write_b128 v6, %s offset:%d" % (vr(G2_ACC + (mt * 4 + nt) * 4, 4), mt * 16 * 528 + nt * 64))
    a("s_lshl_b32 s28, s20, 4")
    a("v_add_u32 v7, s28, v4")
    a("v_mul_lo_u32 v7, v7, s29")
    a("v_lshl_add_u32 v7, v3, 5, v7")
    a("v_add_u32 v6, %d, v7" % (128 * 528))
    a("s_waitcnt lgkmcnt(0)")
    a("s_barrier")
    for j in range(4):
        for hf in range(2):
            a("ds_read_b128 %s, v7 offset:%d" % (vr(128 + j * 8 + hf * 4, 4), j * 4 * 528 + hf * 16))
            a("ds_read_b128 %s, v6 offset:%d" % (vr(32 + j * 8 + hf * 4, 4), j * 4 * 528 + hf * 16))
    a("s_waitcnt lgkmcnt(0)")
    for i in range(32):
        a("v_add_f32 v%d, v%d, v%d" % (128 + i, 128 + i, 32 + i))
    a("s_cmp_lg_u32 s23, 0")
    a("s_cbranch_scc1 g2_second")
    for t in range(8):
        a("buffer_store_dwordx4 %s, v24, s[40:43], %s offen offset:%d sc1" % (vr(128 + t * 4, 4), "s39" if t >= 4 else "0", (t % 4) * 1024))
    a("s_waitcnt vmcnt(0)")
    stamp(a, 8)
    a("s_barrier")
    a("s_cmp_lg_u32 s20, 0")
    a("s_cbranch_scc1 g2_fin")
    a("v_mov_b32 v23, 1")
    a("s_mov_b64 exec, 1")
    a("buffer_atomic_add v23, v22, s[44:47], 0 offen sc1")
    a("s_mov_b64 exec, -1")
    a("s_branch g2_fin")
    a.label("g2_second")
    a("s_waitcnt vmcnt(0)")
    for p in range(4):
        a("v_lshlrev_b32 v%d, 16, v%d" % (32 + 2 * p, 240 + p))
        a("v_and_b32 v%d, 0xffff0000, v%d" % (33 + 2 * p, 240 + p))
    for j in range(4):
        for p in range(4):
            c = 128 + j * 8 + 2 * p
            a("v_lshlrev_b32 v12, 16, v%d" % (224 + j * 4 + p))
            a("v_and_b32 v13, 0xffff0000, v%d" % (224 + j * 4 + p))
            a("v_add_f32 v12, v12, v%d" % (32 + 2 * p))
            a("v_add_f32 v13, v13, v%d" % (33 + 2 * p))
            a("v_add_f32 v%d, v%d, v%d" % (c, c, 192 + j * 8 + 2 * p))
            a("v_add_f32 v%d, v%d, v%d" % (c + 1, c + 1, 193 + j * 8 + 2 * p))
            a("v_add_f32 v%d, v%d, v12" % (c, c))
            a("v_add_f32 v%d, v%d, v13" % (c + 1, c + 1))
            a("v_cvt_pk_bf16_f32 v%d, v%d, v%d" % (64 + j * 4 + p, c, c + 1))
        a("s_mov_b32 s38, 0x%x" % (j * 4 * 2048))
        a("buffer_store_dwordx4 %s, v25, s[56:59], s38 offen" % vr(64 + j * 4, 4))
    a.label("g2_fin")
    if "STAMP" in FLAGS:
        a("s_waitcnt vmcnt(0)")
    stamp(a, 4)
    stamp_rt(a, 5)
    stamp_flush(a, 10, 1)
    a.label("g2_done")
    a("s_endpgm")
    return L, 248


def gen_combine(a):
    L = "combine_kernel"
    kernel_head(a, L)
    a("s_cmp_ge_u32 s2, 1024")
    a("s_cbranch_scc1 cb_done")
    a("s_load_dwordx2 s[4:5], s[0:1], %d" % KA_WS)
    a("s_load_dwordx2 s[6:7], s[0:1], %d" % KA_X)
    a("s_load_dwordx2 s[20:21], s[0:1], %d" % KA_B2)
    a("s_load_dwordx2 s[22:23], s[0:1], %d" % KA_OUT)
    a("s_lshl_b32 s3, s2, 8")
    a("v_add_u32 v1, s3, v0")
    a("v_lshlrev_b32 v2, 5, v1")
    a("v_lshlrev_b32 v3, 4, v1")
    a("v_and_b32 v4, 127, v1")
    a("v_lshlrev_b32 v4, 4, v4")
    a("s_waitcnt lgkmcnt(0)")
    srd(a, 8, 4, WS_P, SZ_P)
    srd(a, 12, 6, 0, S * D * 2)
    srd(a, 16, 20, 0, D * 2)
    srd(a, 24, 22, 0, S * D * 2)
    a("s_mov_b32 s28, 0x800000")
    a("buffer_load_dwordx4 v[8:11], v2, s[8:11], 0 offen")
    a("buffer_load_dwordx4 v[12:15], v2, s[8:11], 0 offen offset:16")
    a("buffer_load_dwordx4 v[16:19], v2, s[8:11], s28 offen")
    a("buffer_load_dwordx4 v[20:23], v2, s[8:11], s28 offen offset:16")
    a("buffer_load_dwordx4 v[24:27], v3, s[12:15], 0 offen")
    a("buffer_load_dwordx4 v[28:31], v4, s[16:19], 0 offen")
    a("s_waitcnt vmcnt(0)")
    for i in range(8):
        a("v_add_f32 v%d, v%d, v%d" % (8 + i, 8 + i, 16 + i))
    for i in range(4):
        a("v_lshlrev_b32 v32, 16, v%d" % (24 + i))
        a("v_and_b32 v33, 0xffff0000, v%d" % (24 + i))
        a("v_lshlrev_b32 v34, 16, v%d" % (28 + i))
        a("v_and_b32 v35, 0xffff0000, v%d" % (28 + i))
        a("v_add_f32 v32, v32, v34")
        a("v_add_f32 v33, v33, v35")
        a("v_add_f32 v%d, v%d, v32" % (8 + 2 * i, 8 + 2 * i))
        a("v_add_f32 v%d, v%d, v33" % (9 + 2 * i, 9 + 2 * i))
        a("v_cvt_pk_bf16_f32 v%d, v%d, v%d" % (36 + i, 8 + 2 * i, 9 + 2 * i))
    a("buffer_store_dwordx4 v[36:39], v3, s[24:27], 0 offen")
    a.label("cb_done")
    a("s_endpgm")
    return L, 40


def main():
    a = Asm()
    hdr = open("cdna_kernels/%s.s.ref" % NAME).read().split("\n")
    head = [l for l in hdr if l.startswith(";") and "@launch" not in l and "Override launch" not in l and "grid=ceil" not in l]
    launches = [
        "; @launch kernel=ln_kernel grid=(512,1,1) block=(256,1,1) lds=0",
        "; @launch kernel=gemm1_kernel grid=(256,1,1) block=(512,1,1) lds=131072",
        "; @launch kernel=gemm2_kernel grid=(256,1,1) block=(512,1,1) lds=135168",
    ]
    a.raw("\n".join(head + launches))
    a.raw('.amdgcn_target "amdgcn-amd-amdhsa--gfx950"')
    a.raw(".text")
    descs = []
    for g in (gen_ln, gen_gemm1, gen_gemm2):
        label, v = g(a)
        descs.append(kernel_desc(label, v))
    a.raw('.section .rodata,"a"')
    for d in descs:
        a.raw(".p2align 6")
        a.raw(d)
    open(OUT, "w").write(a.text())
    print("wrote", OUT, len(a.lines), "lines")


if __name__ == "__main__":
    main()
```

```python
import sys
import re
import os
FLAGS = set(os.environ.get("FLAGS", "").split(","))

NAME = "parallel_sum__linear_kernel_hedgehog__dense_activation_gelu__prompt"
OUT = os.environ.get("OUT", "cdna_kernels/%s.s" % NAME)

S, D, H, DH, F = 2048, 1024, 32, 32, 3584
KCAT = F + D
KA_X, KA_WQKV, KA_WPHI, KA_WO, KA_BX, KA_W1, KA_B1, KA_W2, KA_B2, KA_OUT, KA_DBG, KA_WS = [8 * i for i in range(12)]
WS_XN = 0x0000000
WS_HC = 0x0400000
WS_PQ = 0x1800000
WS_KV = 0x2000000
WS_P = 0x2400000
WS_FL = 0x3800000
SZ_FL = 65536
SZ_XN = S * D * 2
SZ_HC = S * KCAT * 2
SZ_PQ = H * S * 64 * 2
SZ_KV = 8 * 32 * 16384
SZ_P = S * D * 4

LOG2E = 0x3fb8aa3b
PF_ROWS = int(os.environ.get("PF_ROWS", "256"))


class Asm:
    def __init__(self):
        self.lines = []

    def __call__(self, s):
        m = re.search(r"offset:(\d+)", s)
        if m:
            lim = 4096 if s.startswith("buffer_") else 65536
            assert int(m.group(1)) < lim, s
        self.lines.append("    " + s)

    def label(self, s):
        self.lines.append(s + ":")

    def raw(self, s):
        self.lines.append(s)

    def text(self):
        return "\n".join(self.lines) + "\n"


def vr(b, n=1):
    return "v%d" % b if n == 1 else "v[%d:%d]" % (b, b + n - 1)


def sr(b, n=1):
    return "s%d" % b if n == 1 else "s[%d:%d]" % (b, b + n - 1)


def srd(a, d, base, off, size):
    if off:
        a("s_add_u32 s%d, s%d, 0x%x" % (d, base, off))
        a("s_addc_u32 s%d, s%d, 0" % (d + 1, base + 1))
    else:
        a("s_mov_b32 s%d, s%d" % (d, base))
        a("s_mov_b32 s%d, s%d" % (d + 1, base + 1))
    a("s_and_b32 s%d, s%d, 0xffff" % (d + 1, d + 1))
    a("s_mov_b32 s%d, 0x%x" % (d + 2, size))
    a("s_mov_b32 s%d, 0x00020000" % (d + 3))


def kernel_head(a, label):
    a.raw(".globl %s" % label)
    a.raw(".p2align 8")
    a.raw(".type %s,@function" % label)
    a.label(label)


def kernel_desc(label, vgpr, sgpr=102):
    acc = (vgpr + 3) // 4 * 4
    return """.amdhsa_kernel %s
  .amdhsa_next_free_vgpr %d
  .amdhsa_next_free_sgpr %d
  .amdhsa_accum_offset %d
  .amdhsa_group_segment_fixed_size 0
  .amdhsa_kernarg_size 96
  .amdhsa_user_sgpr_count 2
  .amdhsa_user_sgpr_kernarg_segment_ptr 1
  .amdhsa_system_sgpr_workgroup_id_x 1
.end_amdhsa_kernel
""" % (label, vgpr, sgpr, acc)


def stamp(a, i):
    if "STAMP" in FLAGS:
        a("s_memtime s[%d:%d]" % (60 + 2 * i, 61 + 2 * i))


def stamp_rt(a, i):
    if "STAMP" in FLAGS:
        a("s_memrealtime s[%d:%d]" % (60 + 2 * i, 61 + 2 * i))


def stamp_flush(a, n, kidx):
    if "STAMP" not in FLAGS:
        return
    a("s_waitcnt lgkmcnt(0)")
    srd(a, 88, 4, 0x8000000 + kidx * 0x100000, 0x100000)
    a("s_lshl_b32 s92, s2, 3")
    a("s_add_u32 s92, s92, s20")
    a("s_lshl_b32 s92, s92, 7")
    a("v_mov_b32 v2, s92")
    for i in range(n):
        a("v_mov_b32 v4, s%d" % (60 + 2 * i))
        a("v_mov_b32 v5, s%d" % (61 + 2 * i))
        a("buffer_store_dwordx2 v[4:5], v2, s[88:91], 0 offen offset:%d" % (8 * i))
        a("s_nop 1")


def allreduce64(a, op, v, t):
    for ctl in ("quad_perm:[1,0,3,2]", "quad_perm:[2,3,0,1]", "row_half_mirror", "row_mirror"):
        a("s_nop 1")
        a("%s_dpp %s, %s, %s %s row_mask:0xf bank_mask:0xf" % (op, vr(v), vr(v), vr(v), ctl))
    for sw in ("v_permlane16_swap_b32", "v_permlane32_swap_b32"):
        a("v_mov_b32 %s, %s" % (vr(t), vr(v)))
        a("s_nop 1")
        a("%s %s, %s" % (sw, vr(v), vr(t)))
        a("s_nop 1")
        a("%s %s, %s, %s" % (op, vr(v), vr(v), vr(t)))


def gen_ln(a):
    L = "ln_kernel"
    kernel_head(a, L)
    a("s_cmp_ge_u32 s2, 512")
    a("s_cbranch_scc1 ln_done")
    a("s_load_dwordx2 s[4:5], s[0:1], %d" % KA_X)
    a("s_load_dwordx2 s[6:7], s[0:1], %d" % KA_WS)
    a("s_load_dwordx2 s[20:21], s[0:1], %d" % KA_WQKV)
    a("s_load_dwordx2 s[22:23], s[0:1], %d" % KA_W1)
    a("v_lshrrev_b32 v1, 6, v0")
    a("v_and_b32 v2, 63, v0")
    a("s_lshl_b32 s3, s2, 2")
    a("v_add_u32 v1, s3, v1")
    a("v_lshlrev_b32 v3, 12, v1")
    a("v_lshl_add_u32 v3, v2, 6, v3")
    a("v_lshlrev_b32 v1, 11, v1")
    a("v_lshl_add_u32 v1, v2, 4, v1")
    a("s_waitcnt lgkmcnt(0)")
    srd(a, 8, 4, 0, SZ_XN)
    srd(a, 12, 6, WS_XN, SZ_XN)
    a("buffer_load_dwordx4 v[4:7], v1, s[8:11], 0 offen")
    a("buffer_load_dwordx4 v[8:11], v1, s[8:11], 0 offen offset:1024")
    if "NOPF" not in FLAGS:
        srd(a, 24, 20, 0, PF_ROWS * 3 * D * 2)
        srd(a, 28, 22, 0, PF_ROWS * F * 2)
        a("buffer_load_dword v39, v3, s[24:27], 0 offen")
        a("buffer_load_dword v39, v3, s[28:31], 0 offen")
    a("s_cmp_ge_u32 s2, 16")
    a("s_cbranch_scc1 ln_nz")
    srd(a, 16, 6, WS_FL, SZ_FL)
    a("s_lshl_b32 s3, s2, 12")
    a("v_lshl_add_u32 v12, v0, 4, s3")
    for i in range(4):
        a("v_mov_b32 v%d, 0" % (16 + i))
    a("buffer_store_dwordx4 v[16:19], v12, s[16:19], 0 offen")
    a("s_waitcnt vmcnt(3)")
    a.label("ln_nz")
    a("s_waitcnt vmcnt(%d)" % (0 if "NOPF" in FLAGS else 2))
    for i in range(8):
        a("v_lshlrev_b32 v%d, 16, v%d" % (16 + 2 * i, 4 + i))
        a("v_and_b32 v%d, 0xffff0000, v%d" % (17 + 2 * i, 4 + i))
    a("v_add_f32 v32, v16, v17")
    for i in range(2, 16):
        a("v_add_f32 v32, v32, v%d" % (16 + i))
    allreduce64(a, "v_add_f32", 32, 33)
    a("v_mul_f32 v32, 0x3a800000, v32")
    a("v_sub_f32 v34, v16, v32")
    a("v_mul_f32 v35, v34, v34")
    for i in range(1, 16):
        a("v_sub_f32 v34, v%d, v32" % (16 + i))
        a("v_fmac_f32 v35, v34, v34")
    allreduce64(a, "v_add_f32", 35, 33)
    a("v_mul_f32 v35, 0x3a800000, v35")
    a("v_cvt_pk_bf16_f32 v36, v32, v35")
    a("v_lshlrev_b32 v32, 16, v36")
    a("v_and_b32 v35, 0xffff0000, v36")
    a("v_add_f32 v35, 0x3727c5ac, v35")
    a("v_cvt_pk_bf16_f32 v36, v35, v35")
    a("v_lshlrev_b32 v35, 16, v36")
    a("v_sqrt_f32 v35, v35")
    a("s_nop 0")
    a("v_cvt_pk_bf16_f32 v36, v35, v35")
    a("v_lshlrev_b32 v35, 16, v36")
    a("v_rcp_f32 v35, v35")
    a("s_nop 0")
    for i in range(8):
        a("v_sub_f32 v%d, v%d, v32" % (16 + 2 * i, 16 + 2 * i))
        a("v_sub_f32 v%d, v%d, v32" % (17 + 2 * i, 17 + 2 * i))
        a("v_cvt_pk_bf16_f32 v36, v%d, v%d" % (16 + 2 * i, 17 + 2 * i))
        a("v_lshlrev_b32 v37, 16, v36")
        a("v_and_b32 v38, 0xffff0000, v36")
        a("v_mul_f32 v37, v37, v35")
        a("v_mul_f32 v38, v38, v35")
        a("v_cvt_pk_bf16_f32 v%d, v37, v38" % (4 + i))
    a("buffer_store_dwordx4 v[4:7], v1, s[12:15], 0 offen")
    a("buffer_store_dwordx4 v[8:11], v1, s[12:15], 0 offen offset:1024")
    a.label("ln_done")
    a("s_endpgm")
    return L, 40


def interleave(a, mfmas, fillers):
    n = len(mfmas)
    nf = len(fillers)
    fi = 0
    for i, m in enumerate(mfmas):
        a(m)
        want = ((i + 1) * nf + n - 1) // n if nf <= n else ((i + 1) * nf) // n
        want = min(nf, max(want, min(nf, i + 1)))
        while fi < want:
            for x in fillers[fi]:
                a(x)
            fi += 1
    while fi < nf:
        for x in fillers[fi]:
            a(x)
        fi += 1


def place(a, mfmas, slots):
    for i, m in enumerate(mfmas):
        a(m)
        for grp in slots.get(i, []):
            for x in grp:
                a(x)


class Gemm:
    def __init__(self, a, MT, NT, acc, fragA, fragB, vA, vB, voffA, voffB,
                 orient, sM0, sOffA, sOffB, srdA, srdB, stepA, stepB):
        self.__dict__.update(locals())

    def mfmas(self, st):
        out = []
        for mt in range(self.MT):
            for nt in range(self.NT):
                c = self.acc + (mt * self.NT + nt) * 4
                fa = self.fragA[st] + mt * 4
                fb = self.fragB[st] + nt * 4
                x, y = (fb, fa) if self.orient(nt) else (fa, fb)
                out.append("v_mfma_f32_16x16x32_bf16 %s, %s, %s, %s" % (vr(c, 4), vr(x, 4), vr(y, 4), vr(c, 4)))
        return out

    def reads(self, st, buf):
        out = []
        for mt in range(self.MT):
            out.append(["ds_read_b128 %s, %s offset:%d" % (vr(self.fragA[st] + mt * 4, 4), vr(self.vA), buf * 16384 + mt * 1024)])
        for nt in range(self.NT):
            for rd in range(2):
                out.append(["ds_read_b64_tr_b16 %s, %s offset:%d" % (vr(self.fragB[st] + nt * 4 + rd * 2, 2), vr(self.vB[nt]), buf * 16384 + rd * 2048)])
        return out

    def dmas(self, buf):
        out = []
        for j in range(2):
            out.append(["s_add_u32 m0, s%d, %d" % (self.sM0, buf * 16384 + j * 1024),
                        "s_nop 0",
                        "buffer_load_dwordx4 %s, %s, s%d offen lds" % (vr(self.voffA + j), sr(self.srdA, 4), self.sOffA)])
        for j in range(2):
            out.append(["s_add_u32 m0, s%d, %d" % (self.sM0, 65536 + buf * 16384 + j * 1024),
                        "s_nop 0",
                        "buffer_load_dwordx4 %s, %s, s%d offen lds" % (vr(self.voffB + j), sr(self.srdB, 4), self.sOffB)])
        out.append(["s_add_u32 s%d, s%d, %d" % (self.sOffA, self.sOffA, self.stepA),
                    "s_add_u32 s%d, s%d, %d" % (self.sOffB, self.sOffB, self.stepB)])
        return out

    def pf(self):
        return ["buffer_load_dword v30, v31, %s, s19 offen" % sr(self.srdB, 4),
                "s_add_u32 s19, s19, 0x80000"]

    def iteration(self, i, dma, nxt, vm):
        a = self.a
        mf = self.mfmas(i & 1)
        n = len(mf)
        dpos = [1 + (j * (n - 2)) // 4 for j in range(4)]
        slots = {}
        if dma and "NODMA" not in FLAGS:
            d = self.dmas(i % 4)
            for j in range(4):
                slots.setdefault(dpos[j], []).append(d[j])
            slots.setdefault(dpos[3], []).append(d[4])
            slots.setdefault(dpos[3] + 1, []).append(self.pf())
        if nxt:
            r = self.reads((i + 1) & 1, (i + 1) % 4)
            pos = [p for p in range(n) if p not in dpos][:len(r)]
            for p, x in zip(pos, r):
                slots.setdefault(p, []).append(x)
        place(a, mf, slots)
        if nxt:
            if vm is None:
                a("s_waitcnt lgkmcnt(0)")
            else:
                a("s_waitcnt vmcnt(%d) lgkmcnt(0)" % vm)
            a("s_barrier")

    def run(self, nstages, tag, sCnt):
        a = self.a
        a("s_lshl_b32 s28, s23, 4")
        a("s_add_u32 s28, s28, s25")
        a("s_lshl_b32 s28, s28, 3")
        a("s_add_u32 s28, s28, s20")
        a("s_lshl_b32 s28, s28, 9")
        a("v_lshl_add_u32 v31, v1, 6, s28")
        a("v_cmp_gt_u32 vcc, 8, v1")
        a("v_mov_b32 v29, 0x7f000000")
        a("s_nop 0")
        a("v_cndmask_b32 v31, v29, v31, vcc")
        a("s_mov_b32 s19, 0x%x" % (PF_ROWS * (self.stepB // 32)))
        for st in range(4):
            for f in self.dmas(st):
                for x in f:
                    a(x)
            if st >= 2:
                for x in self.pf():
                    a(x)
        for i in range(self.MT * self.NT * 4):
            a("v_mov_b32 v%d, 0" % (self.acc + i))
        stamp(a, 1)
        a("s_waitcnt vmcnt(14)")
        a("s_barrier")
        stamp(a, 2)
        for f in self.reads(0, 0):
            for x in f:
                a(x)
        a("s_waitcnt vmcnt(10) lgkmcnt(0)")
        a("s_barrier")
        a("s_mov_b32 s%d, %d" % (sCnt, (nstages - 4) // 4))
        a.label(tag + "_loop")
        for i in range(4):
            self.iteration(i, True, True, 11)
        a("s_sub_u32 s%d, s%d, 1" % (sCnt, sCnt))
        a("s_cmp_lg_u32 s%d, 0" % sCnt)
        a("s_cbranch_scc1 %s_loop" % tag)
        self.iteration(0, False, True, 6)
        self.iteration(1, False, True, 1)
        self.iteration(2, False, True, None)
        self.iteration(3, False, False, None)
        stamp(a, 3)


G1_ACC = 128
G1_FA = (32, 76)
G1_FB = (48, 92)
G1_VOA, G1_VOB = 8, 12
G1_VA = 16
G1_VB = (18, 19, 20, 21, 22, 23, 24)
G1_X = 240


def g1_common_addr(a):
    a("v_and_b32 v1, 63, v0")
    a("v_lshrrev_b32 v2, 6, v0")
    a("s_nop 0")
    a("v_readfirstlane_b32 s20, v2")
    a("v_and_b32 v3, 15, v1")
    a("v_lshrrev_b32 v4, 4, v1")


def gen_gemm1(a):
    L = "gemm1_kernel"
    kernel_head(a, L)
    a("s_cmp_ge_u32 s2, 256")
    a("s_cbranch_scc1 g1_done")
    stamp(a, 0)
    stamp_rt(a, 6)
    a("s_load_dwordx2 s[4:5], s[0:1], %d" % KA_WS)
    a("s_load_dwordx2 s[6:7], s[0:1], %d" % KA_WQKV)
    a("s_load_dwordx2 s[30:31], s[0:1], %d" % KA_W1)
    a("s_load_dwordx2 s[32:33], s[0:1], %d" % KA_WPHI)
    a("s_load_dwordx2 s[34:35], s[0:1], %d" % KA_B1)
    g1_common_addr(a)
    a("s_and_b32 s21, s2, 7")
    a("s_lshr_b32 s22, s2, 3")
    a("s_and_b32 s23, s21, 1")
    a("s_lshl_b32 s23, s23, 2")
    a("s_and_b32 s24, s22, 3")
    a("s_add_u32 s23, s23, s24")
    a("s_lshr_b32 s24, s22, 2")
    a("s_lshr_b32 s25, s21, 1")
    a("s_lshl_b32 s25, s25, 2")
    a("s_and_b32 s26, s24, 3")
    a("s_add_u32 s25, s25, s26")
    a("s_lshr_b32 s21, s20, 1")
    a("s_and_b32 s22, s20, 1")
    a("s_lshl_b32 s27, s20, 11")
    a("v_lshrrev_b32 v5, 2, v1")
    a("s_lshl_b32 s28, s23, 8")
    a("s_lshl_b32 s29, s20, 5")
    a("s_add_u32 s28, s28, s29")
    a("v_add_u32 v5, s28, v5")
    a("v_lshlrev_b32 v5, 11, v5")
    a("v_lshrrev_b32 v6, 1, v4")
    a("v_xor_b32 v7, v6, v4")
    a("v_and_b32 v7, 1, v7")
    a("v_lshl_or_b32 v6, v7, 1, v6")
    a("v_and_b32 v7, 3, v1")
    a("v_xor_b32 v7, v7, v6")
    a("v_lshl_add_u32 v%d, v7, 4, v5" % G1_VOA)
    a("v_add_u32 v%d, %d, v%d" % (G1_VOA + 1, 16 * 2048, G1_VOA))
    a("v_bfe_u32 v5, v1, 2, 2")
    a("v_lshrrev_b32 v6, 1, v5")
    a("v_xor_b32 v7, v6, v5")
    a("v_and_b32 v7, 1, v7")
    a("v_lshl_or_b32 v6, v7, 1, v6")
    a("v_xor_b32 v5, v6, v4")
    a("s_lshl_b32 s28, s21, 6")
    a("v_add_u32 v6, s28, v3")
    a("v_lshlrev_b32 v6, 6, v6")
    a("v_lshl_add_u32 v%d, v5, 4, v6" % G1_VA)
    a("v_bfe_u32 v5, v1, 2, 2")
    a("v_and_b32 v6, 1, v4")
    a("v_lshl_or_b32 v6, v6, 2, v5")
    a("v_lshl_add_u32 v5, v4, 3, v5")
    a("v_lshlrev_b32 v5, 9, v5")
    a("v_and_b32 v7, 3, v1")
    a("v_lshl_add_u32 v5, v7, 3, v5")
    a("v_add_u32 v5, 0x10000, v5")
    a("s_waitcnt lgkmcnt(0)")
    srd(a, 8, 4, WS_XN, SZ_XN)
    a("s_mov_b32 s16, 0")
    a("s_mov_b32 s17, 0")
    a("s_cmp_ge_u32 s24, 4")
    a("s_cbranch_scc1 g1_w1")

    def b_dma_rows(a, j):
        a("v_lshrrev_b32 v25, 5, v1")
        a("v_add_u32 v25, %d, v25" % (2 * j))
        a("s_bfe_u32 s28, s20, 0x10001")
        a("s_lshl_b32 s28, s28, 2")
        a("v_or_b32 v26, s28, v25")
        a("v_lshlrev_b32 v26, 1, v26")
        a("v_and_b32 v27, 31, v1")
        a("v_xor_b32 v26, v26, v27")
        a("s_lshl_b32 s28, s20, 2")
        a("v_add_u32 v25, s28, v25")

    NT = 6
    for tt in range(NT):
        a("s_mul_i32 s28, s22, %d" % NT)
        a("s_add_u32 s28, s28, %d" % tt)
        a("v_xor_b32 v7, s28, v6")
        a("v_lshl_add_u32 v%d, v7, 5, v5" % G1_VB[tt])
    srd(a, 12, 6, 0, D * 3 * D * 2)
    for j in range(2):
        b_dma_rows(a, j)
        a("v_lshrrev_b32 v27, 2, v26")
        a("v_cmp_le_u32 vcc, 3, v27")
        a("s_nop 1")
        a("v_cndmask_b32 v28, 0, 1, vcc")
        a("v_mul_u32_u24 v29, 3, v28")
        a("v_sub_u32 v29, v27, v29")
        a("s_lshl_b32 s28, s25, 1")
        a("v_add_u32 v28, s28, v28")
        a("v_lshlrev_b32 v28, 6, v28")
        a("v_lshl_add_u32 v28, v29, 11, v28")
        a("v_and_b32 v29, 3, v26")
        a("v_lshl_add_u32 v28, v29, 4, v28")
        a("s_movk_i32 s28, 6144")
        a("v_mul_lo_u32 v29, v25, s28")
        a("v_add_u32 v28, v28, v29")
        a("v_cmp_gt_u32 vcc, 6, v27")
        a("v_mov_b32 v29, 0x7f000000")
        a("s_nop 0")
        a("v_cndmask_b32 v%d, v29, v28, vcc" % (G1_VOB + j))
    srd(a, 36, 32, 0, H * DH * DH * 2)
    a("s_lshl_b32 s28, s25, 1")
    a("s_add_u32 s28, s28, s22")
    a("s_lshl_b32 s28, s28, 11")
    a("v_lshlrev_b32 v25, 8, v4")
    a("v_lshl_add_u32 v25, v3, 1, v25")
    a("v_add_u32 v25, s28, v25")
    for ft in range(2):
        for j in range(8):
            d = (j & 3) + (16 if j >= 4 else 0)
            a("buffer_load_ushort v%d, v25, s[36:39], 0 offen offset:%d" % (224 + ft * 8 + j, d * 64 + ft * 32))
    g = Gemm(a, 4, NT, G1_ACC, G1_FA, G1_FB, G1_VA, G1_VB, G1_VOA, G1_VOB,
             lambda nt: nt < 4, 27, 16, 17, 8, 12, 64, 32 * 6144)
    g.run(32, "g1q", 18)
    if "NOEPI" not in FLAGS:
        g1_qkv_epilogue(a)
    a("s_branch g1_fin")

    a.label("g1_w1")
    NT = 7
    for tt in range(NT):
        a("s_mul_i32 s28, s22, %d" % NT)
        a("s_add_u32 s28, s28, %d" % tt)
        a("v_xor_b32 v7, s28, v6")
        a("v_lshl_add_u32 v%d, v7, 5, v5" % G1_VB[tt])
    srd(a, 12, 30, 0, D * F * 2)
    for j in range(2):
        b_dma_rows(a, j)
        a("s_mul_i32 s28, s25, 448")
        a("v_lshlrev_b32 v28, 4, v26")
        a("v_add_u32 v28, s28, v28")
        a("s_movk_i32 s28, 7168")
        a("v_mul_lo_u32 v29, v25, s28")
        a("v_add_u32 v28, v28, v29")
        a("v_cmp_gt_u32 vcc, 28, v26")
        a("v_mov_b32 v29, 0x7f000000")
        a("s_nop 0")
        a("v_cndmask_b32 v%d, v29, v28, vcc" % (G1_VOB + j))
    srd(a, 36, 34, 0, F * 2)
    a("s_mul_i32 s28, s25, 448")
    a("s_mul_i32 s29, s22, 224")
    a("s_add_u32 s28, s28, s29")
    a("v_lshlrev_b32 v25, 3, v4")
    a("v_add_u32 v25, s28, v25")
    for tt in range(NT):
        a("buffer_load_dwordx2 %s, v25, s[36:39], 0 offen offset:%d" % (vr(G1_X + 2 * tt, 2), tt * 32))
    g = Gemm(a, 4, NT, G1_ACC, G1_FA, G1_FB, G1_VA, G1_VB, G1_VOA, G1_VOB,
             lambda nt: True, 27, 16, 17, 8, 12, 64, 32 * 7168)
    g.run(32, "g1w", 18)
    if "NOEPI" not in FLAGS:
        g1_w1_epilogue(a)
    a.label("g1_fin")
    if "STAMP" in FLAGS:
        a("s_waitcnt vmcnt(0)")
    stamp(a, 4)
    stamp_rt(a, 5)
    stamp_flush(a, 12, 0)
    a.label("g1_done")
    a("s_endpgm")
    return L, 256


def f32bits(x):
    import struct
    return struct.unpack("<I", struct.pack("<f", x))[0]


def g1_w1_epilogue(a):
    NT = 7
    RS = 240
    srd(a, 40, 4, WS_HC, SZ_HC)
    for tt in range(NT):
        for p in range(2):
            a("v_lshlrev_b32 v%d, 16, v%d" % (32 + tt * 4 + 2 * p, G1_X + 2 * tt + p))
            a("v_and_b32 v%d, 0xffff0000, v%d" % (33 + tt * 4 + 2 * p, G1_X + 2 * tt + p))
    a("s_mul_i32 s28, s20, %d" % (64 * RS))
    a("s_movk_i32 s29, %d" % RS)
    a("v_mul_lo_u32 v6, v3, s29")
    a("v_lshl_add_u32 v6, v4, 3, v6")
    a("v_add_u32 v6, s28, v6")
    a("v_subrev_u32 v7, 56, v1")
    a("v_cmp_gt_u32 vcc, 56, v1")
    a("s_nop 1")
    a("v_cndmask_b32 v7, v7, v1, vcc")
    a("v_mul_u32_u24 v8, 0x4a, v7")
    a("v_lshrrev_b32 v8, 10, v8")
    a("v_mul_u32_u24 v9, 14, v8")
    a("v_sub_u32 v9, v7, v9")
    a("v_mul_lo_u32 v7, v8, s29")
    a("v_lshl_add_u32 v7, v9, 4, v7")
    a("v_add_u32 v7, s28, v7")
    a("s_lshl_b32 s28, s23, 8")
    a("s_lshl_b32 s29, s21, 6")
    a("s_add_u32 s28, s28, s29")
    a("v_add_u32 v5, s28, v8")
    a("s_movk_i32 s28, 9216")
    a("v_mul_lo_u32 v5, v5, s28")
    a("s_mul_i32 s28, s25, 448")
    a("s_mul_i32 s29, s22, 224")
    a("s_add_u32 s28, s28, s29")
    a("v_lshl_add_u32 v9, v9, 4, s28")
    a("v_add_u32 v5, v5, v9")
    k0 = -2.0 * 0.7978845608028654 * 1.4426950408889634
    k1 = k0 * 0.044715
    a("s_mov_b32 s44, 0x%08x" % f32bits(k1))
    a("s_mov_b32 s45, 0x%08x" % f32bits(k1))
    a("s_mov_b32 s46, 1.0")
    a("s_mov_b32 s47, 1.0")
    a("v_mov_b32 v8, 0x%08x" % f32bits(k0))
    a("v_mov_b32 v9, 0x%08x" % f32bits(k0))
    a("s_barrier")

    def flush(mt):
        for j in range(4):
            a("ds_read_b128 %s, v7 offset:%d" % (vr(96 + j * 4, 4), (mt * 16 + j * 4) * RS))
        for j in range(4):
            a("s_waitcnt lgkmcnt(%d)" % (3 - j))
            a("s_mov_b32 s28, 0x%x" % ((mt * 16 + j * 4) * 9216))
            a("buffer_store_dwordx4 %s, v5, s[40:43], s28 offen" % vr(96 + j * 4, 4))

    for mt in range(4):
        for tt in range(NT):
            c = G1_ACC + (mt * NT + tt) * 4
            T = 64 + ((mt * NT + tt) & 1) * 16
            for p in range(2):
                a("v_pk_add_f32 %s, %s, %s" % (vr(T + 2 * p, 2), vr(c + 2 * p, 2), vr(32 + tt * 4 + 2 * p, 2)))
            for p in range(2):
                a("v_pk_mul_f32 %s, %s, %s" % (vr(T + 4 + 2 * p, 2), vr(T + 2 * p, 2), vr(T + 2 * p, 2)))
            for p in range(2):
                a("v_pk_fma_f32 %s, %s, s[44:45], v[8:9]" % (vr(T + 4 + 2 * p, 2), vr(T + 4 + 2 * p, 2)))
            for p in range(2):
                a("v_pk_mul_f32 %s, %s, %s" % (vr(T + 4 + 2 * p, 2), vr(T + 4 + 2 * p, 2), vr(T + 2 * p, 2)))
            for r in range(4):
                a("v_exp_f32 v%d, v%d" % (T + 4 + r, T + 4 + r))
            a("s_nop 0")
            for p in range(2):
                a("v_pk_add_f32 %s, %s, s[46:47]" % (vr(T + 4 + 2 * p, 2), vr(T + 4 + 2 * p, 2)))
            for r in range(4):
                a("v_rcp_f32 v%d, v%d" % (T + 4 + r, T + 4 + r))
            a("s_nop 0")
            for p in range(2):
                a("v_pk_mul_f32 %s, %s, %s" % (vr(T + 4 + 2 * p, 2), vr(T + 4 + 2 * p, 2), vr(T + 2 * p, 2)))
            a("v_cvt_pk_bf16_f32 v%d, v%d, v%d" % (T + 8, T + 4, T + 5))
            a("v_cvt_pk_bf16_f32 v%d, v%d, v%d" % (T + 9, T + 6, T + 7))
            a("ds_write_b64 v6, %s offset:%d" % (vr(T + 8, 2), mt * 16 * RS + tt * 32))
            if tt == 2 and mt > 0:
                flush(mt - 1)
        a("s_waitcnt lgkmcnt(0)")
    flush(3)
    if "NOPF" not in FLAGS:
        a("s_load_dwordx2 s[30:31], s[0:1], %d" % KA_W2)
        a("s_load_dwordx2 s[32:33], s[0:1], %d" % KA_WO)
        a("s_lshl_b32 s28, s23, 4")
        a("s_add_u32 s28, s28, s25")
        a("s_lshl_b32 s28, s28, 3")
        a("s_add_u32 s28, s28, s20")
        a("s_lshl_b32 s28, s28, 12")
        a("v_lshl_add_u32 v8, v1, 6, s28")
        a("s_mov_b32 s29, 0x400000")
        a("s_waitcnt lgkmcnt(0)")
        srd(a, 44, 30, 0, F * D * 2)
        srd(a, 48, 32, 0, D * D * 2)
        a("buffer_load_dword v9, v8, s[44:47], 0 offen")
        a("buffer_load_dword v9, v8, s[44:47], s29 offen")
        a("buffer_load_dword v9, v8, s[48:51], 0 offen")


def bf16_round_pair(a, x0, x1, t):
    a("v_cvt_pk_bf16_f32 v%d, v%d, v%d" % (t, x0, x1))
    a("v_lshlrev_b32 v%d, 16, v%d" % (x0, t))
    a("v_and_b32 v%d, 0xffff0000, v%d" % (x1, t))


def xlane_g(a, op, regs, temps):
    for sw in ("v_permlane16_swap_b32", "v_permlane32_swap_b32"):
        for v, t in zip(regs, temps):
            a("v_mov_b32 v%d, v%d" % (t, v))
        a("s_nop 1")
        for v, t in zip(regs, temps):
            a("%s v%d, v%d" % (sw, v, t))
        a("s_nop 1")
        for (v, t), o in zip(zip(regs, temps), op):
            a("%s v%d, v%d, v%d" % (o, v, v, t))


def dpp16(a, ops, regs):
    for ctl in ("quad_perm:[1,0,3,2]", "quad_perm:[2,3,0,1]", "row_half_mirror", "row_mirror"):
        if len(regs) < 3:
            a("s_nop 1")
        for v, o in zip(regs, ops):
            a("%s_dpp v%d, v%d, v%d %s row_mask:0xf bank_mask:0xf" % (o, v, v, v, ctl))


def g1_softmax_batch(a, acc, WP, tt0):
    E = lambda mt: 32 + mt * 16
    FR = lambda mt: 96 + mt * 4
    MX = lambda mt: 112 + 2 * mt
    MN = lambda mt: 120 + 2 * mt
    P = lambda mt: acc(mt, tt0)
    R = range(4)
    for mt in R:
        for i in range(4):
            a("v_cvt_pk_bf16_f32 v%d, v%d, v%d" % (FR(mt) + i, P(mt) + 2 * i, P(mt) + 2 * i + 1))
    a("s_nop 1")
    for mt in R:
        for ft in range(2):
            a("v_mfma_f32_16x16x32_bf16 %s, %s, %s, 0" % (vr(P(mt) + ft * 4, 4), vr(WP[ft], 4), vr(FR(mt), 4)))
    a("s_nop 7")
    for mt in R:
        for i in range(4):
            a("v_cvt_pk_bf16_f32 v%d, v%d, v%d" % (E(mt) + i, P(mt) + 2 * i, P(mt) + 2 * i + 1))
    for mt in R:
        for i in range(4):
            a("v_lshlrev_b32 v%d, 16, v%d" % (P(mt) + 2 * i, E(mt) + i))
            a("v_and_b32 v%d, 0xffff0000, v%d" % (P(mt) + 2 * i + 1, E(mt) + i))
    for op3, op2, M in (("v_max3_f32", "v_max_f32", MX), ("v_min3_f32", "v_min_f32", MN)):
        for mt in R:
            a("%s v%d, v%d, v%d, v%d" % (op3, M(mt), P(mt), P(mt) + 1, P(mt) + 2))
        for mt in R:
            a("%s v%d, v%d, v%d, v%d" % (op3, M(mt), M(mt), P(mt) + 3, P(mt) + 4))
        for mt in R:
            a("%s v%d, v%d, v%d, v%d" % (op3, M(mt), M(mt), P(mt) + 5, P(mt) + 6))
        for mt in R:
            a("%s v%d, v%d, v%d" % (op2, M(mt), M(mt), P(mt) + 7))

    def xl(opx, opn):
        regs = [(MX(mt), opx) for mt in R] + [(MN(mt), opn) for mt in R]
        for sw in ("v_permlane16_swap_b32", "v_permlane32_swap_b32"):
            for v, o in regs:
                a("v_mov_b32 v%d, v%d" % (v + 1, v))
            a("s_nop 0")
            for v, o in regs:
                a("%s v%d, v%d" % (sw, v, v + 1))
            a("s_nop 0")
            for v, o in regs:
                a("%s v%d, v%d, v%d" % (o, v, v, v + 1))
    xl("v_max_f32", "v_min_f32")
    for mt in R:
        a("v_mul_f32 v%d, s48, v%d" % (MX(mt), MX(mt)))
        a("v_mul_f32 v%d, s48, v%d" % (MN(mt), MN(mt)))
    for mt in R:
        for i in range(4):
            a("v_pk_fma_f32 %s, %s, s[48:49], %s op_sel_hi:[1,1,0] neg_lo:[0,0,1] neg_hi:[0,0,1]" % (
                vr(E(mt) + 2 * i, 2), vr(P(mt) + 2 * i, 2), vr(MX(mt), 2)))
            a("v_pk_fma_f32 %s, %s, s[48:49], %s op_sel_hi:[1,1,0] neg_lo:[1,0,0] neg_hi:[1,0,0]" % (
                vr(E(mt) + 8 + 2 * i, 2), vr(P(mt) + 2 * i, 2), vr(MN(mt), 2)))
    for mt in R:
        for i in range(16):
            a("v_exp_f32 v%d, v%d" % (E(mt) + i, E(mt) + i))
    a("s_nop 0")
    for M, o in ((MX, 0), (MN, 8)):
        for mt in R:
            a("v_pk_add_f32 %s, %s, %s" % (vr(M(mt), 2), vr(E(mt) + o, 2), vr(E(mt) + o + 2, 2)))
        for mt in R:
            a("v_pk_add_f32 %s, %s, %s" % (vr(M(mt), 2), vr(M(mt), 2), vr(E(mt) + o + 4, 2)))
        for mt in R:
            a("v_pk_add_f32 %s, %s, %s" % (vr(M(mt), 2), vr(M(mt), 2), vr(E(mt) + o + 6, 2)))
        for mt in R:
            a("v_add_f32 v%d, v%d, v%d" % (M(mt), M(mt), M(mt) + 1))
    xl("v_add_f32", "v_add_f32")
    for mt in R:
        a("v_rcp_f32 v%d, v%d" % (MX(mt), MX(mt)))
        a("v_rcp_f32 v%d, v%d" % (MN(mt), MN(mt)))
    a("s_nop 0")
    for mt in R:
        for i in range(4):
            a("v_pk_mul_f32 %s, %s, %s op_sel_hi:[1,0]" % (vr(E(mt) + 2 * i, 2), vr(E(mt) + 2 * i, 2), vr(MX(mt), 2)))
            a("v_pk_mul_f32 %s, %s, %s op_sel_hi:[1,0]" % (vr(E(mt) + 8 + 2 * i, 2), vr(E(mt) + 8 + 2 * i, 2), vr(MN(mt), 2)))
    for mt in R:
        for i in range(8):
            a("v_cvt_pk_bf16_f32 v%d, v%d, v%d" % (P(mt) + i, E(mt) + 2 * i, E(mt) + 2 * i + 1))


def g1_qkv_epilogue(a):
    NT = 6
    WP = (G1_X, G1_X + 4)
    KS = 160
    SH = 98304

    def acc(mt, tt):
        return G1_ACC + (mt * NT + tt) * 4

    srd(a, 40, 4, WS_HC, SZ_HC)
    srd(a, 44, 4, WS_KV, SZ_KV)
    srd(a, 52, 4, WS_FL, SZ_FL)
    a("s_mov_b32 s48, 0x%08x" % LOG2E)
    a("s_mov_b32 s49, 0x%08x" % LOG2E)
    a("s_mul_i32 s50, s20, 12288")
    for i in range(8):
        a("v_lshl_or_b32 v%d, v%d, 16, v%d" % (G1_X + i, 224 + 2 * i + 1, 224 + 2 * i))
    a("s_movk_i32 s28, %d" % KS)
    a("v_mul_lo_u32 v5, v3, s28")
    a("v_lshl_add_u32 v5, v4, 3, v5")
    a("v_add_u32 v5, s50, v5")
    a("v_bfe_u32 v6, v1, 2, 2")
    a("v_lshl_add_u32 v6, v4, 2, v6")
    a("v_mul_lo_u32 v6, v6, s28")
    a("v_and_b32 v7, 3, v1")
    a("v_lshl_add_u32 v6, v7, 3, v6")
    a("v_add_u32 v6, s50, v6")
    a("v_lshlrev_b32 v7, 4, v1")
    a("s_barrier")
    g1_softmax_batch(a, acc, WP, 2)
    stamp(a, 7)
    for mt in range(4):
        for q in range(4):
            a("ds_write_b64 v5, %s offset:%d" % (vr(acc(mt, 2) + 2 * q, 2), mt * 16 * KS + q * 32))
    KV, AF, BF, ONE = 64, 32, 112, 16
    for u in range(2):
        for dt in range(2):
            for hf in range(2):
                for p in range(2):
                    c = acc(2 * u + hf, 4 + dt) + 2 * p
                    a("v_cvt_pk_bf16_f32 v%d, v%d, v%d" % (BF + (u * 2 + dt) * 4 + hf * 2 + p, c, c + 1))
    for i in range(4):
        a("v_mov_b32 v%d, 0x3f803f80" % (ONE + i))
    a("s_waitcnt lgkmcnt(0)")
    for u in range(2):
        for fq in range(4):
            for hf in range(2):
                a("ds_read_b64_tr_b16 %s, v6 offset:%d" % (vr(AF + (u * 4 + fq) * 4 + hf * 2, 2), (2 * u + hf) * 16 * KS + fq * 32))
    a("s_waitcnt lgkmcnt(8)")
    for u in range(2):
        if u == 1:
            a("s_waitcnt lgkmcnt(0)")
        for fq in range(4):
            for t in range(3):
                c = KV + (fq * 2 + t) * 4 if t < 2 else KV + (8 + fq) * 4
                b = BF + (u * 2 + t) * 4 if t < 2 else ONE
                a("v_mfma_f32_16x16x32_bf16 %s, %s, %s, %s" % (vr(c, 4), vr(AF + (u * 4 + fq) * 4, 4), vr(b, 4), vr(c, 4) if u else "0"))
    a("v_add_u32 v8, s50, v7")
    a("s_nop 7")
    for t in range(12):
        a("ds_write_b128 v8, %s offset:%d" % (vr(KV + t * 4, 4), t * 1024))
    a("s_lshr_b32 s28, s20, 2")
    a("s_mul_i32 s28, s28, 12288")
    a("s_and_b32 s29, s20, 3")
    a("s_mul_i32 s29, s29, 3072")
    a("s_add_u32 s28, s28, s29")
    a("v_add_u32 v8, s28, v7")
    a("v_add_u32 v9, 0xc000, v8")
    a("s_lshl_b32 s28, s25, 3")
    a("s_add_u32 s28, s28, s23")
    a("s_mul_i32 s28, s28, 24")
    a("s_mul_i32 s29, s20, 3")
    a("s_add_u32 s28, s28, s29")
    a("s_lshl_b32 s28, s28, 10")
    a("v_add_u32 v10, s28, v7")
    a("s_lshl_b32 s28, s25, 8")
    a("s_add_u32 s28, s28, 32768")
    a("v_mov_b32 v11, s28")
    a("s_waitcnt lgkmcnt(0)")
    a("s_barrier")
    for wm in range(4):
        for i in range(3):
            a("ds_read_b128 %s, %s offset:%d" % (vr(32 + (wm * 3 + i) * 4, 4), "v9" if wm >= 2 else "v8", (wm & 1) * 24576 + i * 1024))
    a("s_waitcnt lgkmcnt(0)")
    for wm in range(1, 4):
        for i in range(6):
            a("v_pk_add_f32 %s, %s, %s" % (vr(32 + 2 * i, 2), vr(32 + 2 * i, 2), vr(32 + wm * 12 + 2 * i, 2)))
    for i in range(3):
        a("buffer_store_dwordx4 %s, v10, s[44:47], 0 offen offset:%d sc1" % (vr(32 + i * 4, 4), i * 1024))
    a("s_waitcnt vmcnt(0)")
    a("s_barrier")
    a("s_cmp_lg_u32 s20, 0")
    a("s_cbranch_scc1 g1q_sig")
    a("v_mov_b32 v12, 1")
    a("s_mov_b64 exec, 1")
    a("buffer_atomic_add v12, v11, s[52:55], 0 offen sc1")
    a("s_mov_b64 exec, -1")
    a.label("g1q_sig")
    stamp(a, 8)
    g1_softmax_batch(a, acc, WP, 0)
    stamp(a, 9)
    a("s_mov_b32 s29, 0")
    a.label("g1q_spin")
    a("buffer_load_dword v12, v11, s[52:55], 0 offen sc1")
    a("s_waitcnt vmcnt(0)")
    a("v_readfirstlane_b32 s28, v12")
    a("s_add_u32 s29, s29, 1")
    a("s_cmp_ge_u32 s28, 8")
    a("s_cbranch_scc1 g1q_go")
    a("s_sleep 2")
    a("s_cmp_lt_u32 s29, 0x100000")
    a("s_cbranch_scc1 g1q_spin")
    a.label("g1q_go")
    stamp(a, 10)
    a("s_mul_i32 s28, s25, %d" % (8 * 24))
    a("s_mul_i32 s29, s20, 3")
    a("s_add_u32 s28, s28, s29")
    a("s_lshl_b32 s28, s28, 10")
    a("v_add_u32 v10, s28, v7")
    for rb in range(8):
        a("s_mov_b32 s28, 0x%x" % (rb * 24576))
        for i in range(3):
            a("buffer_load_dwordx4 %s, v10, s[44:47], s28 offen offset:%d sc1" % (vr(32 + (rb * 3 + i) * 4, 4), i * 1024))
    a("s_mul_i32 s28, s20, 1536")
    a("s_add_u32 s28, s28, %d" % SH)
    a("v_lshl_add_u32 v8, v1, 3, s28")
    a("s_mul_i32 s28, s22, 6144")
    a("s_add_u32 s28, s28, %d" % SH)
    a("v_lshl_add_u32 v9, v1, 3, s28")
    for rb in range(1, 8):
        a("s_waitcnt vmcnt(%d)" % ((7 - rb) * 3))
        for i in range(6):
            a("v_pk_add_f32 %s, %s, %s" % (vr(32 + 2 * i, 2), vr(32 + 2 * i, 2), vr(32 + rb * 12 + 2 * i, 2)))
    for i in range(6):
        a("v_cvt_pk_bf16_f32 v%d, v%d, v%d" % (16 + i, 32 + 2 * i, 33 + 2 * i))
    for i in range(3):
        a("ds_write_b64 v8, %s offset:%d" % (vr(16 + 2 * i, 2), i * 512))
    a("s_waitcnt lgkmcnt(0)")
    a("s_barrier")
    stamp(a, 11)
    for t in range(3):
        for kk in range(2):
            for hf in range(2):
                fq = 2 * kk + hf
                tile = fq * 2 + t if t < 2 else 8 + fq
                a("ds_read_b64 %s, v9 offset:%d" % (vr(32 + (t * 2 + kk) * 4 + hf * 2, 2), tile * 512))
    a("s_movk_i32 s28, 80")
    a("v_mul_lo_u32 v5, v3, s28")
    a("v_lshl_add_u32 v5, v4, 3, v5")
    a("v_add_u32 v5, s50, v5")
    a("v_lshrrev_b32 v12, 2, v1")
    a("v_mul_lo_u32 v6, v12, s28")
    a("v_and_b32 v13, 3, v1")
    a("v_lshl_add_u32 v6, v13, 4, v6")
    a("v_add_u32 v6, s50, v6")
    a("s_lshl_b32 s28, s23, 8")
    a("s_lshl_b32 s29, s21, 6")
    a("s_add_u32 s28, s28, s29")
    a("v_add_u32 v12, s28, v12")
    a("s_movk_i32 s28, 9216")
    a("v_mul_lo_u32 v12, v12, s28")
    a("s_lshl_b32 s28, s25, 1")
    a("s_add_u32 s28, s28, s22")
    a("s_lshl_b32 s28, s28, 6")
    a("s_add_u32 s28, s28, 7168")
    a("v_lshl_add_u32 v13, v13, 4, s28")
    a("v_add_u32 v12, v12, v13")
    a("s_waitcnt lgkmcnt(0)")
    for kk in range(2):
        for mt in range(4):
            for t in range(3):
                c = 64 + (mt * 3 + t) * 4
                a("v_mfma_f32_16x16x32_bf16 %s, %s, %s, %s" % (vr(c, 4), vr(32 + (t * 2 + kk) * 4, 4), vr(acc(mt, 0) + kk * 4, 4), vr(c, 4) if kk else "0"))
    a("s_nop 7")
    R = range(4)
    for mt in R:
        a("v_cvt_pk_bf16_f32 v%d, v%d, v%d" % (112 + 2 * mt, 72 + mt * 12, 72 + mt * 12))
    for mt in R:
        a("v_lshlrev_b32 v%d, 16, v%d" % (112 + 2 * mt, 112 + 2 * mt))
    for mt in R:
        a("v_add_f32 v%d, 0x358637bd, v%d" % (112 + 2 * mt, 112 + 2 * mt))
    for mt in R:
        a("v_cvt_pk_bf16_f32 v%d, v%d, v%d" % (112 + 2 * mt, 112 + 2 * mt, 112 + 2 * mt))
    for mt in R:
        a("v_lshlrev_b32 v%d, 16, v%d" % (112 + 2 * mt, 112 + 2 * mt))
    for mt in R:
        a("v_rcp_f32 v%d, v%d" % (112 + 2 * mt, 112 + 2 * mt))
    for mt in R:
        for i in range(4):
            a("v_cvt_pk_bf16_f32 v%d, v%d, v%d" % (16 + i, 64 + mt * 12 + 2 * i, 65 + mt * 12 + 2 * i))
        for i in range(4):
            a("v_lshlrev_b32 v%d, 16, v%d" % (64 + mt * 12 + 2 * i, 16 + i))
            a("v_and_b32 v%d, 0xffff0000, v%d" % (65 + mt * 12 + 2 * i, 16 + i))
        for i in range(4):
            a("v_pk_mul_f32 %s, %s, %s op_sel_hi:[1,0]" % (vr(64 + mt * 12 + 2 * i, 2), vr(64 + mt * 12 + 2 * i, 2), vr(112 + 2 * mt, 2)))
        for i in range(4):
            a("v_cvt_pk_bf16_f32 v%d, v%d, v%d" % (20 + (mt & 1) * 4 + i, 64 + mt * 12 + 2 * i, 65 + mt * 12 + 2 * i))
        for dt in range(2):
            a("ds_write_b64 v5, %s offset:%d" % (vr(20 + (mt & 1) * 4 + 2 * dt, 2), mt * 16 * 80 + dt * 32))
    a("s_waitcnt lgkmcnt(0)")
    for j in range(4):
        a("ds_read_b128 %s, v6 offset:%d" % (vr(32 + j * 4, 4), j * 16 * 80))
    for j in range(4):
        a("s_waitcnt lgkmcnt(%d)" % (3 - j))
        a("s_mov_b32 s28, 0x%x" % (j * 16 * 9216))
        a("buffer_store_dwordx4 %s, v12, s[40:43], s28 offen" % vr(32 + j * 4, 4))


def gen_apply(a):
    L = "apply_kernel"
    kernel_head(a, L)
    a("s_cmp_ge_u32 s2, 256")
    a("s_cbranch_scc1 ap_done")
    a("s_load_dwordx2 s[4:5], s[0:1], %d" % KA_WS)
    a("v_and_b32 v1, 63, v0")
    a("v_lshrrev_b32 v2, 6, v0")
    a("v_and_b32 v3, 15, v1")
    a("v_lshrrev_b32 v4, 4, v1")
    a("s_and_b32 s20, s2, 31")
    a("s_lshr_b32 s21, s2, 5")
    a("s_waitcnt lgkmcnt(0)")
    srd(a, 8, 4, WS_KV, SZ_KV)
    srd(a, 12, 4, WS_PQ, SZ_PQ)
    srd(a, 16, 4, WS_HC, SZ_HC)
    a("s_lshl_b32 s22, s20, 11")
    a("s_lshl_b32 s23, s21, 8")
    a("s_add_u32 s22, s22, s23")
    a("v_lshl_add_u32 v5, v2, 6, v3")
    a("v_add_u32 v5, s22, v5")
    a("v_lshlrev_b32 v5, 7, v5")
    a("v_lshl_add_u32 v5, v4, 4, v5")
    for st in range(4):
        for kk in range(2):
            if st < 2:
                a("buffer_load_dwordx4 %s, v5, s[12:15], 0 offen offset:%d" % (vr(64 + (st * 2 + kk) * 4, 4), st * 2048 + kk * 64))
            else:
                a("s_movk_i32 s24, 4096")
                a("buffer_load_dwordx4 %s, v5, s[12:15], s24 offen offset:%d" % (vr(64 + (st * 2 + kk) * 4, 4), (st - 2) * 2048 + kk * 64))
    a("s_lshl_b32 s22, s20, 14")
    a("v_lshlrev_b32 v6, 5, v0")
    a("v_add_u32 v6, s22, v6")
    for rb in range(8):
        a("s_mov_b32 s24, 0x%x" % (rb << 19))
        a("buffer_load_dwordx4 %s, v6, s[8:11], s24 offen" % vr(96 + rb * 8, 4))
        a("buffer_load_dwordx4 %s, v6, s[8:11], s24 offen offset:16" % vr(100 + rb * 8, 4))
    a("v_and_b32 v7, 7, v0")
    a("v_lshlrev_b32 v7, 5, v7")
    a("v_add_u32 v7, s22, v7")
    for rb in range(8):
        a("s_mov_b32 s24, 0x%x" % ((rb << 19) + 8192))
        a("buffer_load_dwordx4 %s, v7, s[8:11], s24 offen" % vr(160 + rb * 8, 4))
        a("buffer_load_dwordx4 %s, v7, s[8:11], s24 offen offset:16" % vr(164 + rb * 8, 4))
    a("s_waitcnt vmcnt(0)")
    for base in (96, 160):
        for rb in range(1, 8):
            for i in range(8):
                a("v_add_f32 v%d, v%d, v%d" % (base + i, base + i, base + rb * 8 + i))
    for i in range(4):
        a("v_cvt_pk_bf16_f32 v%d, v%d, v%d" % (8 + i, 96 + 2 * i, 97 + 2 * i))
        a("v_cvt_pk_bf16_f32 v%d, v%d, v%d" % (12 + i, 160 + 2 * i, 161 + 2 * i))
    a("v_lshlrev_b32 v6, 4, v0")
    a("ds_write_b128 v6, v[8:11]")
    a("v_and_b32 v7, 7, v0")
    a("v_lshlrev_b32 v7, 4, v7")
    a("ds_write_b128 v7, v[12:15] offset:4096")
    a("s_waitcnt lgkmcnt(0)")
    a("s_barrier")
    a("v_lshlrev_b32 v6, 7, v3")
    a("v_lshl_add_u32 v6, v4, 4, v6")
    a("v_lshlrev_b32 v7, 4, v4")
    for dt in range(2):
        for kk in range(2):
            a("ds_read_b128 %s, v6 offset:%d" % (vr(8 + (dt * 2 + kk) * 4, 4), dt * 2048 + kk * 64))
    for kk in range(2):
        a("ds_read_b128 %s, v7 offset:%d" % (vr(24 + kk * 4, 4), 4096 + kk * 64))
    a("s_lshl_b32 s23, s21, 8")
    a("v_lshl_add_u32 v5, v2, 6, v3")
    a("v_add_u32 v5, s23, v5")
    a("s_movk_i32 s24, 9216")
    a("v_mul_lo_u32 v5, v5, s24")
    a("s_lshl_b32 s23, s20, 6")
    a("s_add_u32 s23, s23, 7168")
    a("v_lshl_add_u32 v6, v4, 3, s23")
    a("v_add_u32 v5, v5, v6")
    a("s_waitcnt lgkmcnt(0)")
    for st in range(4):
        C = 96 + st * 12
        for t in range(3):
            a("v_mfma_f32_16x16x32_bf16 %s, %s, %s, 0" % (vr(C + t * 4, 4), vr(8 + t * 8, 4), vr(64 + st * 8, 4)))
        for t in range(3):
            a("v_mfma_f32_16x16x32_bf16 %s, %s, %s, %s" % (vr(C + t * 4, 4), vr(12 + t * 8, 4), vr(68 + st * 8, 4), vr(C + t * 4, 4)))
    a("s_nop 7")
    a("s_nop 7")
    for st in range(4):
        C = 96 + st * 12
        a("v_cvt_pk_bf16_f32 v32, v%d, v%d" % (C + 8, C + 8))
        a("v_lshlrev_b32 v32, 16, v32")
        a("v_add_f32 v32, 0x358637bd, v32")
        a("v_cvt_pk_bf16_f32 v32, v32, v32")
        a("v_lshlrev_b32 v32, 16, v32")
        a("v_rcp_f32 v32, v32")
        for i in range(4):
            bf16_round_pair(a, C + 2 * i, C + 2 * i + 1, 33)
        for i in range(8):
            a("v_mul_f32 v%d, v%d, v32" % (C + i, C + i))
        for i in range(4):
            a("v_cvt_pk_bf16_f32 v%d, v%d, v%d" % (40 + st * 4 + i, C + 2 * i, C + 2 * i + 1))
        a("buffer_store_dwordx2 %s, v5, s[16:19], 0 offen" % vr(40 + st * 4, 2))
        a("buffer_store_dwordx2 %s, v5, s[16:19], 0 offen offset:32" % vr(42 + st * 4, 2))
        if st < 3:
            a("v_add_u32 v5, %d, v5" % (16 * 9216))
    a.label("ap_done")
    a("s_endpgm")
    return L, 224


G2_ACC = 128
G2_FA = (32, 64)
G2_FB = (48, 80)
G2_VA = 16
G2_VB = (18, 19, 20, 21)
G2_N0 = 28
G2_DMAPOS = (1, 5, 9, 13)


def g2_mfmas(st):
    out = []
    for mt in range(4):
        for nt in range(4):
            c = G2_ACC + (mt * 4 + nt) * 4
            out.append("v_mfma_f32_16x16x32_bf16 %s, %s, %s, %s" % (
                vr(c, 4), vr(G2_FB[st] + nt * 4, 4), vr(G2_FA[st] + mt * 4, 4), vr(c, 4)))
    return out


def g2_reads(st, buf):
    out = []
    for mt in range(4):
        out.append(["ds_read_b128 %s, %s offset:%d" % (vr(G2_FA[st] + mt * 4, 4), vr(G2_VA), buf * 16384 + mt * 2048)])
    for nt in range(4):
        for rd in range(2):
            out.append(["ds_read_b64_tr_b16 %s, %s offset:%d" % (vr(G2_FB[st] + nt * 4 + rd * 2, 2), vr(G2_VB[nt]), buf * 16384 + rd * 1024)])
    return out


def g2_dmas(buf):
    out = [["s_cmp_eq_u32 s19, 0",
            "s_cselect_b32 s12, s30, s12",
            "s_cselect_b32 s13, s31, s13",
            "s_cselect_b32 s14, 0x%x, s14" % (D * D * 2),
            "s_cselect_b32 s17, 0, s17",
            "s_sub_u32 s19, s19, 1"]]
    for j in range(2):
        out.append(["s_add_u32 m0, s27, %d" % (buf * 16384 + j * 1024),
                    "s_nop 0",
                    "buffer_load_dwordx4 v%d, s[8:11], s16 offen lds" % (8 + j)])
    for j in range(2):
        out.append(["s_add_u32 m0, s27, %d" % (65536 + buf * 16384 + j * 1024),
                    "s_nop 0",
                    "buffer_load_dwordx4 v%d, s[12:15], s17 offen lds" % (12 + j)])
    out.append(["s_add_u32 s16, s16, 128", "s_add_u32 s17, s17, %d" % (64 * 2048)])
    return out


def g2_iter(a, i, dma, nxt, vm):
    slots = {}
    if dma and "NODMA" not in FLAGS:
        d = g2_dmas(i % 4)
        slots.setdefault(0, []).append(d[0])
        for j in range(4):
            slots.setdefault(G2_DMAPOS[j], []).append(d[1 + j])
        slots.setdefault(G2_DMAPOS[3], []).append(d[5])
    if nxt:
        r = g2_reads((i + 1) & 1, (i + 1) % 4)
        pos = [p for p in range(16) if p not in G2_DMAPOS][:12]
        for p, x in zip(pos, r):
            slots.setdefault(p, []).append(x)
    place(a, g2_mfmas(i & 1), slots)
    if nxt:
        if vm is None:
            a("s_waitcnt lgkmcnt(0)")
        else:
            a("s_waitcnt vmcnt(%d) lgkmcnt(0)" % vm)
        a("s_barrier")


def gen_gemm2(a):
    L = "gemm2_kernel"
    kernel_head(a, L)
    a("s_cmp_ge_u32 s2, 256")
    a("s_cbranch_scc1 g2_done")
    stamp(a, 0)
    stamp_rt(a, 6)
    a("s_load_dwordx2 s[4:5], s[0:1], %d" % KA_WS)
    a("s_load_dwordx2 s[6:7], s[0:1], %d" % KA_W2)
    a("s_load_dwordx2 s[30:31], s[0:1], %d" % KA_WO)
    a("s_load_dwordx2 s[32:33], s[0:1], %d" % KA_X)
    a("s_load_dwordx2 s[34:35], s[0:1], %d" % KA_B2)
    a("s_load_dwordx2 s[36:37], s[0:1], %d" % KA_OUT)
    g1_common_addr(a)
    a("s_and_b32 s21, s2, 7")
    a("s_lshr_b32 s23, s2, 7")
    a("s_bfe_u32 s24, s2, 0x20003")
    a("s_and_b32 s25, s21, 3")
    a("s_lshl_b32 s25, s25, 2")
    a("s_add_u32 s24, s24, s25")
    a("s_bfe_u32 s25, s2, 0x20005")
    a("s_lshr_b32 s26, s21, 2")
    a("s_lshl_b32 s26, s26, 2")
    a("s_add_u32 s25, s25, s26")
    if "SAMETILE" in FLAGS:
        a("s_mov_b32 s24, 0")
        a("s_mov_b32 s25, 0")
        a("s_mov_b32 s23, 0")
    a("s_lshr_b32 s21, s20, 2")
    a("s_bfe_u32 s22, s20, 0x10001")
    a("s_and_b32 s26, s20, 1")
    a("s_lshl_b32 s27, s20, 11")
    a("v_lshrrev_b32 v5, 3, v1")
    a("s_lshl_b32 s28, s24, 7")
    a("s_lshl_b32 s29, s20, 4")
    a("s_add_u32 s28, s28, s29")
    a("v_add_u32 v5, s28, v5")
    a("s_movk_i32 s28, 9216")
    a("v_mul_lo_u32 v5, v5, s28")
    a("v_and_b32 v6, 7, v1")
    for j in range(2):
        a("v_add_u32 v7, %d, v4" % (4 * j))
        a("v_and_b32 v7, 7, v7")
        a("v_xor_b32 v7, v7, v6")
        a("v_lshl_add_u32 v7, v7, 4, v5")
        a("v_add_u32 v%d, %d, v7" % (8 + j, j * 8 * 9216))
    a("s_lshl_b32 s28, s20, 3")
    a("v_add_u32 v5, s28, v4")
    a("v_lshlrev_b32 v5, 11, v5")
    a("s_lshl_b32 s28, s25, 8")
    a("v_add_u32 v5, s28, v5")
    a("s_lshl_b32 s28, s26, 2")
    a("v_or_b32 v7, s28, v4")
    a("v_lshlrev_b32 v7, 1, v7")
    a("v_xor_b32 v7, v7, v3")
    a("v_lshl_add_u32 v12, v7, 4, v5")
    a("v_add_u32 v13, %d, v12" % (4 * 2048))
    a("s_lshl_b32 s28, s21, 2")
    a("v_add_u32 v5, s28, v4")
    a("v_lshrrev_b32 v6, 1, v3")
    a("v_xor_b32 v5, v5, v6")
    a("s_lshl_b32 s28, s22, 6")
    a("v_add_u32 v6, s28, v3")
    a("v_lshlrev_b32 v6, 7, v6")
    a("v_lshl_add_u32 v%d, v5, 4, v6" % G2_VA)
    a("v_bfe_u32 v5, v1, 2, 2")
    a("v_and_b32 v6, 1, v4")
    a("v_lshl_or_b32 v6, v6, 2, v5")
    a("v_lshl_add_u32 v5, v4, 3, v5")
    a("s_lshl_b32 s28, s21, 5")
    a("v_add_u32 v5, s28, v5")
    a("v_lshlrev_b32 v5, 8, v5")
    a("v_and_b32 v7, 3, v1")
    a("v_lshl_add_u32 v5, v7, 3, v5")
    a("v_add_u32 v5, 0x10000, v5")
    for nt in range(4):
        a("s_lshl_b32 s28, s26, 2")
        a("s_add_u32 s28, s28, %d" % nt)
        a("v_xor_b32 v7, s28, v6")
        a("v_lshl_add_u32 v%d, v7, 5, v5" % G2_VB[nt])
    a("s_waitcnt lgkmcnt(0)")
    srd(a, 8, 4, WS_HC, SZ_HC)
    srd(a, 12, 6, 0, F * D * 2)
    a("s_and_b32 s31, s31, 0xffff")
    a("s_mul_i32 s16, s23, %d" % (G2_N0 * 64 * 2))
    a("s_mul_i32 s17, s23, %d" % (G2_N0 * 64 * 2048))
    a("s_mov_b32 s19, 1000")
    a("s_mov_b32 s18, %d" % ((G2_N0 - 4) // 4))
    a("s_cmp_eq_u32 s23, 1")
    a("s_cselect_b32 s19, %d, s19" % (56 - G2_N0))
    a("s_cselect_b32 s18, %d, s18" % ((72 - G2_N0 - 4) // 4))
    srd(a, 44, 4, WS_FL, SZ_FL)
    srd(a, 40, 4, WS_P, SZ_P)
    a("s_lshl_b32 s28, s24, 3")
    a("s_add_u32 s28, s28, s25")
    a("s_lshl_b32 s38, s28, 8")
    a("s_lshl_b32 s39, s28, 16")
    a("s_lshl_b32 s28, s20, 13")
    a("s_add_u32 s39, s39, s28")
    a("v_mov_b32 v22, s38")
    a("v_lshlrev_b32 v24, 4, v1")
    a("v_add_u32 v24, s39, v24")
    a("s_movk_i32 s39, 4096")
    srd(a, 48, 32, 0, S * D * 2)
    srd(a, 52, 34, 0, D * 2)
    srd(a, 56, 36, 0, S * D * 2)
    a("s_lshl_b32 s28, s24, 7")
    a("s_lshl_b32 s29, s20, 4")
    a("s_add_u32 s28, s28, s29")
    a("v_add_u32 v25, s28, v4")
    a("v_lshlrev_b32 v25, 11, v25")
    a("s_lshl_b32 s28, s25, 8")
    a("v_lshl_add_u32 v26, v3, 4, s28")
    a("v_add_u32 v25, v25, v26")
    for st in range(4):
        for f in g2_dmas(st):
            for x in f:
                a(x)
    for i in range(64):
        a("v_mov_b32 v%d, 0" % (G2_ACC + i))
    stamp(a, 1)
    a("s_waitcnt vmcnt(12)")
    a("s_barrier")
    stamp(a, 2)
    for f in g2_reads(0, 0):
        for x in f:
            a(x)
    a("s_waitcnt vmcnt(8) lgkmcnt(0)")
    a("s_barrier")
    a.label("g2_loop")
    for i in range(4):
        g2_iter(a, i, True, True, 8)
    a("s_sub_u32 s18, s18, 1")
    a("s_cmp_lg_u32 s18, 0")
    a("s_cbranch_scc1 g2_loop")
    stamp(a, 8)
    a("buffer_load_dword v23, v22, s[44:47], 0 offen sc1")
    g2_iter(a, 0, False, True, 5)
    a("s_cmp_eq_u32 s23, 0")
    a("s_cbranch_scc1 g2_pubtail")
    for j in range(4):
        a("s_mov_b32 s38, 0x%x" % (j * 4 * 2048))
        a("buffer_load_dwordx4 %s, v25, s[48:51], s38 offen" % vr(224 + j * 4, 4))
    a("buffer_load_dwordx4 v[240:243], v26, s[52:55], 0 offen")
    g2_iter(a, 1, False, True, 5)
    stamp(a, 7)
    a("s_mov_b32 s29, 0")
    a("s_branch g2_chk")
    a.label("g2_spin")
    a("buffer_load_dword v23, v22, s[44:47], 0 offen sc1")
    a("s_waitcnt vmcnt(0)")
    a.label("g2_chk")
    a("v_readfirstlane_b32 s28, v23")
    a("s_add_u32 s29, s29, 1")
    a("s_cmp_ge_u32 s28, 1")
    a("s_cbranch_scc1 g2_go")
    a("s_sleep 2")
    a("s_cmp_lt_u32 s29, 0x100000")
    a("s_cbranch_scc1 g2_spin")
    a.label("g2_go")
    stamp(a, 9)
    for t in range(8):
        a("buffer_load_dwordx4 %s, v24, s[40:43], %s offen offset:%d sc1" % (vr(192 + t * 4, 4), "s39" if t >= 4 else "0", (t % 4) * 1024))
    a("s_branch g2_tail")
    a.label("g2_pubtail")
    g2_iter(a, 1, False, True, 0)
    a.label("g2_tail")
    g2_iter(a, 2, False, True, None)
    g2_iter(a, 3, False, False, None)
    stamp(a, 3)
    a("s_nop 7")
    a("s_barrier")
    a("s_mul_i32 s28, s21, %d" % (128 * 528))
    a("s_mul_i32 s29, s22, %d" % (64 * 528))
    a("s_add_u32 s28, s28, s29")
    a("s_lshl_b32 s29, s26, 8")
    a("s_add_u32 s28, s28, s29")
    a("s_movk_i32 s29, 528")
    a("v_mul_lo_u32 v6, v3, s29")
    a("v_lshl_add_u32 v6, v4, 4, v6")
    a("v_add_u32 v6, s28, v6")
    for mt in range(4):
        for nt in range(4):
            a("ds_write_b128 v6, %s offset:%d" % (vr(G2_ACC + (mt * 4 + nt) * 4, 4), mt * 16 * 528 + nt * 64))
    a("s_lshl_b32 s28, s20, 4")
    a("v_add_u32 v7, s28, v4")
    a("v_mul_lo_u32 v7, v7, s29")
    a("v_lshl_add_u32 v7, v3, 5, v7")
    a("v_add_u32 v6, %d, v7" % (128 * 528))
    a("s_waitcnt lgkmcnt(0)")
    a("s_barrier")
    for j in range(4):
        for hf in range(2):
            a("ds_read_b128 %s, v7 offset:%d" % (vr(128 + j * 8 + hf * 4, 4), j * 4 * 528 + hf * 16))
            a("ds_read_b128 %s, v6 offset:%d" % (vr(32 + j * 8 + hf * 4, 4), j * 4 * 528 + hf * 16))
    a("s_waitcnt lgkmcnt(0)")
    for i in range(32):
        a("v_add_f32 v%d, v%d, v%d" % (128 + i, 128 + i, 32 + i))
    a("s_cmp_lg_u32 s23, 0")
    a("s_cbranch_scc1 g2_second")
    for t in range(8):
        a("buffer_store_dwordx4 %s, v24, s[40:43], %s offen offset:%d sc1" % (vr(128 + t * 4, 4), "s39" if t >= 4 else "0", (t % 4) * 1024))
    a("s_waitcnt vmcnt(0)")
    stamp(a, 8)
    a("s_barrier")
    a("s_cmp_lg_u32 s20, 0")
    a("s_cbranch_scc1 g2_fin")
    a("v_mov_b32 v23, 1")
    a("s_mov_b64 exec, 1")
    a("buffer_atomic_add v23, v22, s[44:47], 0 offen sc1")
    a("s_mov_b64 exec, -1")
    a("s_branch g2_fin")
    a.label("g2_second")
    a("s_waitcnt vmcnt(0)")
    for p in range(4):
        a("v_lshlrev_b32 v%d, 16, v%d" % (32 + 2 * p, 240 + p))
        a("v_and_b32 v%d, 0xffff0000, v%d" % (33 + 2 * p, 240 + p))
    for j in range(4):
        for p in range(4):
            c = 128 + j * 8 + 2 * p
            a("v_lshlrev_b32 v12, 16, v%d" % (224 + j * 4 + p))
            a("v_and_b32 v13, 0xffff0000, v%d" % (224 + j * 4 + p))
            a("v_add_f32 v12, v12, v%d" % (32 + 2 * p))
            a("v_add_f32 v13, v13, v%d" % (33 + 2 * p))
            a("v_add_f32 v%d, v%d, v%d" % (c, c, 192 + j * 8 + 2 * p))
            a("v_add_f32 v%d, v%d, v%d" % (c + 1, c + 1, 193 + j * 8 + 2 * p))
            a("v_add_f32 v%d, v%d, v12" % (c, c))
            a("v_add_f32 v%d, v%d, v13" % (c + 1, c + 1))
            a("v_cvt_pk_bf16_f32 v%d, v%d, v%d" % (64 + j * 4 + p, c, c + 1))
        a("s_mov_b32 s38, 0x%x" % (j * 4 * 2048))
        a("buffer_store_dwordx4 %s, v25, s[56:59], s38 offen" % vr(64 + j * 4, 4))
    a.label("g2_fin")
    if "STAMP" in FLAGS:
        a("s_waitcnt vmcnt(0)")
    stamp(a, 4)
    stamp_rt(a, 5)
    stamp_flush(a, 10, 1)
    a.label("g2_done")
    a("s_endpgm")
    return L, 248


def gen_combine(a):
    L = "combine_kernel"
    kernel_head(a, L)
    a("s_cmp_ge_u32 s2, 1024")
    a("s_cbranch_scc1 cb_done")
    a("s_load_dwordx2 s[4:5], s[0:1], %d" % KA_WS)
    a("s_load_dwordx2 s[6:7], s[0:1], %d" % KA_X)
    a("s_load_dwordx2 s[20:21], s[0:1], %d" % KA_B2)
    a("s_load_dwordx2 s[22:23], s[0:1], %d" % KA_OUT)
    a("s_lshl_b32 s3, s2, 8")
    a("v_add_u32 v1, s3, v0")
    a("v_lshlrev_b32 v2, 5, v1")
    a("v_lshlrev_b32 v3, 4, v1")
    a("v_and_b32 v4, 127, v1")
    a("v_lshlrev_b32 v4, 4, v4")
    a("s_waitcnt lgkmcnt(0)")
    srd(a, 8, 4, WS_P, SZ_P)
    srd(a, 12, 6, 0, S * D * 2)
    srd(a, 16, 20, 0, D * 2)
    srd(a, 24, 22, 0, S * D * 2)
    a("s_mov_b32 s28, 0x800000")
    a("buffer_load_dwordx4 v[8:11], v2, s[8:11], 0 offen")
    a("buffer_load_dwordx4 v[12:15], v2, s[8:11], 0 offen offset:16")
    a("buffer_load_dwordx4 v[16:19], v2, s[8:11], s28 offen")
    a("buffer_load_dwordx4 v[20:23], v2, s[8:11], s28 offen offset:16")
    a("buffer_load_dwordx4 v[24:27], v3, s[12:15], 0 offen")
    a("buffer_load_dwordx4 v[28:31], v4, s[16:19], 0 offen")
    a("s_waitcnt vmcnt(0)")
    for i in range(8):
        a("v_add_f32 v%d, v%d, v%d" % (8 + i, 8 + i, 16 + i))
    for i in range(4):
        a("v_lshlrev_b32 v32, 16, v%d" % (24 + i))
        a("v_and_b32 v33, 0xffff0000, v%d" % (24 + i))
        a("v_lshlrev_b32 v34, 16, v%d" % (28 + i))
        a("v_and_b32 v35, 0xffff0000, v%d" % (28 + i))
        a("v_add_f32 v32, v32, v34")
        a("v_add_f32 v33, v33, v35")
        a("v_add_f32 v%d, v%d, v32" % (8 + 2 * i, 8 + 2 * i))
        a("v_add_f32 v%d, v%d, v33" % (9 + 2 * i, 9 + 2 * i))
        a("v_cvt_pk_bf16_f32 v%d, v%d, v%d" % (36 + i, 8 + 2 * i, 9 + 2 * i))
    a("buffer_store_dwordx4 v[36:39], v3, s[24:27], 0 offen")
    a.label("cb_done")
    a("s_endpgm")
    return L, 40


def main():
    a = Asm()
    hdr = open("cdna_kernels/%s.s.ref" % NAME).read().split("\n")
    head = [l for l in hdr if l.startswith(";") and "@launch" not in l and "Override launch" not in l and "grid=ceil" not in l]
    launches = [
        "; @launch kernel=ln_kernel grid=(512,1,1) block=(256,1,1) lds=0",
        "; @launch kernel=gemm1_kernel grid=(256,1,1) block=(512,1,1) lds=131072",
        "; @launch kernel=gemm2_kernel grid=(256,1,1) block=(512,1,1) lds=135168",
    ]
    a.raw("\n".join(head + launches))
    a.raw('.amdgcn_target "amdgcn-amd-amdhsa--gfx950"')
    a.raw(".text")
    descs = []
    for g in (gen_ln, gen_gemm1, gen_gemm2):
        label, v = g(a)
        descs.append(kernel_desc(label, v))
    a.raw('.section .rodata,"a"')
    for d in descs:
        a.raw(".p2align 6")
        a.raw(d)
    open(OUT, "w").write(a.text())
    print("wrote", OUT, len(a.lines), "lines")


if __name__ == "__main__":
    main()
```

```python
import sys
import re
import os
FLAGS = set(os.environ.get("FLAGS", "").split(","))

NAME = "parallel_sum__linear_kernel_hedgehog__dense_activation_gelu__prompt"
OUT = os.environ.get("OUT", "cdna_kernels/%s.s" % NAME)

S, D, H, DH, F = 2048, 1024, 32, 32, 3584
KCAT = F + D
KA_X, KA_WQKV, KA_WPHI, KA_WO, KA_BX, KA_W1, KA_B1, KA_W2, KA_B2, KA_OUT, KA_DBG, KA_WS = [8 * i for i in range(12)]
WS_XN = 0x0000000
WS_HC = 0x0400000
WS_PQ = 0x1800000
WS_KV = 0x2000000
WS_P = 0x2400000
WS_FL = 0x3800000
SZ_FL = 65536
SZ_XN = S * D * 2
SZ_HC = S * KCAT * 2
SZ_PQ = H * S * 64 * 2
SZ_KV = 8 * 32 * 16384
SZ_P = S * D * 4

LOG2E = 0x3fb8aa3b
PF_ROWS = int(os.environ.get("PF_ROWS", "256"))


class Asm:
    def __init__(self):
        self.lines = []

    def __call__(self, s):
        m = re.search(r"offset:(\d+)", s)
        if m:
            lim = 4096 if s.startswith("buffer_") else 65536
            assert int(m.group(1)) < lim, s
        self.lines.append("    " + s)

    def label(self, s):
        self.lines.append(s + ":")

    def raw(self, s):
        self.lines.append(s)

    def text(self):
        return "\n".join(self.lines) + "\n"


def vr(b, n=1):
    return "v%d" % b if n == 1 else "v[%d:%d]" % (b, b + n - 1)


def sr(b, n=1):
    return "s%d" % b if n == 1 else "s[%d:%d]" % (b, b + n - 1)


def srd(a, d, base, off, size):
    if off:
        a("s_add_u32 s%d, s%d, 0x%x" % (d, base, off))
        a("s_addc_u32 s%d, s%d, 0" % (d + 1, base + 1))
    else:
        a("s_mov_b32 s%d, s%d" % (d, base))
        a("s_mov_b32 s%d, s%d" % (d + 1, base + 1))
    a("s_and_b32 s%d, s%d, 0xffff" % (d + 1, d + 1))
    a("s_mov_b32 s%d, 0x%x" % (d + 2, size))
    a("s_mov_b32 s%d, 0x00020000" % (d + 3))


def kernel_head(a, label):
    a.raw(".globl %s" % label)
    a.raw(".p2align 8")
    a.raw(".type %s,@function" % label)
    a.label(label)


def kernel_desc(label, vgpr, sgpr=102):
    acc = (vgpr + 3) // 4 * 4
    return """.amdhsa_kernel %s
  .amdhsa_next_free_vgpr %d
  .amdhsa_next_free_sgpr %d
  .amdhsa_accum_offset %d
  .amdhsa_group_segment_fixed_size 0
  .amdhsa_kernarg_size 96
  .amdhsa_user_sgpr_count 2
  .amdhsa_user_sgpr_kernarg_segment_ptr 1
  .amdhsa_system_sgpr_workgroup_id_x 1
.end_amdhsa_kernel
""" % (label, vgpr, sgpr, acc)


def stamp(a, i):
    if "STAMP" in FLAGS:
        a("s_memtime s[%d:%d]" % (60 + 2 * i, 61 + 2 * i))


def stamp_rt(a, i):
    if "STAMP" in FLAGS:
        a("s_memrealtime s[%d:%d]" % (60 + 2 * i, 61 + 2 * i))


def stamp_flush(a, n, kidx):
    if "STAMP" not in FLAGS:
        return
    a("s_waitcnt lgkmcnt(0)")
    srd(a, 88, 4, 0x8000000 + kidx * 0x100000, 0x100000)
    a("s_lshl_b32 s92, s2, 3")
    a("s_add_u32 s92, s92, s20")
    a("s_lshl_b32 s92, s92, 7")
    a("v_mov_b32 v2, s92")
    for i in range(n):
        a("v_mov_b32 v4, s%d" % (60 + 2 * i))
        a("v_mov_b32 v5, s%d" % (61 + 2 * i))
        a("buffer_store_dwordx2 v[4:5], v2, s[88:91], 0 offen offset:%d" % (8 * i))
        a("s_nop 1")


def allreduce64(a, op, v, t):
    for ctl in ("quad_perm:[1,0,3,2]", "quad_perm:[2,3,0,1]", "row_half_mirror", "row_mirror"):
        a("s_nop 1")
        a("%s_dpp %s, %s, %s %s row_mask:0xf bank_mask:0xf" % (op, vr(v), vr(v), vr(v), ctl))
    for sw in ("v_permlane16_swap_b32", "v_permlane32_swap_b32"):
        a("v_mov_b32 %s, %s" % (vr(t), vr(v)))
        a("s_nop 1")
        a("%s %s, %s" % (sw, vr(v), vr(t)))
        a("s_nop 1")
        a("%s %s, %s, %s" % (op, vr(v), vr(v), vr(t)))


def gen_ln(a):
    L = "ln_kernel"
    kernel_head(a, L)
    a("s_cmp_ge_u32 s2, 512")
    a("s_cbranch_scc1 ln_done")
    a("s_load_dwordx2 s[4:5], s[0:1], %d" % KA_X)
    a("s_load_dwordx2 s[6:7], s[0:1], %d" % KA_WS)
    a("s_load_dwordx2 s[20:21], s[0:1], %d" % KA_WQKV)
    a("s_load_dwordx2 s[22:23], s[0:1], %d" % KA_W1)
    a("v_lshrrev_b32 v1, 6, v0")
    a("v_and_b32 v2, 63, v0")
    a("s_lshl_b32 s3, s2, 2")
    a("v_add_u32 v1, s3, v1")
    a("v_lshlrev_b32 v3, 12, v1")
    a("v_lshl_add_u32 v3, v2, 6, v3")
    a("v_lshlrev_b32 v1, 11, v1")
    a("v_lshl_add_u32 v1, v2, 4, v1")
    a("s_waitcnt lgkmcnt(0)")
    srd(a, 8, 4, 0, SZ_XN)
    srd(a, 12, 6, WS_XN, SZ_XN)
    a("buffer_load_dwordx4 v[4:7], v1, s[8:11], 0 offen")
    a("buffer_load_dwordx4 v[8:11], v1, s[8:11], 0 offen offset:1024")
    if "NOPF" not in FLAGS:
        srd(a, 24, 20, 0, PF_ROWS * 3 * D * 2)
        srd(a, 28, 22, 0, PF_ROWS * F * 2)
        a("buffer_load_dword v39, v3, s[24:27], 0 offen")
        a("buffer_load_dword v39, v3, s[28:31], 0 offen")
    a("s_cmp_ge_u32 s2, 16")
    a("s_cbranch_scc1 ln_nz")
    srd(a, 16, 6, WS_FL, SZ_FL)
    a("s_lshl_b32 s3, s2, 12")
    a("v_lshl_add_u32 v12, v0, 4, s3")
    for i in range(4):
        a("v_mov_b32 v%d, 0" % (16 + i))
    a("buffer_store_dwordx4 v[16:19], v12, s[16:19], 0 offen")
    a("s_waitcnt vmcnt(3)")
    a.label("ln_nz")
    a("s_waitcnt vmcnt(%d)" % (0 if "NOPF" in FLAGS else 2))
    for i in range(8):
        a("v_lshlrev_b32 v%d, 16, v%d" % (16 + 2 * i, 4 + i))
        a("v_and_b32 v%d, 0xffff0000, v%d" % (17 + 2 * i, 4 + i))
    a("v_add_f32 v32, v16, v17")
    for i in range(2, 16):
        a("v_add_f32 v32, v32, v%d" % (16 + i))
    allreduce64(a, "v_add_f32", 32, 33)
    a("v_mul_f32 v32, 0x3a800000, v32")
    a("v_sub_f32 v34, v16, v32")
    a("v_mul_f32 v35, v34, v34")
    for i in range(1, 16):
        a("v_sub_f32 v34, v%d, v32" % (16 + i))
        a("v_fmac_f32 v35, v34, v34")
    allreduce64(a, "v_add_f32", 35, 33)
    a("v_mul_f32 v35, 0x3a800000, v35")
    a("v_cvt_pk_bf16_f32 v36, v32, v35")
    a("v_lshlrev_b32 v32, 16, v36")
    a("v_and_b32 v35, 0xffff0000, v36")
    a("v_add_f32 v35, 0x3727c5ac, v35")
    a("v_cvt_pk_bf16_f32 v36, v35, v35")
    a("v_lshlrev_b32 v35, 16, v36")
    a("v_sqrt_f32 v35, v35")
    a("s_nop 0")
    a("v_cvt_pk_bf16_f32 v36, v35, v35")
    a("v_lshlrev_b32 v35, 16, v36")
    a("v_rcp_f32 v35, v35")
    a("s_nop 0")
    for i in range(8):
        a("v_sub_f32 v%d, v%d, v32" % (16 + 2 * i, 16 + 2 * i))
        a("v_sub_f32 v%d, v%d, v32" % (17 + 2 * i, 17 + 2 * i))
        a("v_cvt_pk_bf16_f32 v36, v%d, v%d" % (16 + 2 * i, 17 + 2 * i))
        a("v_lshlrev_b32 v37, 16, v36")
        a("v_and_b32 v38, 0xffff0000, v36")
        a("v_mul_f32 v37, v37, v35")
        a("v_mul_f32 v38, v38, v35")
        a("v_cvt_pk_bf16_f32 v%d, v37, v38" % (4 + i))
    a("buffer_store_dwordx4 v[4:7], v1, s[12:15], 0 offen")
    a("buffer_store_dwordx4 v[8:11], v1, s[12:15], 0 offen offset:1024")
    a.label("ln_done")
    a("s_endpgm")
    return L, 40


def interleave(a, mfmas, fillers):
    n = len(mfmas)
    nf = len(fillers)
    fi = 0
    for i, m in enumerate(mfmas):
        a(m)
        want = ((i + 1) * nf + n - 1) // n if nf <= n else ((i + 1) * nf) // n
        want = min(nf, max(want, min(nf, i + 1)))
        while fi < want:
            for x in fillers[fi]:
                a(x)
            fi += 1
    while fi < nf:
        for x in fillers[fi]:
            a(x)
        fi += 1


def place(a, mfmas, slots):
    for i, m in enumerate(mfmas):
        a(m)
        for grp in slots.get(i, []):
            for x in grp:
                a(x)


class Gemm:
    def __init__(self, a, MT, NT, acc, fragA, fragB, vA, vB, voffA, voffB,
                 orient, sM0, sOffA, sOffB, srdA, srdB, stepA, stepB):
        self.__dict__.update(locals())

    def mfmas(self, st):
        out = []
        for mt in range(self.MT):
            for nt in range(self.NT):
                c = self.acc + (mt * self.NT + nt) * 4
                fa = self.fragA[st] + mt * 4
                fb = self.fragB[st] + nt * 4
                x, y = (fb, fa) if self.orient(nt) else (fa, fb)
                out.append("v_mfma_f32_16x16x32_bf16 %s, %s, %s, %s" % (vr(c, 4), vr(x, 4), vr(y, 4), vr(c, 4)))
        return out

    def reads(self, st, buf):
        out = []
        for mt in range(self.MT):
            out.append(["ds_read_b128 %s, %s offset:%d" % (vr(self.fragA[st] + mt * 4, 4), vr(self.vA), buf * 16384 + mt * 1024)])
        for nt in range(self.NT):
            for rd in range(2):
                out.append(["ds_read_b64_tr_b16 %s, %s offset:%d" % (vr(self.fragB[st] + nt * 4 + rd * 2, 2), vr(self.vB[nt]), buf * 16384 + rd * 2048)])
        return out

    def dmas(self, buf):
        out = []
        for j in range(2):
            out.append(["s_add_u32 m0, s%d, %d" % (self.sM0, buf * 16384 + j * 1024),
                        "s_nop 0",
                        "buffer_load_dwordx4 %s, %s, s%d offen lds" % (vr(self.voffA + j), sr(self.srdA, 4), self.sOffA)])
        for j in range(2):
            out.append(["s_add_u32 m0, s%d, %d" % (self.sM0, 65536 + buf * 16384 + j * 1024),
                        "s_nop 0",
                        "buffer_load_dwordx4 %s, %s, s%d offen lds" % (vr(self.voffB + j), sr(self.srdB, 4), self.sOffB)])
        out.append(["s_add_u32 s%d, s%d, %d" % (self.sOffA, self.sOffA, self.stepA),
                    "s_add_u32 s%d, s%d, %d" % (self.sOffB, self.sOffB, self.stepB)])
        return out

    def pf(self):
        return ["buffer_load_dword v30, v31, s[40:43], s19 offen",
                "s_add_u32 s19, s19, 0x80000"]

    def iteration(self, i, dma, nxt, vm):
        a = self.a
        mf = self.mfmas(i & 1)
        n = len(mf)
        dpos = [1 + (j * (n - 2)) // 4 for j in range(4)]
        slots = {}
        if dma and "NODMA" not in FLAGS:
            d = self.dmas(i % 4)
            for j in range(4):
                slots.setdefault(dpos[j], []).append(d[j])
            slots.setdefault(dpos[3], []).append(d[4])
            slots.setdefault(dpos[3] + 1, []).append(self.pf())
        if nxt:
            r = self.reads((i + 1) & 1, (i + 1) % 4)
            pos = [p for p in range(n) if p not in dpos][:len(r)]
            for p, x in zip(pos, r):
                slots.setdefault(p, []).append(x)
        place(a, mf, slots)
        if nxt:
            if vm is None:
                a("s_waitcnt lgkmcnt(0)")
            else:
                a("s_waitcnt vmcnt(%d) lgkmcnt(0)" % vm)
            a("s_barrier")

    def run(self, nstages, tag, sCnt):
        a = self.a
        a("s_lshl_b32 s28, s23, 4")
        a("s_add_u32 s28, s28, s25")
        a("s_lshl_b32 s28, s28, 3")
        a("s_add_u32 s28, s28, s20")
        a("s_lshl_b32 s28, s28, 9")
        a("v_lshl_add_u32 v31, v1, 6, s28")
        a("v_cmp_gt_u32 vcc, 8, v1")
        a("v_mov_b32 v29, 0x7f000000")
        a("s_nop 0")
        a("v_cndmask_b32 v31, v29, v31, vcc")
        a("s_mov_b32 s19, 0x%x" % (PF_ROWS * (self.stepB // 32)))
        for i in range(4):
            a("s_mov_b32 s%d, s%d" % (40 + i, self.srdB + i))
        for st in range(4):
            for f in self.dmas(st):
                for x in f:
                    a(x)
            if st >= 2:
                for x in self.pf():
                    a(x)
        for i in range(self.MT * self.NT * 4):
            a("v_mov_b32 v%d, 0" % (self.acc + i))
        stamp(a, 1)
        a("s_waitcnt vmcnt(14)")
        a("s_barrier")
        stamp(a, 2)
        for f in self.reads(0, 0):
            for x in f:
                a(x)
        a("s_waitcnt vmcnt(10) lgkmcnt(0)")
        a("s_barrier")
        a("s_mov_b32 s%d, %d" % (sCnt, (nstages - 4) // 4))
        a.label(tag + "_loop")
        a("s_cmp_eq_u32 s%d, 4" % sCnt)
        a("s_cselect_b32 s40, s44, s40")
        a("s_cselect_b32 s41, s45, s41")
        a("s_cselect_b32 s42, s46, s42")
        a("s_cselect_b32 s19, 0, s19")
        for i in range(4):
            self.iteration(i, True, True, 11)
        a("s_sub_u32 s%d, s%d, 1" % (sCnt, sCnt))
        a("s_cmp_lg_u32 s%d, 0" % sCnt)
        a("s_cbranch_scc1 %s_loop" % tag)
        self.iteration(0, False, True, 6)
        self.iteration(1, False, True, 1)
        self.iteration(2, False, True, None)
        self.iteration(3, False, False, None)
        stamp(a, 3)


G1_ACC = 128
G1_FA = (32, 76)
G1_FB = (48, 92)
G1_VOA, G1_VOB = 8, 12
G1_VA = 16
G1_VB = (18, 19, 20, 21, 22, 23, 24)
G1_X = 240


def g1_common_addr(a):
    a("v_and_b32 v1, 63, v0")
    a("v_lshrrev_b32 v2, 6, v0")
    a("s_nop 0")
    a("v_readfirstlane_b32 s20, v2")
    a("v_and_b32 v3, 15, v1")
    a("v_lshrrev_b32 v4, 4, v1")


def gen_gemm1(a):
    L = "gemm1_kernel"
    kernel_head(a, L)
    a("s_cmp_ge_u32 s2, 256")
    a("s_cbranch_scc1 g1_done")
    stamp(a, 0)
    stamp_rt(a, 6)
    a("s_load_dwordx2 s[4:5], s[0:1], %d" % KA_WS)
    a("s_load_dwordx2 s[6:7], s[0:1], %d" % KA_WQKV)
    a("s_load_dwordx2 s[30:31], s[0:1], %d" % KA_W1)
    a("s_load_dwordx2 s[32:33], s[0:1], %d" % KA_WPHI)
    a("s_load_dwordx2 s[34:35], s[0:1], %d" % KA_B1)
    a("s_load_dwordx2 s[44:45], s[0:1], %d" % KA_WO)
    a("s_load_dwordx2 s[48:49], s[0:1], %d" % KA_W2)
    g1_common_addr(a)
    a("s_and_b32 s21, s2, 7")
    a("s_lshr_b32 s22, s2, 3")
    a("s_and_b32 s23, s21, 1")
    a("s_lshl_b32 s23, s23, 2")
    a("s_and_b32 s24, s22, 3")
    a("s_add_u32 s23, s23, s24")
    a("s_lshr_b32 s24, s22, 2")
    a("s_lshr_b32 s25, s21, 1")
    a("s_lshl_b32 s25, s25, 2")
    a("s_and_b32 s26, s24, 3")
    a("s_add_u32 s25, s25, s26")
    a("s_lshr_b32 s21, s20, 1")
    a("s_and_b32 s22, s20, 1")
    a("s_lshl_b32 s27, s20, 11")
    a("v_lshrrev_b32 v5, 2, v1")
    a("s_lshl_b32 s28, s23, 8")
    a("s_lshl_b32 s29, s20, 5")
    a("s_add_u32 s28, s28, s29")
    a("v_add_u32 v5, s28, v5")
    a("v_lshlrev_b32 v5, 11, v5")
    a("v_lshrrev_b32 v6, 1, v4")
    a("v_xor_b32 v7, v6, v4")
    a("v_and_b32 v7, 1, v7")
    a("v_lshl_or_b32 v6, v7, 1, v6")
    a("v_and_b32 v7, 3, v1")
    a("v_xor_b32 v7, v7, v6")
    a("v_lshl_add_u32 v%d, v7, 4, v5" % G1_VOA)
    a("v_add_u32 v%d, %d, v%d" % (G1_VOA + 1, 16 * 2048, G1_VOA))
    a("v_bfe_u32 v5, v1, 2, 2")
    a("v_lshrrev_b32 v6, 1, v5")
    a("v_xor_b32 v7, v6, v5")
    a("v_and_b32 v7, 1, v7")
    a("v_lshl_or_b32 v6, v7, 1, v6")
    a("v_xor_b32 v5, v6, v4")
    a("s_lshl_b32 s28, s21, 6")
    a("v_add_u32 v6, s28, v3")
    a("v_lshlrev_b32 v6, 6, v6")
    a("v_lshl_add_u32 v%d, v5, 4, v6" % G1_VA)
    a("v_bfe_u32 v5, v1, 2, 2")
    a("v_and_b32 v6, 1, v4")
    a("v_lshl_or_b32 v6, v6, 2, v5")
    a("v_lshl_add_u32 v5, v4, 3, v5")
    a("v_lshlrev_b32 v5, 9, v5")
    a("v_and_b32 v7, 3, v1")
    a("v_lshl_add_u32 v5, v7, 3, v5")
    a("v_add_u32 v5, 0x10000, v5")
    a("s_waitcnt lgkmcnt(0)")
    srd(a, 8, 4, WS_XN, SZ_XN)
    a("s_mov_b32 s16, 0")
    a("s_mov_b32 s17, 0")
    a("s_cmp_ge_u32 s24, 4")
    a("s_cbranch_scc1 g1_w1")

    def b_dma_rows(a, j):
        a("v_lshrrev_b32 v25, 5, v1")
        a("v_add_u32 v25, %d, v25" % (2 * j))
        a("s_bfe_u32 s28, s20, 0x10001")
        a("s_lshl_b32 s28, s28, 2")
        a("v_or_b32 v26, s28, v25")
        a("v_lshlrev_b32 v26, 1, v26")
        a("v_and_b32 v27, 31, v1")
        a("v_xor_b32 v26, v26, v27")
        a("s_lshl_b32 s28, s20, 2")
        a("v_add_u32 v25, s28, v25")

    NT = 6
    for tt in range(NT):
        a("s_mul_i32 s28, s22, %d" % NT)
        a("s_add_u32 s28, s28, %d" % tt)
        a("v_xor_b32 v7, s28, v6")
        a("v_lshl_add_u32 v%d, v7, 5, v5" % G1_VB[tt])
    srd(a, 12, 6, 0, D * 3 * D * 2)
    a("s_and_b32 s45, s45, 0xffff")
    a("s_mov_b32 s46, 0x%x" % (D * D * 2))
    for j in range(2):
        b_dma_rows(a, j)
        a("v_lshrrev_b32 v27, 2, v26")
        a("v_cmp_le_u32 vcc, 3, v27")
        a("s_nop 1")
        a("v_cndmask_b32 v28, 0, 1, vcc")
        a("v_mul_u32_u24 v29, 3, v28")
        a("v_sub_u32 v29, v27, v29")
        a("s_lshl_b32 s28, s25, 1")
        a("v_add_u32 v28, s28, v28")
        a("v_lshlrev_b32 v28, 6, v28")
        a("v_lshl_add_u32 v28, v29, 11, v28")
        a("v_and_b32 v29, 3, v26")
        a("v_lshl_add_u32 v28, v29, 4, v28")
        a("s_movk_i32 s28, 6144")
        a("v_mul_lo_u32 v29, v25, s28")
        a("v_add_u32 v28, v28, v29")
        a("v_cmp_gt_u32 vcc, 6, v27")
        a("v_mov_b32 v29, 0x7f000000")
        a("s_nop 0")
        a("v_cndmask_b32 v%d, v29, v28, vcc" % (G1_VOB + j))
    srd(a, 36, 32, 0, H * DH * DH * 2)
    a("s_lshl_b32 s28, s25, 1")
    a("s_add_u32 s28, s28, s22")
    a("s_lshl_b32 s28, s28, 11")
    a("v_lshlrev_b32 v25, 8, v4")
    a("v_lshl_add_u32 v25, v3, 1, v25")
    a("v_add_u32 v25, s28, v25")
    for ft in range(2):
        for j in range(8):
            d = (j & 3) + (16 if j >= 4 else 0)
            a("buffer_load_ushort v%d, v25, s[36:39], 0 offen offset:%d" % (224 + ft * 8 + j, d * 64 + ft * 32))
    g = Gemm(a, 4, NT, G1_ACC, G1_FA, G1_FB, G1_VA, G1_VB, G1_VOA, G1_VOB,
             lambda nt: nt < 4, 27, 16, 17, 8, 12, 64, 32 * 6144)
    g.run(32, "g1q", 18)
    if "NOEPI" not in FLAGS:
        g1_qkv_epilogue(a)
    a("s_branch g1_fin")

    a.label("g1_w1")
    NT = 7
    for tt in range(NT):
        a("s_mul_i32 s28, s22, %d" % NT)
        a("s_add_u32 s28, s28, %d" % tt)
        a("v_xor_b32 v7, s28, v6")
        a("v_lshl_add_u32 v%d, v7, 5, v5" % G1_VB[tt])
    srd(a, 12, 30, 0, D * F * 2)
    a("s_mov_b32 s44, s48")
    a("s_and_b32 s45, s49, 0xffff")
    a("s_mov_b32 s46, 0x%x" % (F * D * 2))
    for j in range(2):
        b_dma_rows(a, j)
        a("s_mul_i32 s28, s25, 448")
        a("v_lshlrev_b32 v28, 4, v26")
        a("v_add_u32 v28, s28, v28")
        a("s_movk_i32 s28, 7168")
        a("v_mul_lo_u32 v29, v25, s28")
        a("v_add_u32 v28, v28, v29")
        a("v_cmp_gt_u32 vcc, 28, v26")
        a("v_mov_b32 v29, 0x7f000000")
        a("s_nop 0")
        a("v_cndmask_b32 v%d, v29, v28, vcc" % (G1_VOB + j))
    srd(a, 36, 34, 0, F * 2)
    a("s_mul_i32 s28, s25, 448")
    a("s_mul_i32 s29, s22, 224")
    a("s_add_u32 s28, s28, s29")
    a("v_lshlrev_b32 v25, 3, v4")
    a("v_add_u32 v25, s28, v25")
    for tt in range(NT):
        a("buffer_load_dwordx2 %s, v25, s[36:39], 0 offen offset:%d" % (vr(G1_X + 2 * tt, 2), tt * 32))
    g = Gemm(a, 4, NT, G1_ACC, G1_FA, G1_FB, G1_VA, G1_VB, G1_VOA, G1_VOB,
             lambda nt: True, 27, 16, 17, 8, 12, 64, 32 * 7168)
    g.run(32, "g1w", 18)
    if "NOEPI" not in FLAGS:
        g1_w1_epilogue(a)
    a.label("g1_fin")
    if "STAMP" in FLAGS:
        a("s_waitcnt vmcnt(0)")
    stamp(a, 4)
    stamp_rt(a, 5)
    stamp_flush(a, 12, 0)
    a.label("g1_done")
    a("s_endpgm")
    return L, 256


def f32bits(x):
    import struct
    return struct.unpack("<I", struct.pack("<f", x))[0]


def g1_w1_epilogue(a):
    NT = 7
    RS = 240
    srd(a, 40, 4, WS_HC, SZ_HC)
    for tt in range(NT):
        for p in range(2):
            a("v_lshlrev_b32 v%d, 16, v%d" % (32 + tt * 4 + 2 * p, G1_X + 2 * tt + p))
            a("v_and_b32 v%d, 0xffff0000, v%d" % (33 + tt * 4 + 2 * p, G1_X + 2 * tt + p))
    a("s_mul_i32 s28, s20, %d" % (64 * RS))
    a("s_movk_i32 s29, %d" % RS)
    a("v_mul_lo_u32 v6, v3, s29")
    a("v_lshl_add_u32 v6, v4, 3, v6")
    a("v_add_u32 v6, s28, v6")
    a("v_subrev_u32 v7, 56, v1")
    a("v_cmp_gt_u32 vcc, 56, v1")
    a("s_nop 1")
    a("v_cndmask_b32 v7, v7, v1, vcc")
    a("v_mul_u32_u24 v8, 0x4a, v7")
    a("v_lshrrev_b32 v8, 10, v8")
    a("v_mul_u32_u24 v9, 14, v8")
    a("v_sub_u32 v9, v7, v9")
    a("v_mul_lo_u32 v7, v8, s29")
    a("v_lshl_add_u32 v7, v9, 4, v7")
    a("v_add_u32 v7, s28, v7")
    a("s_lshl_b32 s28, s23, 8")
    a("s_lshl_b32 s29, s21, 6")
    a("s_add_u32 s28, s28, s29")
    a("v_add_u32 v5, s28, v8")
    a("s_movk_i32 s28, 9216")
    a("v_mul_lo_u32 v5, v5, s28")
    a("s_mul_i32 s28, s25, 448")
    a("s_mul_i32 s29, s22, 224")
    a("s_add_u32 s28, s28, s29")
    a("v_lshl_add_u32 v9, v9, 4, s28")
    a("v_add_u32 v5, v5, v9")
    k0 = -2.0 * 0.7978845608028654 * 1.4426950408889634
    k1 = k0 * 0.044715
    a("s_mov_b32 s44, 0x%08x" % f32bits(k1))
    a("s_mov_b32 s45, 0x%08x" % f32bits(k1))
    a("s_mov_b32 s46, 1.0")
    a("s_mov_b32 s47, 1.0")
    a("v_mov_b32 v8, 0x%08x" % f32bits(k0))
    a("v_mov_b32 v9, 0x%08x" % f32bits(k0))
    a("s_barrier")

    def flush(mt):
        for j in range(4):
            a("ds_read_b128 %s, v7 offset:%d" % (vr(96 + j * 4, 4), (mt * 16 + j * 4) * RS))
        for j in range(4):
            a("s_waitcnt lgkmcnt(%d)" % (3 - j))
            a("s_mov_b32 s28, 0x%x" % ((mt * 16 + j * 4) * 9216))
            a("buffer_store_dwordx4 %s, v5, s[40:43], s28 offen" % vr(96 + j * 4, 4))

    for mt in range(4):
        for tt in range(NT):
            c = G1_ACC + (mt * NT + tt) * 4
            T = 64 + ((mt * NT + tt) & 1) * 16
            for p in range(2):
                a("v_pk_add_f32 %s, %s, %s" % (vr(T + 2 * p, 2), vr(c + 2 * p, 2), vr(32 + tt * 4 + 2 * p, 2)))
            for p in range(2):
                a("v_pk_mul_f32 %s, %s, %s" % (vr(T + 4 + 2 * p, 2), vr(T + 2 * p, 2), vr(T + 2 * p, 2)))
            for p in range(2):
                a("v_pk_fma_f32 %s, %s, s[44:45], v[8:9]" % (vr(T + 4 + 2 * p, 2), vr(T + 4 + 2 * p, 2)))
            for p in range(2):
                a("v_pk_mul_f32 %s, %s, %s" % (vr(T + 4 + 2 * p, 2), vr(T + 4 + 2 * p, 2), vr(T + 2 * p, 2)))
            for r in range(4):
                a("v_exp_f32 v%d, v%d" % (T + 4 + r, T + 4 + r))
            a("s_nop 0")
            for p in range(2):
                a("v_pk_add_f32 %s, %s, s[46:47]" % (vr(T + 4 + 2 * p, 2), vr(T + 4 + 2 * p, 2)))
            for r in range(4):
                a("v_rcp_f32 v%d, v%d" % (T + 4 + r, T + 4 + r))
            a("s_nop 0")
            for p in range(2):
                a("v_pk_mul_f32 %s, %s, %s" % (vr(T + 4 + 2 * p, 2), vr(T + 4 + 2 * p, 2), vr(T + 2 * p, 2)))
            a("v_cvt_pk_bf16_f32 v%d, v%d, v%d" % (T + 8, T + 4, T + 5))
            a("v_cvt_pk_bf16_f32 v%d, v%d, v%d" % (T + 9, T + 6, T + 7))
            a("ds_write_b64 v6, %s offset:%d" % (vr(T + 8, 2), mt * 16 * RS + tt * 32))
            if tt == 2 and mt > 0:
                flush(mt - 1)
        a("s_waitcnt lgkmcnt(0)")
    flush(3)


def bf16_round_pair(a, x0, x1, t):
    a("v_cvt_pk_bf16_f32 v%d, v%d, v%d" % (t, x0, x1))
    a("v_lshlrev_b32 v%d, 16, v%d" % (x0, t))
    a("v_and_b32 v%d, 0xffff0000, v%d" % (x1, t))


def xlane_g(a, op, regs, temps):
    for sw in ("v_permlane16_swap_b32", "v_permlane32_swap_b32"):
        for v, t in zip(regs, temps):
            a("v_mov_b32 v%d, v%d" % (t, v))
        a("s_nop 1")
        for v, t in zip(regs, temps):
            a("%s v%d, v%d" % (sw, v, t))
        a("s_nop 1")
        for (v, t), o in zip(zip(regs, temps), op):
            a("%s v%d, v%d, v%d" % (o, v, v, t))


def dpp16(a, ops, regs):
    for ctl in ("quad_perm:[1,0,3,2]", "quad_perm:[2,3,0,1]", "row_half_mirror", "row_mirror"):
        if len(regs) < 3:
            a("s_nop 1")
        for v, o in zip(regs, ops):
            a("%s_dpp v%d, v%d, v%d %s row_mask:0xf bank_mask:0xf" % (o, v, v, v, ctl))


def g1_softmax_batch(a, acc, WP, tt0):
    E = lambda mt: 32 + mt * 16
    FR = lambda mt: 96 + mt * 4
    MX = lambda mt: 112 + 2 * mt
    MN = lambda mt: 120 + 2 * mt
    P = lambda mt: acc(mt, tt0)
    R = range(4)
    for mt in R:
        for i in range(4):
            a("v_cvt_pk_bf16_f32 v%d, v%d, v%d" % (FR(mt) + i, P(mt) + 2 * i, P(mt) + 2 * i + 1))
    a("s_nop 1")
    for mt in R:
        for ft in range(2):
            a("v_mfma_f32_16x16x32_bf16 %s, %s, %s, 0" % (vr(P(mt) + ft * 4, 4), vr(WP[ft], 4), vr(FR(mt), 4)))
    a("s_nop 7")
    for mt in R:
        for i in range(4):
            a("v_cvt_pk_bf16_f32 v%d, v%d, v%d" % (E(mt) + i, P(mt) + 2 * i, P(mt) + 2 * i + 1))
    for mt in R:
        for i in range(4):
            a("v_lshlrev_b32 v%d, 16, v%d" % (P(mt) + 2 * i, E(mt) + i))
            a("v_and_b32 v%d, 0xffff0000, v%d" % (P(mt) + 2 * i + 1, E(mt) + i))
    for op3, op2, M in (("v_max3_f32", "v_max_f32", MX), ("v_min3_f32", "v_min_f32", MN)):
        for mt in R:
            a("%s v%d, v%d, v%d, v%d" % (op3, M(mt), P(mt), P(mt) + 1, P(mt) + 2))
        for mt in R:
            a("%s v%d, v%d, v%d, v%d" % (op3, M(mt), M(mt), P(mt) + 3, P(mt) + 4))
        for mt in R:
            a("%s v%d, v%d, v%d, v%d" % (op3, M(mt), M(mt), P(mt) + 5, P(mt) + 6))
        for mt in R:
            a("%s v%d, v%d, v%d" % (op2, M(mt), M(mt), P(mt) + 7))

    def xl(opx, opn):
        regs = [(MX(mt), opx) for mt in R] + [(MN(mt), opn) for mt in R]
        for sw in ("v_permlane16_swap_b32", "v_permlane32_swap_b32"):
            for v, o in regs:
                a("v_mov_b32 v%d, v%d" % (v + 1, v))
            a("s_nop 0")
            for v, o in regs:
                a("%s v%d, v%d" % (sw, v, v + 1))
            a("s_nop 0")
            for v, o in regs:
                a("%s v%d, v%d, v%d" % (o, v, v, v + 1))
    xl("v_max_f32", "v_min_f32")
    for mt in R:
        a("v_mul_f32 v%d, s48, v%d" % (MX(mt), MX(mt)))
        a("v_mul_f32 v%d, s48, v%d" % (MN(mt), MN(mt)))
    for mt in R:
        for i in range(4):
            a("v_pk_fma_f32 %s, %s, s[48:49], %s op_sel_hi:[1,1,0] neg_lo:[0,0,1] neg_hi:[0,0,1]" % (
                vr(E(mt) + 2 * i, 2), vr(P(mt) + 2 * i, 2), vr(MX(mt), 2)))
            a("v_pk_fma_f32 %s, %s, s[48:49], %s op_sel_hi:[1,1,0] neg_lo:[1,0,0] neg_hi:[1,0,0]" % (
                vr(E(mt) + 8 + 2 * i, 2), vr(P(mt) + 2 * i, 2), vr(MN(mt), 2)))
    for mt in R:
        for i in range(16):
            a("v_exp_f32 v%d, v%d" % (E(mt) + i, E(mt) + i))
    a("s_nop 0")
    for M, o in ((MX, 0), (MN, 8)):
        for mt in R:
            a("v_pk_add_f32 %s, %s, %s" % (vr(M(mt), 2), vr(E(mt) + o, 2), vr(E(mt) + o + 2, 2)))
        for mt in R:
            a("v_pk_add_f32 %s, %s, %s" % (vr(M(mt), 2), vr(M(mt), 2), vr(E(mt) + o + 4, 2)))
        for mt in R:
            a("v_pk_add_f32 %s, %s, %s" % (vr(M(mt), 2), vr(M(mt), 2), vr(E(mt) + o + 6, 2)))
        for mt in R:
            a("v_add_f32 v%d, v%d, v%d" % (M(mt), M(mt), M(mt) + 1))
    xl("v_add_f32", "v_add_f32")
    for mt in R:
        a("v_rcp_f32 v%d, v%d" % (MX(mt), MX(mt)))
        a("v_rcp_f32 v%d, v%d" % (MN(mt), MN(mt)))
    a("s_nop 0")
    for mt in R:
        for i in range(4):
            a("v_pk_mul_f32 %s, %s, %s op_sel_hi:[1,0]" % (vr(E(mt) + 2 * i, 2), vr(E(mt) + 2 * i, 2), vr(MX(mt), 2)))
            a("v_pk_mul_f32 %s, %s, %s op_sel_hi:[1,0]" % (vr(E(mt) + 8 + 2 * i, 2), vr(E(mt) + 8 + 2 * i, 2), vr(MN(mt), 2)))
    for mt in R:
        for i in range(8):
            a("v_cvt_pk_bf16_f32 v%d, v%d, v%d" % (P(mt) + i, E(mt) + 2 * i, E(mt) + 2 * i + 1))


def g1_qkv_epilogue(a):
    NT = 6
    WP = (G1_X, G1_X + 4)
    KS = 160
    SH = 98304

    def acc(mt, tt):
        return G1_ACC + (mt * NT + tt) * 4

    srd(a, 40, 4, WS_PQ, SZ_PQ)
    srd(a, 44, 4, WS_KV, SZ_KV)
    a("s_mov_b32 s48, 0x%08x" % LOG2E)
    a("s_mov_b32 s49, 0x%08x" % LOG2E)
    a("s_mul_i32 s50, s20, 12288")
    for i in range(8):
        a("v_lshl_or_b32 v%d, v%d, 16, v%d" % (G1_X + i, 224 + 2 * i + 1, 224 + 2 * i))
    a("s_movk_i32 s28, %d" % KS)
    a("v_mul_lo_u32 v5, v3, s28")
    a("v_lshl_add_u32 v5, v4, 3, v5")
    a("v_add_u32 v5, s50, v5")
    a("v_bfe_u32 v6, v1, 2, 2")
    a("v_lshl_add_u32 v6, v4, 2, v6")
    a("v_mul_lo_u32 v6, v6, s28")
    a("v_and_b32 v7, 3, v1")
    a("v_lshl_add_u32 v6, v7, 3, v6")
    a("v_add_u32 v6, s50, v6")
    a("v_lshlrev_b32 v7, 4, v1")
    a("s_barrier")
    g1_softmax_batch(a, acc, WP, 2)
    stamp(a, 7)
    for mt in range(4):
        for q in range(4):
            a("ds_write_b64 v5, %s offset:%d" % (vr(acc(mt, 2) + 2 * q, 2), mt * 16 * KS + q * 32))
    KV, AF, BF, ONE = 64, 32, 112, 16
    for u in range(2):
        for dt in range(2):
            for hf in range(2):
                for p in range(2):
                    c = acc(2 * u + hf, 4 + dt) + 2 * p
                    a("v_cvt_pk_bf16_f32 v%d, v%d, v%d" % (BF + (u * 2 + dt) * 4 + hf * 2 + p, c, c + 1))
    for i in range(4):
        a("v_mov_b32 v%d, 0x3f803f80" % (ONE + i))
    a("s_waitcnt lgkmcnt(0)")
    for u in range(2):
        for fq in range(4):
            for hf in range(2):
                a("ds_read_b64_tr_b16 %s, v6 offset:%d" % (vr(AF + (u * 4 + fq) * 4 + hf * 2, 2), (2 * u + hf) * 16 * KS + fq * 32))
    a("s_waitcnt lgkmcnt(8)")
    for u in range(2):
        if u == 1:
            a("s_waitcnt lgkmcnt(0)")
        for fq in range(4):
            for t in range(3):
                c = KV + (fq * 2 + t) * 4 if t < 2 else KV + (8 + fq) * 4
                b = BF + (u * 2 + t) * 4 if t < 2 else ONE
                a("v_mfma_f32_16x16x32_bf16 %s, %s, %s, %s" % (vr(c, 4), vr(AF + (u * 4 + fq) * 4, 4), vr(b, 4), vr(c, 4) if u else "0"))
    a("v_add_u32 v8, s50, v7")
    a("s_nop 7")
    for t in range(12):
        a("ds_write_b128 v8, %s offset:%d" % (vr(KV + t * 4, 4), t * 1024))
    a("s_lshr_b32 s28, s20, 2")
    a("s_mul_i32 s28, s28, 12288")
    a("s_and_b32 s29, s20, 3")
    a("s_mul_i32 s29, s29, 3072")
    a("s_add_u32 s28, s28, s29")
    a("v_add_u32 v8, s28, v7")
    a("v_add_u32 v9, 0xc000, v8")
    a("s_lshl_b32 s28, s25, 3")
    a("s_add_u32 s28, s28, s23")
    a("s_mul_i32 s28, s28, 24")
    a("s_mul_i32 s29, s20, 3")
    a("s_add_u32 s28, s28, s29")
    a("s_lshl_b32 s28, s28, 10")
    a("v_add_u32 v10, s28, v7")
    a("s_waitcnt lgkmcnt(0)")
    a("s_barrier")
    for wm in range(4):
        for i in range(3):
            a("ds_read_b128 %s, %s offset:%d" % (vr(32 + (wm * 3 + i) * 4, 4), "v9" if wm >= 2 else "v8", (wm & 1) * 24576 + i * 1024))
    a("s_waitcnt lgkmcnt(0)")
    for wm in range(1, 4):
        for i in range(6):
            a("v_pk_add_f32 %s, %s, %s" % (vr(32 + 2 * i, 2), vr(32 + 2 * i, 2), vr(32 + wm * 12 + 2 * i, 2)))
    for i in range(3):
        a("buffer_store_dwordx4 %s, v10, s[44:47], 0 offen offset:%d" % (vr(32 + i * 4, 4), i * 1024))
    stamp(a, 8)
    a("s_nop 1")
    g1_softmax_batch(a, acc, WP, 0)
    stamp(a, 9)
    stamp(a, 10)
    stamp(a, 11)
    a("s_lshl_b32 s28, s25, 3")
    a("s_add_u32 s28, s28, s23")
    a("s_lshl_b32 s28, s28, 3")
    a("s_add_u32 s28, s28, s20")
    a("s_lshl_b32 s28, s28, 13")
    a("v_add_u32 v10, s28, v7")
    a("s_movk_i32 s29, 4096")
    for mt in range(4):
        for kk in range(2):
            q = mt * 2 + kk
            a("buffer_store_dwordx4 %s, v10, s[40:43], %s offen offset:%d" % (vr(acc(mt, 0) + kk * 4, 4), "s29" if q >= 4 else "0", (q % 4) * 1024))


def g2_apply(a):
    SH = 98304

    def acc(mt, tt):
        return 128 + mt * 8

    a("s_and_b32 s57, s2, 15")
    a("s_lshr_b32 s58, s2, 4")
    a("s_lshr_b32 s59, s20, 1")
    a("s_and_b32 s38, s20, 1")
    srd(a, 48, 4, WS_PQ, SZ_PQ)
    srd(a, 52, 4, WS_KV, SZ_KV)
    a("s_mul_i32 s56, s20, 12288")
    a("v_lshlrev_b32 v7, 4, v1")
    a("s_lshl_b32 s28, s57, 3")
    a("s_add_u32 s28, s28, s58")
    a("s_lshl_b32 s28, s28, 3")
    a("s_add_u32 s28, s28, s20")
    a("s_lshl_b32 s28, s28, 13")
    a("v_add_u32 v10, s28, v7")
    a("s_movk_i32 s29, 4096")
    for q in range(8):
        a("buffer_load_dwordx4 %s, v10, s[48:51], %s offen offset:%d" % (vr(128 + q * 4, 4), "s29" if q >= 4 else "0", (q % 4) * 1024))
    a("s_mul_i32 s28, s57, %d" % (8 * 24))
    a("s_mul_i32 s29, s20, 3")
    a("s_add_u32 s28, s28, s29")
    a("s_lshl_b32 s28, s28, 10")
    a("v_add_u32 v10, s28, v7")
    for rb in range(8):
        a("s_mov_b32 s28, 0x%x" % (rb * 24576))
        for i in range(3):
            a("buffer_load_dwordx4 %s, v10, s[52:55], s28 offen offset:%d" % (vr(32 + (rb * 3 + i) * 4, 4), i * 1024))
    a("s_mul_i32 s28, s20, 1536")
    a("s_add_u32 s28, s28, %d" % SH)
    a("v_lshl_add_u32 v8, v1, 3, s28")
    a("s_mul_i32 s28, s38, 6144")
    a("s_add_u32 s28, s28, %d" % SH)
    a("v_lshl_add_u32 v9, v1, 3, s28")
    for rb in range(1, 8):
        a("s_waitcnt vmcnt(%d)" % ((7 - rb) * 3))
        for i in range(6):
            a("v_pk_add_f32 %s, %s, %s" % (vr(32 + 2 * i, 2), vr(32 + 2 * i, 2), vr(32 + rb * 12 + 2 * i, 2)))
    for i in range(6):
        a("v_cvt_pk_bf16_f32 v%d, v%d, v%d" % (16 + i, 32 + 2 * i, 33 + 2 * i))
    for i in range(3):
        a("ds_write_b64 v8, %s offset:%d" % (vr(16 + 2 * i, 2), i * 512))
    a("s_waitcnt lgkmcnt(0)")
    a("s_barrier")
    for t in range(3):
        for kk in range(2):
            for hf in range(2):
                fq = 2 * kk + hf
                tile = fq * 2 + t if t < 2 else 8 + fq
                a("ds_read_b64 %s, v9 offset:%d" % (vr(32 + (t * 2 + kk) * 4 + hf * 2, 2), tile * 512))
    a("s_movk_i32 s28, 80")
    a("v_mul_lo_u32 v5, v3, s28")
    a("v_lshl_add_u32 v5, v4, 3, v5")
    a("v_add_u32 v5, s56, v5")
    a("v_lshrrev_b32 v12, 2, v1")
    a("v_mul_lo_u32 v6, v12, s28")
    a("v_and_b32 v13, 3, v1")
    a("v_lshl_add_u32 v6, v13, 4, v6")
    a("v_add_u32 v6, s56, v6")
    a("s_lshl_b32 s28, s58, 8")
    a("s_lshl_b32 s29, s59, 6")
    a("s_add_u32 s28, s28, s29")
    a("v_add_u32 v12, s28, v12")
    a("s_movk_i32 s28, 9216")
    a("v_mul_lo_u32 v12, v12, s28")
    a("s_lshl_b32 s28, s57, 1")
    a("s_add_u32 s28, s28, s38")
    a("s_lshl_b32 s28, s28, 6")
    a("s_add_u32 s28, s28, 7168")
    a("v_lshl_add_u32 v13, v13, 4, s28")
    a("v_add_u32 v12, v12, v13")
    a("s_waitcnt lgkmcnt(0)")
    for kk in range(2):
        for mt in range(4):
            for t in range(3):
                c = 64 + (mt * 3 + t) * 4
                a("v_mfma_f32_16x16x32_bf16 %s, %s, %s, %s" % (vr(c, 4), vr(32 + (t * 2 + kk) * 4, 4), vr(acc(mt, 0) + kk * 4, 4), vr(c, 4) if kk else "0"))
    a("s_nop 7")
    R = range(4)
    for mt in R:
        a("v_cvt_pk_bf16_f32 v%d, v%d, v%d" % (112 + 2 * mt, 72 + mt * 12, 72 + mt * 12))
    for mt in R:
        a("v_lshlrev_b32 v%d, 16, v%d" % (112 + 2 * mt, 112 + 2 * mt))
    for mt in R:
        a("v_add_f32 v%d, 0x358637bd, v%d" % (112 + 2 * mt, 112 + 2 * mt))
    for mt in R:
        a("v_cvt_pk_bf16_f32 v%d, v%d, v%d" % (112 + 2 * mt, 112 + 2 * mt, 112 + 2 * mt))
    for mt in R:
        a("v_lshlrev_b32 v%d, 16, v%d" % (112 + 2 * mt, 112 + 2 * mt))
    for mt in R:
        a("v_rcp_f32 v%d, v%d" % (112 + 2 * mt, 112 + 2 * mt))
    for mt in R:
        for i in range(4):
            a("v_cvt_pk_bf16_f32 v%d, v%d, v%d" % (16 + i, 64 + mt * 12 + 2 * i, 65 + mt * 12 + 2 * i))
        for i in range(4):
            a("v_lshlrev_b32 v%d, 16, v%d" % (64 + mt * 12 + 2 * i, 16 + i))
            a("v_and_b32 v%d, 0xffff0000, v%d" % (65 + mt * 12 + 2 * i, 16 + i))
        for i in range(4):
            a("v_pk_mul_f32 %s, %s, %s op_sel_hi:[1,0]" % (vr(64 + mt * 12 + 2 * i, 2), vr(64 + mt * 12 + 2 * i, 2), vr(112 + 2 * mt, 2)))
        for i in range(4):
            a("v_cvt_pk_bf16_f32 v%d, v%d, v%d" % (20 + (mt & 1) * 4 + i, 64 + mt * 12 + 2 * i, 65 + mt * 12 + 2 * i))
        for dt in range(2):
            a("ds_write_b64 v5, %s offset:%d" % (vr(20 + (mt & 1) * 4 + 2 * dt, 2), mt * 16 * 80 + dt * 32))
    a("s_waitcnt lgkmcnt(0)")
    for j in range(4):
        a("ds_read_b128 %s, v6 offset:%d" % (vr(32 + j * 4, 4), j * 16 * 80))
    for j in range(4):
        a("s_waitcnt lgkmcnt(%d)" % (3 - j))
        a("s_mov_b32 s28, 0x%x" % (j * 16 * 9216))
        a("buffer_store_dwordx4 %s, v12, s[8:11], s28 offen sc1" % vr(32 + j * 4, 4))
    a("s_waitcnt vmcnt(0)")
    a("s_barrier")
    a("s_cmp_lg_u32 s20, 0")
    a("s_cbranch_scc1 g2_ap_sig")
    a("s_lshl_b32 s28, s58, 8")
    a("s_add_u32 s28, s28, 32768")
    a("v_mov_b32 v11, s28")
    a("v_mov_b32 v12, 1")
    a("s_mov_b64 exec, 1")
    a("buffer_atomic_add v12, v11, s[44:47], 0 offen sc1")
    a("s_mov_b64 exec, -1")
    a.label("g2_ap_sig")


def gen_apply(a):
    L = "apply_kernel"
    kernel_head(a, L)
    a("s_cmp_ge_u32 s2, 256")
    a("s_cbranch_scc1 ap_done")
    a("s_load_dwordx2 s[4:5], s[0:1], %d" % KA_WS)
    a("v_and_b32 v1, 63, v0")
    a("v_lshrrev_b32 v2, 6, v0")
    a("v_and_b32 v3, 15, v1")
    a("v_lshrrev_b32 v4, 4, v1")
    a("s_and_b32 s20, s2, 31")
    a("s_lshr_b32 s21, s2, 5")
    a("s_waitcnt lgkmcnt(0)")
    srd(a, 8, 4, WS_KV, SZ_KV)
    srd(a, 12, 4, WS_PQ, SZ_PQ)
    srd(a, 16, 4, WS_HC, SZ_HC)
    a("s_lshl_b32 s22, s20, 11")
    a("s_lshl_b32 s23, s21, 8")
    a("s_add_u32 s22, s22, s23")
    a("v_lshl_add_u32 v5, v2, 6, v3")
    a("v_add_u32 v5, s22, v5")
    a("v_lshlrev_b32 v5, 7, v5")
    a("v_lshl_add_u32 v5, v4, 4, v5")
    for st in range(4):
        for kk in range(2):
            if st < 2:
                a("buffer_load_dwordx4 %s, v5, s[12:15], 0 offen offset:%d" % (vr(64 + (st * 2 + kk) * 4, 4), st * 2048 + kk * 64))
            else:
                a("s_movk_i32 s24, 4096")
                a("buffer_load_dwordx4 %s, v5, s[12:15], s24 offen offset:%d" % (vr(64 + (st * 2 + kk) * 4, 4), (st - 2) * 2048 + kk * 64))
    a("s_lshl_b32 s22, s20, 14")
    a("v_lshlrev_b32 v6, 5, v0")
    a("v_add_u32 v6, s22, v6")
    for rb in range(8):
        a("s_mov_b32 s24, 0x%x" % (rb << 19))
        a("buffer_load_dwordx4 %s, v6, s[8:11], s24 offen" % vr(96 + rb * 8, 4))
        a("buffer_load_dwordx4 %s, v6, s[8:11], s24 offen offset:16" % vr(100 + rb * 8, 4))
    a("v_and_b32 v7, 7, v0")
    a("v_lshlrev_b32 v7, 5, v7")
    a("v_add_u32 v7, s22, v7")
    for rb in range(8):
        a("s_mov_b32 s24, 0x%x" % ((rb << 19) + 8192))
        a("buffer_load_dwordx4 %s, v7, s[8:11], s24 offen" % vr(160 + rb * 8, 4))
        a("buffer_load_dwordx4 %s, v7, s[8:11], s24 offen offset:16" % vr(164 + rb * 8, 4))
    a("s_waitcnt vmcnt(0)")
    for base in (96, 160):
        for rb in range(1, 8):
            for i in range(8):
                a("v_add_f32 v%d, v%d, v%d" % (base + i, base + i, base + rb * 8 + i))
    for i in range(4):
        a("v_cvt_pk_bf16_f32 v%d, v%d, v%d" % (8 + i, 96 + 2 * i, 97 + 2 * i))
        a("v_cvt_pk_bf16_f32 v%d, v%d, v%d" % (12 + i, 160 + 2 * i, 161 + 2 * i))
    a("v_lshlrev_b32 v6, 4, v0")
    a("ds_write_b128 v6, v[8:11]")
    a("v_and_b32 v7, 7, v0")
    a("v_lshlrev_b32 v7, 4, v7")
    a("ds_write_b128 v7, v[12:15] offset:4096")
    a("s_waitcnt lgkmcnt(0)")
    a("s_barrier")
    a("v_lshlrev_b32 v6, 7, v3")
    a("v_lshl_add_u32 v6, v4, 4, v6")
    a("v_lshlrev_b32 v7, 4, v4")
    for dt in range(2):
        for kk in range(2):
            a("ds_read_b128 %s, v6 offset:%d" % (vr(8 + (dt * 2 + kk) * 4, 4), dt * 2048 + kk * 64))
    for kk in range(2):
        a("ds_read_b128 %s, v7 offset:%d" % (vr(24 + kk * 4, 4), 4096 + kk * 64))
    a("s_lshl_b32 s23, s21, 8")
    a("v_lshl_add_u32 v5, v2, 6, v3")
    a("v_add_u32 v5, s23, v5")
    a("s_movk_i32 s24, 9216")
    a("v_mul_lo_u32 v5, v5, s24")
    a("s_lshl_b32 s23, s20, 6")
    a("s_add_u32 s23, s23, 7168")
    a("v_lshl_add_u32 v6, v4, 3, s23")
    a("v_add_u32 v5, v5, v6")
    a("s_waitcnt lgkmcnt(0)")
    for st in range(4):
        C = 96 + st * 12
        for t in range(3):
            a("v_mfma_f32_16x16x32_bf16 %s, %s, %s, 0" % (vr(C + t * 4, 4), vr(8 + t * 8, 4), vr(64 + st * 8, 4)))
        for t in range(3):
            a("v_mfma_f32_16x16x32_bf16 %s, %s, %s, %s" % (vr(C + t * 4, 4), vr(12 + t * 8, 4), vr(68 + st * 8, 4), vr(C + t * 4, 4)))
    a("s_nop 7")
    a("s_nop 7")
    for st in range(4):
        C = 96 + st * 12
        a("v_cvt_pk_bf16_f32 v32, v%d, v%d" % (C + 8, C + 8))
        a("v_lshlrev_b32 v32, 16, v32")
        a("v_add_f32 v32, 0x358637bd, v32")
        a("v_cvt_pk_bf16_f32 v32, v32, v32")
        a("v_lshlrev_b32 v32, 16, v32")
        a("v_rcp_f32 v32, v32")
        for i in range(4):
            bf16_round_pair(a, C + 2 * i, C + 2 * i + 1, 33)
        for i in range(8):
            a("v_mul_f32 v%d, v%d, v32" % (C + i, C + i))
        for i in range(4):
            a("v_cvt_pk_bf16_f32 v%d, v%d, v%d" % (40 + st * 4 + i, C + 2 * i, C + 2 * i + 1))
        a("buffer_store_dwordx2 %s, v5, s[16:19], 0 offen" % vr(40 + st * 4, 2))
        a("buffer_store_dwordx2 %s, v5, s[16:19], 0 offen offset:32" % vr(42 + st * 4, 2))
        if st < 3:
            a("v_add_u32 v5, %d, v5" % (16 * 9216))
    a.label("ap_done")
    a("s_endpgm")
    return L, 224


G2_ACC = 128
G2_FA = (32, 64)
G2_FB = (48, 80)
G2_VA = 16
G2_VB = (18, 19, 20, 21)
G2_N0 = int(os.environ.get("G2_N0", "24"))
G2_DMAPOS = (1, 5, 9, 13)


def g2_mfmas(st):
    out = []
    for mt in range(4):
        for nt in range(4):
            c = G2_ACC + (mt * 4 + nt) * 4
            out.append("v_mfma_f32_16x16x32_bf16 %s, %s, %s, %s" % (
                vr(c, 4), vr(G2_FB[st] + nt * 4, 4), vr(G2_FA[st] + mt * 4, 4), vr(c, 4)))
    return out


def g2_reads(st, buf):
    out = []
    for mt in range(4):
        out.append(["ds_read_b128 %s, %s offset:%d" % (vr(G2_FA[st] + mt * 4, 4), vr(G2_VA), buf * 16384 + mt * 2048)])
    for nt in range(4):
        for rd in range(2):
            out.append(["ds_read_b64_tr_b16 %s, %s offset:%d" % (vr(G2_FB[st] + nt * 4 + rd * 2, 2), vr(G2_VB[nt]), buf * 16384 + rd * 1024)])
    return out


def g2_dmas(buf):
    out = [["s_cmp_eq_u32 s19, 0",
            "s_cselect_b32 s12, s30, s12",
            "s_cselect_b32 s13, s31, s13",
            "s_cselect_b32 s14, 0x%x, s14" % (D * D * 2),
            "s_cselect_b32 s17, 0, s17",
            "s_sub_u32 s19, s19, 1"]]
    for j in range(2):
        out.append(["s_add_u32 m0, s27, %d" % (buf * 16384 + j * 1024),
                    "s_nop 0",
                    "buffer_load_dwordx4 v%d, s[8:11], s16 offen sc1 lds" % (8 + j)])
    for j in range(2):
        out.append(["s_add_u32 m0, s27, %d" % (65536 + buf * 16384 + j * 1024),
                    "s_nop 0",
                    "buffer_load_dwordx4 v%d, s[12:15], s17 offen lds" % (12 + j)])
    out.append(["s_add_u32 s16, s16, 128", "s_add_u32 s17, s17, %d" % (64 * 2048)])
    return out


def g2_iter(a, i, dma, nxt, vm):
    slots = {}
    if dma and "NODMA" not in FLAGS:
        d = g2_dmas(i % 4)
        slots.setdefault(0, []).append(d[0])
        for j in range(4):
            slots.setdefault(G2_DMAPOS[j], []).append(d[1 + j])
        slots.setdefault(G2_DMAPOS[3], []).append(d[5])
    if nxt:
        r = g2_reads((i + 1) & 1, (i + 1) % 4)
        pos = [p for p in range(16) if p not in G2_DMAPOS][:12]
        for p, x in zip(pos, r):
            slots.setdefault(p, []).append(x)
    place(a, g2_mfmas(i & 1), slots)
    if nxt:
        if vm is None:
            a("s_waitcnt lgkmcnt(0)")
        else:
            a("s_waitcnt vmcnt(%d) lgkmcnt(0)" % vm)
        a("s_barrier")


def gen_gemm2(a):
    L = "gemm2_kernel"
    kernel_head(a, L)
    a("s_cmp_ge_u32 s2, 256")
    a("s_cbranch_scc1 g2_done")
    stamp(a, 0)
    stamp_rt(a, 6)
    a("s_load_dwordx2 s[4:5], s[0:1], %d" % KA_WS)
    a("s_load_dwordx2 s[6:7], s[0:1], %d" % KA_W2)
    a("s_load_dwordx2 s[30:31], s[0:1], %d" % KA_WO)
    a("s_load_dwordx2 s[32:33], s[0:1], %d" % KA_X)
    a("s_load_dwordx2 s[34:35], s[0:1], %d" % KA_B2)
    a("s_load_dwordx2 s[36:37], s[0:1], %d" % KA_OUT)
    g1_common_addr(a)
    a("s_and_b32 s21, s2, 7")
    a("s_lshr_b32 s23, s2, 7")
    a("s_bfe_u32 s24, s2, 0x20003")
    a("s_and_b32 s25, s21, 3")
    a("s_lshl_b32 s25, s25, 2")
    a("s_add_u32 s24, s24, s25")
    a("s_bfe_u32 s25, s2, 0x20005")
    a("s_lshr_b32 s26, s21, 2")
    a("s_lshl_b32 s26, s26, 2")
    a("s_add_u32 s25, s25, s26")
    if "SAMETILE" in FLAGS:
        a("s_mov_b32 s24, 0")
        a("s_mov_b32 s25, 0")
        a("s_mov_b32 s23, 0")
    a("s_lshr_b32 s21, s20, 2")
    a("s_bfe_u32 s22, s20, 0x10001")
    a("s_and_b32 s26, s20, 1")
    a("s_lshl_b32 s27, s20, 11")
    a("s_waitcnt lgkmcnt(0)")
    srd(a, 8, 4, WS_HC, SZ_HC)
    srd(a, 44, 4, WS_FL, SZ_FL)
    a("s_cmp_lg_u32 s23, 0")
    a("s_cbranch_scc1 g2_noapply")
    g2_apply(a)
    a.label("g2_noapply")
    a("v_lshrrev_b32 v5, 3, v1")
    a("s_lshl_b32 s28, s24, 7")
    a("s_lshl_b32 s29, s20, 4")
    a("s_add_u32 s28, s28, s29")
    a("v_add_u32 v5, s28, v5")
    a("s_movk_i32 s28, 9216")
    a("v_mul_lo_u32 v5, v5, s28")
    a("v_and_b32 v6, 7, v1")
    for j in range(2):
        a("v_add_u32 v7, %d, v4" % (4 * j))
        a("v_and_b32 v7, 7, v7")
        a("v_xor_b32 v7, v7, v6")
        a("v_lshl_add_u32 v7, v7, 4, v5")
        a("v_add_u32 v%d, %d, v7" % (8 + j, j * 8 * 9216))
    a("s_lshl_b32 s28, s20, 3")
    a("v_add_u32 v5, s28, v4")
    a("v_lshlrev_b32 v5, 11, v5")
    a("s_lshl_b32 s28, s25, 8")
    a("v_add_u32 v5, s28, v5")
    a("s_lshl_b32 s28, s26, 2")
    a("v_or_b32 v7, s28, v4")
    a("v_lshlrev_b32 v7, 1, v7")
    a("v_xor_b32 v7, v7, v3")
    a("v_lshl_add_u32 v12, v7, 4, v5")
    a("v_add_u32 v13, %d, v12" % (4 * 2048))
    a("s_lshl_b32 s28, s21, 2")
    a("v_add_u32 v5, s28, v4")
    a("v_lshrrev_b32 v6, 1, v3")
    a("v_xor_b32 v5, v5, v6")
    a("s_lshl_b32 s28, s22, 6")
    a("v_add_u32 v6, s28, v3")
    a("v_lshlrev_b32 v6, 7, v6")
    a("v_lshl_add_u32 v%d, v5, 4, v6" % G2_VA)
    a("v_bfe_u32 v5, v1, 2, 2")
    a("v_and_b32 v6, 1, v4")
    a("v_lshl_or_b32 v6, v6, 2, v5")
    a("v_lshl_add_u32 v5, v4, 3, v5")
    a("s_lshl_b32 s28, s21, 5")
    a("v_add_u32 v5, s28, v5")
    a("v_lshlrev_b32 v5, 8, v5")
    a("v_and_b32 v7, 3, v1")
    a("v_lshl_add_u32 v5, v7, 3, v5")
    a("v_add_u32 v5, 0x10000, v5")
    for nt in range(4):
        a("s_lshl_b32 s28, s26, 2")
        a("s_add_u32 s28, s28, %d" % nt)
        a("v_xor_b32 v7, s28, v6")
        a("v_lshl_add_u32 v%d, v7, 5, v5" % G2_VB[nt])
    srd(a, 12, 6, 0, F * D * 2)
    a("s_and_b32 s31, s31, 0xffff")
    a("s_mul_i32 s16, s23, %d" % (G2_N0 * 64 * 2))
    a("s_mul_i32 s17, s23, %d" % (G2_N0 * 64 * 2048))
    a("s_mov_b32 s19, 1000")
    a("s_mov_b32 s18, %d" % ((G2_N0 - 4) // 4))
    a("s_cmp_eq_u32 s23, 1")
    a("s_cselect_b32 s19, %d, s19" % (56 - G2_N0))
    a("s_cselect_b32 s18, %d, s18" % ((72 - G2_N0 - 4) // 4))
    a("s_cselect_b32 s3, %d, 0" % ((72 - G2_N0 - 4) // 4 - (56 - G2_N0 - 4) // 4))
    a("s_lshr_b32 s28, s24, 1")
    a("s_lshl_b32 s28, s28, 8")
    a("s_add_u32 s28, s28, 32768")
    a("v_mov_b32 v27, s28")
    srd(a, 40, 4, WS_P, SZ_P)
    a("s_lshl_b32 s28, s24, 3")
    a("s_add_u32 s28, s28, s25")
    a("s_lshl_b32 s38, s28, 8")
    a("s_lshl_b32 s39, s28, 16")
    a("s_lshl_b32 s28, s20, 13")
    a("s_add_u32 s39, s39, s28")
    a("v_mov_b32 v22, s38")
    a("v_lshlrev_b32 v24, 4, v1")
    a("v_add_u32 v24, s39, v24")
    a("s_movk_i32 s39, 4096")
    srd(a, 48, 32, 0, S * D * 2)
    srd(a, 52, 34, 0, D * 2)
    srd(a, 56, 36, 0, S * D * 2)
    a("s_lshl_b32 s28, s24, 7")
    a("s_lshl_b32 s29, s20, 4")
    a("s_add_u32 s28, s28, s29")
    a("v_add_u32 v25, s28, v4")
    a("v_lshlrev_b32 v25, 11, v25")
    a("s_lshl_b32 s28, s25, 8")
    a("v_lshl_add_u32 v26, v3, 4, s28")
    a("v_add_u32 v25, v25, v26")
    for st in range(4):
        for f in g2_dmas(st):
            for x in f:
                a(x)
    for i in range(64):
        a("v_mov_b32 v%d, 0" % (G2_ACC + i))
    stamp(a, 1)
    a("s_waitcnt vmcnt(12)")
    a("s_barrier")
    stamp(a, 2)
    for f in g2_reads(0, 0):
        for x in f:
            a(x)
    a("s_waitcnt vmcnt(8) lgkmcnt(0)")
    a("s_barrier")
    a.label("g2_loop")
    a("s_cmp_eq_u32 s18, s3")
    a("s_cbranch_scc1 g2_opoll")
    a.label("g2_loop2")
    for i in range(4):
        g2_iter(a, i, True, True, 8)
    a("s_sub_u32 s18, s18, 1")
    a("s_cmp_lg_u32 s18, 0")
    a("s_cbranch_scc1 g2_loop")
    stamp(a, 8)
    a("buffer_load_dword v23, v22, s[44:47], 0 offen sc1")
    g2_iter(a, 0, False, True, 5)
    a("s_cmp_eq_u32 s23, 0")
    a("s_cbranch_scc1 g2_pubtail")
    for j in range(4):
        a("s_mov_b32 s38, 0x%x" % (j * 4 * 2048))
        a("buffer_load_dwordx4 %s, v25, s[48:51], s38 offen" % vr(224 + j * 4, 4))
    a("buffer_load_dwordx4 v[240:243], v26, s[52:55], 0 offen")
    g2_iter(a, 1, False, True, 5)
    stamp(a, 7)
    a("s_mov_b32 s29, 0")
    a("s_branch g2_chk")
    a.label("g2_spin")
    a("buffer_load_dword v23, v22, s[44:47], 0 offen sc1")
    a("s_waitcnt vmcnt(0)")
    a.label("g2_chk")
    a("v_readfirstlane_b32 s28, v23")
    a("s_add_u32 s29, s29, 1")
    a("s_cmp_ge_u32 s28, 1")
    a("s_cbranch_scc1 g2_go")
    a("s_sleep 2")
    a("s_cmp_lt_u32 s29, 0x100000")
    a("s_cbranch_scc1 g2_spin")
    a.label("g2_go")
    stamp(a, 9)
    for t in range(8):
        a("buffer_load_dwordx4 %s, v24, s[40:43], %s offen offset:%d sc1" % (vr(192 + t * 4, 4), "s39" if t >= 4 else "0", (t % 4) * 1024))
    a("s_branch g2_tail")
    a.label("g2_pubtail")
    g2_iter(a, 1, False, True, 0)
    a.label("g2_tail")
    g2_iter(a, 2, False, True, None)
    g2_iter(a, 3, False, False, None)
    stamp(a, 3)
    a("s_nop 7")
    a("s_barrier")
    a("s_mul_i32 s28, s21, %d" % (128 * 528))
    a("s_mul_i32 s29, s22, %d" % (64 * 528))
    a("s_add_u32 s28, s28, s29")
    a("s_lshl_b32 s29, s26, 8")
    a("s_add_u32 s28, s28, s29")
    a("s_movk_i32 s29, 528")
    a("v_mul_lo_u32 v6, v3, s29")
    a("v_lshl_add_u32 v6, v4, 4, v6")
    a("v_add_u32 v6, s28, v6")
    for mt in range(4):
        for nt in range(4):
            a("ds_write_b128 v6, %s offset:%d" % (vr(G2_ACC + (mt * 4 + nt) * 4, 4), mt * 16 * 528 + nt * 64))
    a("s_lshl_b32 s28, s20, 4")
    a("v_add_u32 v7, s28, v4")
    a("v_mul_lo_u32 v7, v7, s29")
    a("v_lshl_add_u32 v7, v3, 5, v7")
    a("v_add_u32 v6, %d, v7" % (128 * 528))
    a("s_waitcnt lgkmcnt(0)")
    a("s_barrier")
    for j in range(4):
        for hf in range(2):
            a("ds_read_b128 %s, v7 offset:%d" % (vr(128 + j * 8 + hf * 4, 4), j * 4 * 528 + hf * 16))
            a("ds_read_b128 %s, v6 offset:%d" % (vr(32 + j * 8 + hf * 4, 4), j * 4 * 528 + hf * 16))
    a("s_waitcnt lgkmcnt(0)")
    for i in range(32):
        a("v_add_f32 v%d, v%d, v%d" % (128 + i, 128 + i, 32 + i))
    a("s_cmp_lg_u32 s23, 0")
    a("s_cbranch_scc1 g2_second")
    for t in range(8):
        a("buffer_store_dwordx4 %s, v24, s[40:43], %s offen offset:%d sc1" % (vr(128 + t * 4, 4), "s39" if t >= 4 else "0", (t % 4) * 1024))
    a("s_waitcnt vmcnt(0)")
    stamp(a, 8)
    a("s_barrier")
    a("s_cmp_lg_u32 s20, 0")
    a("s_cbranch_scc1 g2_fin")
    a("v_mov_b32 v23, 1")
    a("s_mov_b64 exec, 1")
    a("buffer_atomic_add v23, v22, s[44:47], 0 offen sc1")
    a("s_mov_b64 exec, -1")
    a("s_branch g2_fin")
    a.label("g2_second")
    a("s_waitcnt vmcnt(0)")
    for p in range(4):
        a("v_lshlrev_b32 v%d, 16, v%d" % (32 + 2 * p, 240 + p))
        a("v_and_b32 v%d, 0xffff0000, v%d" % (33 + 2 * p, 240 + p))
    for j in range(4):
        for p in range(4):
            c = 128 + j * 8 + 2 * p
            a("v_lshlrev_b32 v12, 16, v%d" % (224 + j * 4 + p))
            a("v_and_b32 v13, 0xffff0000, v%d" % (224 + j * 4 + p))
            a("v_add_f32 v12, v12, v%d" % (32 + 2 * p))
            a("v_add_f32 v13, v13, v%d" % (33 + 2 * p))
            a("v_add_f32 v%d, v%d, v%d" % (c, c, 192 + j * 8 + 2 * p))
            a("v_add_f32 v%d, v%d, v%d" % (c + 1, c + 1, 193 + j * 8 + 2 * p))
            a("v_add_f32 v%d, v%d, v12" % (c, c))
            a("v_add_f32 v%d, v%d, v13" % (c + 1, c + 1))
            a("v_cvt_pk_bf16_f32 v%d, v%d, v%d" % (64 + j * 4 + p, c, c + 1))
        a("s_mov_b32 s38, 0x%x" % (j * 4 * 2048))
        a("buffer_store_dwordx4 %s, v25, s[56:59], s38 offen" % vr(64 + j * 4, 4))
    a.label("g2_fin")
    if "STAMP" in FLAGS:
        a("s_waitcnt vmcnt(0)")
    stamp(a, 4)
    stamp_rt(a, 5)
    stamp_flush(a, 10, 1)
    a.label("g2_done")
    a("s_endpgm")
    a.label("g2_opoll")
    a("s_mov_b32 s29, 0")
    a.label("g2_ospin")
    a("buffer_load_dword v23, v27, s[44:47], 0 offen sc1")
    a("s_waitcnt vmcnt(0)")
    a("v_readfirstlane_b32 s28, v23")
    a("s_add_u32 s29, s29, 1")
    a("s_cmp_ge_u32 s28, 16")
    a("s_cbranch_scc1 g2_loop2")
    a("s_sleep 2")
    a("s_cmp_lt_u32 s29, 0x100000")
    a("s_cbranch_scc1 g2_ospin")
    a("s_branch g2_loop2")
    return L, 248


def gen_combine(a):
    L = "combine_kernel"
    kernel_head(a, L)
    a("s_cmp_ge_u32 s2, 1024")
    a("s_cbranch_scc1 cb_done")
    a("s_load_dwordx2 s[4:5], s[0:1], %d" % KA_WS)
    a("s_load_dwordx2 s[6:7], s[0:1], %d" % KA_X)
    a("s_load_dwordx2 s[20:21], s[0:1], %d" % KA_B2)
    a("s_load_dwordx2 s[22:23], s[0:1], %d" % KA_OUT)
    a("s_lshl_b32 s3, s2, 8")
    a("v_add_u32 v1, s3, v0")
    a("v_lshlrev_b32 v2, 5, v1")
    a("v_lshlrev_b32 v3, 4, v1")
    a("v_and_b32 v4, 127, v1")
    a("v_lshlrev_b32 v4, 4, v4")
    a("s_waitcnt lgkmcnt(0)")
    srd(a, 8, 4, WS_P, SZ_P)
    srd(a, 12, 6, 0, S * D * 2)
    srd(a, 16, 20, 0, D * 2)
    srd(a, 24, 22, 0, S * D * 2)
    a("s_mov_b32 s28, 0x800000")
    a("buffer_load_dwordx4 v[8:11], v2, s[8:11], 0 offen")
    a("buffer_load_dwordx4 v[12:15], v2, s[8:11], 0 offen offset:16")
    a("buffer_load_dwordx4 v[16:19], v2, s[8:11], s28 offen")
    a("buffer_load_dwordx4 v[20:23], v2, s[8:11], s28 offen offset:16")
    a("buffer_load_dwordx4 v[24:27], v3, s[12:15], 0 offen")
    a("buffer_load_dwordx4 v[28:31], v4, s[16:19], 0 offen")
    a("s_waitcnt vmcnt(0)")
    for i in range(8):
        a("v_add_f32 v%d, v%d, v%d" % (8 + i, 8 + i, 16 + i))
    for i in range(4):
        a("v_lshlrev_b32 v32, 16, v%d" % (24 + i))
        a("v_and_b32 v33, 0xffff0000, v%d" % (24 + i))
        a("v_lshlrev_b32 v34, 16, v%d" % (28 + i))
        a("v_and_b32 v35, 0xffff0000, v%d" % (28 + i))
        a("v_add_f32 v32, v32, v34")
        a("v_add_f32 v33, v33, v35")
        a("v_add_f32 v%d, v%d, v32" % (8 + 2 * i, 8 + 2 * i))
        a("v_add_f32 v%d, v%d, v33" % (9 + 2 * i, 9 + 2 * i))
        a("v_cvt_pk_bf16_f32 v%d, v%d, v%d" % (36 + i, 8 + 2 * i, 9 + 2 * i))
    a("buffer_store_dwordx4 v[36:39], v3, s[24:27], 0 offen")
    a.label("cb_done")
    a("s_endpgm")
    return L, 40


def main():
    a = Asm()
    hdr = open("cdna_kernels/%s.s.ref" % NAME).read().split("\n")
    head = [l for l in hdr if l.startswith(";") and "@launch" not in l and "Override launch" not in l and "grid=ceil" not in l]
    launches = [
        "; @launch kernel=ln_kernel grid=(512,1,1) block=(256,1,1) lds=0",
        "; @launch kernel=gemm1_kernel grid=(256,1,1) block=(512,1,1) lds=131072",
        "; @launch kernel=gemm2_kernel grid=(256,1,1) block=(512,1,1) lds=135168",
    ]
    a.raw("\n".join(head + launches))
    a.raw('.amdgcn_target "amdgcn-amd-amdhsa--gfx950"')
    a.raw(".text")
    descs = []
    for g in (gen_ln, gen_gemm1, gen_gemm2):
        label, v = g(a)
        descs.append(kernel_desc(label, v))
    a.raw('.section .rodata,"a"')
    for d in descs:
        a.raw(".p2align 6")
        a.raw(d)
    open(OUT, "w").write(a.text())
    print("wrote", OUT, len(a.lines), "lines")


if __name__ == "__main__":
    main()
```

```python
import sys
import re
import os
FLAGS = set(os.environ.get("FLAGS", "").split(","))

NAME = "parallel_sum__linear_kernel_hedgehog__dense_activation_gelu__prompt"
OUT = os.environ.get("OUT", "cdna_kernels/%s.s" % NAME)

S, D, H, DH, F = 2048, 1024, 32, 32, 3584
KCAT = F + D
KA_X, KA_WQKV, KA_WPHI, KA_WO, KA_BX, KA_W1, KA_B1, KA_W2, KA_B2, KA_OUT, KA_DBG, KA_WS = [8 * i for i in range(12)]
WS_XN = 0x0000000
WS_HC = 0x0400000
WS_PQ = 0x1800000
WS_KV = 0x2000000
WS_P = 0x2400000
WS_FL = 0x3800000
SZ_FL = 65536
SZ_XN = S * D * 2
SZ_HC = S * KCAT * 2
SZ_PQ = H * S * 64 * 2
SZ_KV = 8 * 32 * 16384
SZ_P = S * D * 4

LOG2E = 0x3fb8aa3b
PF_ROWS = int(os.environ.get("PF_ROWS", "256"))
PF_LANES = int(os.environ.get("PF_LANES", "4"))


class Asm:
    def __init__(self):
        self.lines = []

    def __call__(self, s):
        m = re.search(r"offset:(\d+)", s)
        if m:
            lim = 4096 if s.startswith("buffer_") else 65536
            assert int(m.group(1)) < lim, s
        self.lines.append("    " + s)

    def label(self, s):
        self.lines.append(s + ":")

    def raw(self, s):
        self.lines.append(s)

    def text(self):
        return "\n".join(self.lines) + "\n"


def vr(b, n=1):
    return "v%d" % b if n == 1 else "v[%d:%d]" % (b, b + n - 1)


def sr(b, n=1):
    return "s%d" % b if n == 1 else "s[%d:%d]" % (b, b + n - 1)


def srd(a, d, base, off, size):
    if off:
        a("s_add_u32 s%d, s%d, 0x%x" % (d, base, off))
        a("s_addc_u32 s%d, s%d, 0" % (d + 1, base + 1))
    else:
        a("s_mov_b32 s%d, s%d" % (d, base))
        a("s_mov_b32 s%d, s%d" % (d + 1, base + 1))
    a("s_and_b32 s%d, s%d, 0xffff" % (d + 1, d + 1))
    a("s_mov_b32 s%d, 0x%x" % (d + 2, size))
    a("s_mov_b32 s%d, 0x00020000" % (d + 3))


def kernel_head(a, label):
    a.raw(".globl %s" % label)
    a.raw(".p2align 8")
    a.raw(".type %s,@function" % label)
    a.label(label)


def kernel_desc(label, vgpr, sgpr=102):
    acc = (vgpr + 3) // 4 * 4
    return """.amdhsa_kernel %s
  .amdhsa_next_free_vgpr %d
  .amdhsa_next_free_sgpr %d
  .amdhsa_accum_offset %d
  .amdhsa_group_segment_fixed_size 0
  .amdhsa_kernarg_size 96
  .amdhsa_user_sgpr_count 2
  .amdhsa_user_sgpr_kernarg_segment_ptr 1
  .amdhsa_system_sgpr_workgroup_id_x 1
.end_amdhsa_kernel
""" % (label, vgpr, sgpr, acc)


def stamp(a, i):
    if "STAMP" in FLAGS:
        a("s_memtime s[%d:%d]" % (60 + 2 * i, 61 + 2 * i))


def stamp_rt(a, i):
    if "STAMP" in FLAGS:
        a("s_memrealtime s[%d:%d]" % (60 + 2 * i, 61 + 2 * i))


def stamp_flush(a, n, kidx):
    if "STAMP" not in FLAGS:
        return
    a("s_waitcnt lgkmcnt(0)")
    srd(a, 88, 4, 0x8000000 + kidx * 0x100000, 0x100000)
    a("s_lshl_b32 s92, s2, 3")
    a("s_add_u32 s92, s92, s20")
    a("s_lshl_b32 s92, s92, 7")
    a("v_mov_b32 v2, s92")
    for i in range(n):
        a("v_mov_b32 v4, s%d" % (60 + 2 * i))
        a("v_mov_b32 v5, s%d" % (61 + 2 * i))
        a("buffer_store_dwordx2 v[4:5], v2, s[88:91], 0 offen offset:%d" % (8 * i))
        a("s_nop 1")


def allreduce64(a, op, v, t):
    for ctl in ("quad_perm:[1,0,3,2]", "quad_perm:[2,3,0,1]", "row_half_mirror", "row_mirror"):
        a("s_nop 1")
        a("%s_dpp %s, %s, %s %s row_mask:0xf bank_mask:0xf" % (op, vr(v), vr(v), vr(v), ctl))
    for sw in ("v_permlane16_swap_b32", "v_permlane32_swap_b32"):
        a("v_mov_b32 %s, %s" % (vr(t), vr(v)))
        a("s_nop 1")
        a("%s %s, %s" % (sw, vr(v), vr(t)))
        a("s_nop 1")
        a("%s %s, %s, %s" % (op, vr(v), vr(v), vr(t)))


def gen_ln(a):
    L = "ln_kernel"
    kernel_head(a, L)
    a("s_cmp_ge_u32 s2, 512")
    a("s_cbranch_scc1 ln_done")
    a("s_load_dwordx2 s[4:5], s[0:1], %d" % KA_X)
    a("s_load_dwordx2 s[6:7], s[0:1], %d" % KA_WS)
    a("s_load_dwordx2 s[20:21], s[0:1], %d" % KA_WQKV)
    a("s_load_dwordx2 s[22:23], s[0:1], %d" % KA_W1)
    a("v_lshrrev_b32 v1, 6, v0")
    a("v_and_b32 v2, 63, v0")
    a("s_lshl_b32 s3, s2, 2")
    a("v_add_u32 v1, s3, v1")
    a("v_lshlrev_b32 v3, 12, v1")
    a("v_lshl_add_u32 v3, v2, 6, v3")
    a("v_lshlrev_b32 v1, 11, v1")
    a("v_lshl_add_u32 v1, v2, 4, v1")
    a("s_waitcnt lgkmcnt(0)")
    srd(a, 8, 4, 0, SZ_XN)
    srd(a, 12, 6, WS_XN, SZ_XN)
    a("buffer_load_dwordx4 v[4:7], v1, s[8:11], 0 offen")
    a("buffer_load_dwordx4 v[8:11], v1, s[8:11], 0 offen offset:1024")
    if "NOPF" not in FLAGS:
        srd(a, 24, 20, 0, PF_ROWS * 3 * D * 2)
        srd(a, 28, 22, 0, PF_ROWS * F * 2)
        a("buffer_load_dword v39, v3, s[24:27], 0 offen")
        a("buffer_load_dword v39, v3, s[28:31], 0 offen")
    a("s_cmp_ge_u32 s2, 16")
    a("s_cbranch_scc1 ln_nz")
    srd(a, 16, 6, WS_FL, SZ_FL)
    a("s_lshl_b32 s3, s2, 12")
    a("v_lshl_add_u32 v12, v0, 4, s3")
    for i in range(4):
        a("v_mov_b32 v%d, 0" % (16 + i))
    a("buffer_store_dwordx4 v[16:19], v12, s[16:19], 0 offen")
    a("s_waitcnt vmcnt(3)")
    a.label("ln_nz")
    a("s_waitcnt vmcnt(%d)" % (0 if "NOPF" in FLAGS else 2))
    for i in range(8):
        a("v_lshlrev_b32 v%d, 16, v%d" % (16 + 2 * i, 4 + i))
        a("v_and_b32 v%d, 0xffff0000, v%d" % (17 + 2 * i, 4 + i))
    a("v_add_f32 v32, v16, v17")
    for i in range(2, 16):
        a("v_add_f32 v32, v32, v%d" % (16 + i))
    allreduce64(a, "v_add_f32", 32, 33)
    a("v_mul_f32 v32, 0x3a800000, v32")
    a("v_sub_f32 v34, v16, v32")
    a("v_mul_f32 v35, v34, v34")
    for i in range(1, 16):
        a("v_sub_f32 v34, v%d, v32" % (16 + i))
        a("v_fmac_f32 v35, v34, v34")
    allreduce64(a, "v_add_f32", 35, 33)
    a("v_mul_f32 v35, 0x3a800000, v35")
    a("v_cvt_pk_bf16_f32 v36, v32, v35")
    a("v_lshlrev_b32 v32, 16, v36")
    a("v_and_b32 v35, 0xffff0000, v36")
    a("v_add_f32 v35, 0x3727c5ac, v35")
    a("v_cvt_pk_bf16_f32 v36, v35, v35")
    a("v_lshlrev_b32 v35, 16, v36")
    a("v_sqrt_f32 v35, v35")
    a("s_nop 0")
    a("v_cvt_pk_bf16_f32 v36, v35, v35")
    a("v_lshlrev_b32 v35, 16, v36")
    a("v_rcp_f32 v35, v35")
    a("s_nop 0")
    for i in range(8):
        a("v_sub_f32 v%d, v%d, v32" % (16 + 2 * i, 16 + 2 * i))
        a("v_sub_f32 v%d, v%d, v32" % (17 + 2 * i, 17 + 2 * i))
        a("v_cvt_pk_bf16_f32 v36, v%d, v%d" % (16 + 2 * i, 17 + 2 * i))
        a("v_lshlrev_b32 v37, 16, v36")
        a("v_and_b32 v38, 0xffff0000, v36")
        a("v_mul_f32 v37, v37, v35")
        a("v_mul_f32 v38, v38, v35")
        a("v_cvt_pk_bf16_f32 v%d, v37, v38" % (4 + i))
    a("buffer_store_dwordx4 v[4:7], v1, s[12:15], 0 offen")
    a("buffer_store_dwordx4 v[8:11], v1, s[12:15], 0 offen offset:1024")
    a.label("ln_done")
    a("s_endpgm")
    return L, 40


def interleave(a, mfmas, fillers):
    n = len(mfmas)
    nf = len(fillers)
    fi = 0
    for i, m in enumerate(mfmas):
        a(m)
        want = ((i + 1) * nf + n - 1) // n if nf <= n else ((i + 1) * nf) // n
        want = min(nf, max(want, min(nf, i + 1)))
        while fi < want:
            for x in fillers[fi]:
                a(x)
            fi += 1
    while fi < nf:
        for x in fillers[fi]:
            a(x)
        fi += 1


def place(a, mfmas, slots):
    for i, m in enumerate(mfmas):
        a(m)
        for grp in slots.get(i, []):
            for x in grp:
                a(x)


class Gemm:
    def __init__(self, a, MT, NT, acc, fragA, fragB, vA, vB, voffA, voffB,
                 orient, sM0, sOffA, sOffB, srdA, srdB, stepA, stepB):
        self.__dict__.update(locals())

    def mfmas(self, st):
        out = []
        for mt in range(self.MT):
            for nt in range(self.NT):
                c = self.acc + (mt * self.NT + nt) * 4
                fa = self.fragA[st] + mt * 4
                fb = self.fragB[st] + nt * 4
                x, y = (fb, fa) if self.orient(nt) else (fa, fb)
                out.append("v_mfma_f32_16x16x32_bf16 %s, %s, %s, %s" % (vr(c, 4), vr(x, 4), vr(y, 4), vr(c, 4)))
        return out

    def reads(self, st, buf):
        out = []
        for mt in range(self.MT):
            out.append(["ds_read_b128 %s, %s offset:%d" % (vr(self.fragA[st] + mt * 4, 4), vr(self.vA), buf * 16384 + mt * 1024)])
        for nt in range(self.NT):
            for rd in range(2):
                out.append(["ds_read_b64_tr_b16 %s, %s offset:%d" % (vr(self.fragB[st] + nt * 4 + rd * 2, 2), vr(self.vB[nt]), buf * 16384 + rd * 2048)])
        return out

    def dmas(self, buf):
        out = []
        for j in range(2):
            out.append(["s_add_u32 m0, s%d, %d" % (self.sM0, buf * 16384 + j * 1024),
                        "s_nop 0",
                        "buffer_load_dwordx4 %s, %s, s%d offen lds" % (vr(self.voffA + j), sr(self.srdA, 4), self.sOffA)])
        for j in range(2):
            out.append(["s_add_u32 m0, s%d, %d" % (self.sM0, 65536 + buf * 16384 + j * 1024),
                        "s_nop 0",
                        "buffer_load_dwordx4 %s, %s, s%d offen lds" % (vr(self.voffB + j), sr(self.srdB, 4), self.sOffB)])
        out.append(["s_add_u32 s%d, s%d, %d" % (self.sOffA, self.sOffA, self.stepA),
                    "s_add_u32 s%d, s%d, %d" % (self.sOffB, self.sOffB, self.stepB)])
        return out

    def pf(self):
        return ["buffer_load_dword v30, v31, s[40:43], s19 offen",
                "s_add_u32 s19, s19, 0x%x" % (PF_LANES * 64 * 1024)]

    def iteration(self, i, dma, nxt, vm):
        a = self.a
        mf = self.mfmas(i & 1)
        n = len(mf)
        dpos = [1 + (j * (n - 2)) // 4 for j in range(4)]
        slots = {}
        if dma and "NODMA" not in FLAGS:
            d = self.dmas(i % 4)
            for j in range(4):
                slots.setdefault(dpos[j], []).append(d[j])
            slots.setdefault(dpos[3], []).append(d[4])
            slots.setdefault(dpos[3] + 1, []).append(self.pf())
        if nxt:
            r = self.reads((i + 1) & 1, (i + 1) % 4)
            pos = [p for p in range(n) if p not in dpos][:len(r)]
            for p, x in zip(pos, r):
                slots.setdefault(p, []).append(x)
        place(a, mf, slots)
        if nxt:
            if vm is None:
                a("s_waitcnt lgkmcnt(0)")
            else:
                a("s_waitcnt vmcnt(%d) lgkmcnt(0)" % vm)
            a("s_barrier")

    def run(self, nstages, tag, sCnt):
        a = self.a
        a("s_lshl_b32 s28, s23, 4")
        a("s_add_u32 s28, s28, s25")
        a("s_lshl_b32 s28, s28, 3")
        a("s_add_u32 s28, s28, s20")
        a("s_mul_i32 s28, s28, %d" % (PF_LANES * 64))
        a("v_lshl_add_u32 v31, v1, 6, s28")
        a("v_cmp_gt_u32 vcc, %d, v1" % PF_LANES)
        a("v_mov_b32 v29, 0x7f000000")
        a("s_nop 0")
        a("v_cndmask_b32 v31, v29, v31, vcc")
        a("s_mov_b32 s19, 0x%x" % (PF_ROWS * (self.stepB // 32)))
        for i in range(4):
            a("s_mov_b32 s%d, s%d" % (40 + i, self.srdB + i))
        for st in range(4):
            for f in self.dmas(st):
                for x in f:
                    a(x)
            if st >= 2:
                for x in self.pf():
                    a(x)
        for i in range(self.MT * self.NT * 4):
            a("v_mov_b32 v%d, 0" % (self.acc + i))
        stamp(a, 1)
        a("s_waitcnt vmcnt(14)")
        a("s_barrier")
        stamp(a, 2)
        for f in self.reads(0, 0):
            for x in f:
                a(x)
        a("s_waitcnt vmcnt(10) lgkmcnt(0)")
        a("s_barrier")
        a("s_mov_b32 s%d, %d" % (sCnt, (nstages - 4) // 4))
        a.label(tag + "_loop")
        for i in range(4):
            self.iteration(i, True, True, 11)
        a("s_sub_u32 s%d, s%d, 1" % (sCnt, sCnt))
        a("s_cmp_lg_u32 s%d, 0" % sCnt)
        a("s_cbranch_scc1 %s_loop" % tag)
        self.iteration(0, False, True, 6)
        self.iteration(1, False, True, 1)
        self.iteration(2, False, True, None)
        self.iteration(3, False, False, None)
        stamp(a, 3)
        a("s_lshl_b32 s28, s2, 3")
        a("s_add_u32 s28, s28, s20")
        a("s_lshl_b32 s28, s28, 12")
        a("v_lshl_add_u32 v31, v1, 6, s28")
        srd(a, 40, 48, 0, F * D * 2)
        a("buffer_load_dword v30, v31, s[40:43], 0 offen")
        srd(a, 40, 44, 0, D * D * 2)
        a("buffer_load_dword v30, v31, s[40:43], 0 offen")


G1_ACC = 128
G1_FA = (32, 76)
G1_FB = (48, 92)
G1_VOA, G1_VOB = 8, 12
G1_VA = 16
G1_VB = (18, 19, 20, 21, 22, 23, 24)
G1_X = 240


def g1_common_addr(a):
    a("v_and_b32 v1, 63, v0")
    a("v_lshrrev_b32 v2, 6, v0")
    a("s_nop 0")
    a("v_readfirstlane_b32 s20, v2")
    a("v_and_b32 v3, 15, v1")
    a("v_lshrrev_b32 v4, 4, v1")


def gen_gemm1(a):
    L = "gemm1_kernel"
    kernel_head(a, L)
    a("s_cmp_ge_u32 s2, 256")
    a("s_cbranch_scc1 g1_done")
    stamp(a, 0)
    stamp_rt(a, 6)
    a("s_load_dwordx2 s[4:5], s[0:1], %d" % KA_WS)
    a("s_load_dwordx2 s[6:7], s[0:1], %d" % KA_WQKV)
    a("s_load_dwordx2 s[30:31], s[0:1], %d" % KA_W1)
    a("s_load_dwordx2 s[32:33], s[0:1], %d" % KA_WPHI)
    a("s_load_dwordx2 s[34:35], s[0:1], %d" % KA_B1)
    a("s_load_dwordx2 s[44:45], s[0:1], %d" % KA_WO)
    a("s_load_dwordx2 s[48:49], s[0:1], %d" % KA_W2)
    g1_common_addr(a)
    a("s_and_b32 s21, s2, 7")
    a("s_lshr_b32 s22, s2, 3")
    a("s_and_b32 s23, s21, 1")
    a("s_lshl_b32 s23, s23, 2")
    a("s_and_b32 s24, s22, 3")
    a("s_add_u32 s23, s23, s24")
    a("s_lshr_b32 s24, s22, 2")
    a("s_lshr_b32 s25, s21, 1")
    a("s_lshl_b32 s25, s25, 2")
    a("s_and_b32 s26, s24, 3")
    a("s_add_u32 s25, s25, s26")
    a("s_lshr_b32 s21, s20, 1")
    a("s_and_b32 s22, s20, 1")
    a("s_lshl_b32 s27, s20, 11")
    a("v_lshrrev_b32 v5, 2, v1")
    a("s_lshl_b32 s28, s23, 8")
    a("s_lshl_b32 s29, s20, 5")
    a("s_add_u32 s28, s28, s29")
    a("v_add_u32 v5, s28, v5")
    a("v_lshlrev_b32 v5, 11, v5")
    a("v_lshrrev_b32 v6, 1, v4")
    a("v_xor_b32 v7, v6, v4")
    a("v_and_b32 v7, 1, v7")
    a("v_lshl_or_b32 v6, v7, 1, v6")
    a("v_and_b32 v7, 3, v1")
    a("v_xor_b32 v7, v7, v6")
    a("v_lshl_add_u32 v%d, v7, 4, v5" % G1_VOA)
    a("v_add_u32 v%d, %d, v%d" % (G1_VOA + 1, 16 * 2048, G1_VOA))
    a("v_bfe_u32 v5, v1, 2, 2")
    a("v_lshrrev_b32 v6, 1, v5")
    a("v_xor_b32 v7, v6, v5")
    a("v_and_b32 v7, 1, v7")
    a("v_lshl_or_b32 v6, v7, 1, v6")
    a("v_xor_b32 v5, v6, v4")
    a("s_lshl_b32 s28, s21, 6")
    a("v_add_u32 v6, s28, v3")
    a("v_lshlrev_b32 v6, 6, v6")
    a("v_lshl_add_u32 v%d, v5, 4, v6" % G1_VA)
    a("v_bfe_u32 v5, v1, 2, 2")
    a("v_and_b32 v6, 1, v4")
    a("v_lshl_or_b32 v6, v6, 2, v5")
    a("v_lshl_add_u32 v5, v4, 3, v5")
    a("v_lshlrev_b32 v5, 9, v5")
    a("v_and_b32 v7, 3, v1")
    a("v_lshl_add_u32 v5, v7, 3, v5")
    a("v_add_u32 v5, 0x10000, v5")
    a("s_waitcnt lgkmcnt(0)")
    srd(a, 8, 4, WS_XN, SZ_XN)
    a("s_mov_b32 s16, 0")
    a("s_mov_b32 s17, 0")
    a("s_cmp_ge_u32 s24, 4")
    a("s_cbranch_scc1 g1_w1")

    def b_dma_rows(a, j):
        a("v_lshrrev_b32 v25, 5, v1")
        a("v_add_u32 v25, %d, v25" % (2 * j))
        a("s_bfe_u32 s28, s20, 0x10001")
        a("s_lshl_b32 s28, s28, 2")
        a("v_or_b32 v26, s28, v25")
        a("v_lshlrev_b32 v26, 1, v26")
        a("v_and_b32 v27, 31, v1")
        a("v_xor_b32 v26, v26, v27")
        a("s_lshl_b32 s28, s20, 2")
        a("v_add_u32 v25, s28, v25")

    NT = 6
    for tt in range(NT):
        a("s_mul_i32 s28, s22, %d" % NT)
        a("s_add_u32 s28, s28, %d" % tt)
        a("v_xor_b32 v7, s28, v6")
        a("v_lshl_add_u32 v%d, v7, 5, v5" % G1_VB[tt])
    srd(a, 12, 6, 0, D * 3 * D * 2)
    for j in range(2):
        b_dma_rows(a, j)
        a("v_lshrrev_b32 v27, 2, v26")
        a("v_cmp_le_u32 vcc, 3, v27")
        a("s_nop 1")
        a("v_cndmask_b32 v28, 0, 1, vcc")
        a("v_mul_u32_u24 v29, 3, v28")
        a("v_sub_u32 v29, v27, v29")
        a("s_lshl_b32 s28, s25, 1")
        a("v_add_u32 v28, s28, v28")
        a("v_lshlrev_b32 v28, 6, v28")
        a("v_lshl_add_u32 v28, v29, 11, v28")
        a("v_and_b32 v29, 3, v26")
        a("v_lshl_add_u32 v28, v29, 4, v28")
        a("s_movk_i32 s28, 6144")
        a("v_mul_lo_u32 v29, v25, s28")
        a("v_add_u32 v28, v28, v29")
        a("v_cmp_gt_u32 vcc, 6, v27")
        a("v_mov_b32 v29, 0x7f000000")
        a("s_nop 0")
        a("v_cndmask_b32 v%d, v29, v28, vcc" % (G1_VOB + j))
    srd(a, 36, 32, 0, H * DH * DH * 2)
    a("s_lshl_b32 s28, s25, 1")
    a("s_add_u32 s28, s28, s22")
    a("s_lshl_b32 s28, s28, 11")
    a("v_lshlrev_b32 v25, 8, v4")
    a("v_lshl_add_u32 v25, v3, 1, v25")
    a("v_add_u32 v25, s28, v25")
    for ft in range(2):
        for j in range(8):
            d = (j & 3) + (16 if j >= 4 else 0)
            a("buffer_load_ushort v%d, v25, s[36:39], 0 offen offset:%d" % (224 + ft * 8 + j, d * 64 + ft * 32))
    g = Gemm(a, 4, NT, G1_ACC, G1_FA, G1_FB, G1_VA, G1_VB, G1_VOA, G1_VOB,
             lambda nt: nt < 4, 27, 16, 17, 8, 12, 64, 32 * 6144)
    g.run(32, "g1q", 18)
    if "NOEPI" not in FLAGS:
        g1_qkv_epilogue(a)
    a("s_branch g1_fin")

    a.label("g1_w1")
    NT = 7
    for tt in range(NT):
        a("s_mul_i32 s28, s22, %d" % NT)
        a("s_add_u32 s28, s28, %d" % tt)
        a("v_xor_b32 v7, s28, v6")
        a("v_lshl_add_u32 v%d, v7, 5, v5" % G1_VB[tt])
    srd(a, 12, 30, 0, D * F * 2)
    for j in range(2):
        b_dma_rows(a, j)
        a("s_mul_i32 s28, s25, 448")
        a("v_lshlrev_b32 v28, 4, v26")
        a("v_add_u32 v28, s28, v28")
        a("s_movk_i32 s28, 7168")
        a("v_mul_lo_u32 v29, v25, s28")
        a("v_add_u32 v28, v28, v29")
        a("v_cmp_gt_u32 vcc, 28, v26")
        a("v_mov_b32 v29, 0x7f000000")
        a("s_nop 0")
        a("v_cndmask_b32 v%d, v29, v28, vcc" % (G1_VOB + j))
    srd(a, 36, 34, 0, F * 2)
    a("s_mul_i32 s28, s25, 448")
    a("s_mul_i32 s29, s22, 224")
    a("s_add_u32 s28, s28, s29")
    a("v_lshlrev_b32 v25, 3, v4")
    a("v_add_u32 v25, s28, v25")
    for tt in range(NT):
        a("buffer_load_dwordx2 %s, v25, s[36:39], 0 offen offset:%d" % (vr(G1_X + 2 * tt, 2), tt * 32))
    g = Gemm(a, 4, NT, G1_ACC, G1_FA, G1_FB, G1_VA, G1_VB, G1_VOA, G1_VOB,
             lambda nt: True, 27, 16, 17, 8, 12, 64, 32 * 7168)
    g.run(32, "g1w", 18)
    if "NOEPI" not in FLAGS:
        g1_w1_epilogue(a)
    a.label("g1_fin")
    if "STAMP" in FLAGS:
        a("s_waitcnt vmcnt(0)")
    stamp(a, 4)
    stamp_rt(a, 5)
    stamp_flush(a, 12, 0)
    a.label("g1_done")
    a("s_endpgm")
    return L, 256


def f32bits(x):
    import struct
    return struct.unpack("<I", struct.pack("<f", x))[0]


def g1_w1_epilogue(a):
    NT = 7
    RS = 240
    srd(a, 40, 4, WS_HC, SZ_HC)
    for tt in range(NT):
        for p in range(2):
            a("v_lshlrev_b32 v%d, 16, v%d" % (32 + tt * 4 + 2 * p, G1_X + 2 * tt + p))
            a("v_and_b32 v%d, 0xffff0000, v%d" % (33 + tt * 4 + 2 * p, G1_X + 2 * tt + p))
    a("s_mul_i32 s28, s20, %d" % (64 * RS))
    a("s_movk_i32 s29, %d" % RS)
    a("v_mul_lo_u32 v6, v3, s29")
    a("v_lshl_add_u32 v6, v4, 3, v6")
    a("v_add_u32 v6, s28, v6")
    a("v_subrev_u32 v7, 56, v1")
    a("v_cmp_gt_u32 vcc, 56, v1")
    a("s_nop 1")
    a("v_cndmask_b32 v7, v7, v1, vcc")
    a("v_mul_u32_u24 v8, 0x4a, v7")
    a("v_lshrrev_b32 v8, 10, v8")
    a("v_mul_u32_u24 v9, 14, v8")
    a("v_sub_u32 v9, v7, v9")
    a("v_mul_lo_u32 v7, v8, s29")
    a("v_lshl_add_u32 v7, v9, 4, v7")
    a("v_add_u32 v7, s28, v7")
    a("s_lshl_b32 s28, s23, 8")
    a("s_lshl_b32 s29, s21, 6")
    a("s_add_u32 s28, s28, s29")
    a("v_add_u32 v5, s28, v8")
    a("s_movk_i32 s28, 9216")
    a("v_mul_lo_u32 v5, v5, s28")
    a("s_mul_i32 s28, s25, 448")
    a("s_mul_i32 s29, s22, 224")
    a("s_add_u32 s28, s28, s29")
    a("v_lshl_add_u32 v9, v9, 4, s28")
    a("v_add_u32 v5, v5, v9")
    k0 = -2.0 * 0.7978845608028654 * 1.4426950408889634
    k1 = k0 * 0.044715
    a("s_mov_b32 s44, 0x%08x" % f32bits(k1))
    a("s_mov_b32 s45, 0x%08x" % f32bits(k1))
    a("s_mov_b32 s46, 1.0")
    a("s_mov_b32 s47, 1.0")
    a("v_mov_b32 v8, 0x%08x" % f32bits(k0))
    a("v_mov_b32 v9, 0x%08x" % f32bits(k0))
    a("s_barrier")

    def flush(mt):
        for j in range(4):
            a("ds_read_b128 %s, v7 offset:%d" % (vr(96 + j * 4, 4), (mt * 16 + j * 4) * RS))
        for j in range(4):
            a("s_waitcnt lgkmcnt(%d)" % (3 - j))
            a("s_mov_b32 s28, 0x%x" % ((mt * 16 + j * 4) * 9216))
            a("buffer_store_dwordx4 %s, v5, s[40:43], s28 offen" % vr(96 + j * 4, 4))

    for mt in range(4):
        for tt in range(NT):
            c = G1_ACC + (mt * NT + tt) * 4
            T = 64 + ((mt * NT + tt) & 1) * 16
            for p in range(2):
                a("v_pk_add_f32 %s, %s, %s" % (vr(T + 2 * p, 2), vr(c + 2 * p, 2), vr(32 + tt * 4 + 2 * p, 2)))
            for p in range(2):
                a("v_pk_mul_f32 %s, %s, %s" % (vr(T + 4 + 2 * p, 2), vr(T + 2 * p, 2), vr(T + 2 * p, 2)))
            for p in range(2):
                a("v_pk_fma_f32 %s, %s, s[44:45], v[8:9]" % (vr(T + 4 + 2 * p, 2), vr(T + 4 + 2 * p, 2)))
            for p in range(2):
                a("v_pk_mul_f32 %s, %s, %s" % (vr(T + 4 + 2 * p, 2), vr(T + 4 + 2 * p, 2), vr(T + 2 * p, 2)))
            for r in range(4):
                a("v_exp_f32 v%d, v%d" % (T + 4 + r, T + 4 + r))
            a("s_nop 0")
            for p in range(2):
                a("v_pk_add_f32 %s, %s, s[46:47]" % (vr(T + 4 + 2 * p, 2), vr(T + 4 + 2 * p, 2)))
            for r in range(4):
                a("v_rcp_f32 v%d, v%d" % (T + 4 + r, T + 4 + r))
            a("s_nop 0")
            for p in range(2):
                a("v_pk_mul_f32 %s, %s, %s" % (vr(T + 4 + 2 * p, 2), vr(T + 4 + 2 * p, 2), vr(T + 2 * p, 2)))
            a("v_cvt_pk_bf16_f32 v%d, v%d, v%d" % (T + 8, T + 4, T + 5))
            a("v_cvt_pk_bf16_f32 v%d, v%d, v%d" % (T + 9, T + 6, T + 7))
            a("ds_write_b64 v6, %s offset:%d" % (vr(T + 8, 2), mt * 16 * RS + tt * 32))
            if tt == 2 and mt > 0:
                flush(mt - 1)
        a("s_waitcnt lgkmcnt(0)")
    flush(3)


def bf16_round_pair(a, x0, x1, t):
    a("v_cvt_pk_bf16_f32 v%d, v%d, v%d" % (t, x0, x1))
    a("v_lshlrev_b32 v%d, 16, v%d" % (x0, t))
    a("v_and_b32 v%d, 0xffff0000, v%d" % (x1, t))


def xlane_g(a, op, regs, temps):
    for sw in ("v_permlane16_swap_b32", "v_permlane32_swap_b32"):
        for v, t in zip(regs, temps):
            a("v_mov_b32 v%d, v%d" % (t, v))
        a("s_nop 1")
        for v, t in zip(regs, temps):
            a("%s v%d, v%d" % (sw, v, t))
        a("s_nop 1")
        for (v, t), o in zip(zip(regs, temps), op):
            a("%s v%d, v%d, v%d" % (o, v, v, t))


def dpp16(a, ops, regs):
    for ctl in ("quad_perm:[1,0,3,2]", "quad_perm:[2,3,0,1]", "row_half_mirror", "row_mirror"):
        if len(regs) < 3:
            a("s_nop 1")
        for v, o in zip(regs, ops):
            a("%s_dpp v%d, v%d, v%d %s row_mask:0xf bank_mask:0xf" % (o, v, v, v, ctl))


def g1_softmax_batch(a, acc, WP, tt0):
    E = lambda mt: 32 + mt * 16
    FR = lambda mt: 96 + mt * 4
    MX = lambda mt: 112 + 2 * mt
    MN = lambda mt: 120 + 2 * mt
    P = lambda mt: acc(mt, tt0)
    R = range(4)
    for mt in R:
        for i in range(4):
            a("v_cvt_pk_bf16_f32 v%d, v%d, v%d" % (FR(mt) + i, P(mt) + 2 * i, P(mt) + 2 * i + 1))
    a("s_nop 1")
    for mt in R:
        for ft in range(2):
            a("v_mfma_f32_16x16x32_bf16 %s, %s, %s, 0" % (vr(P(mt) + ft * 4, 4), vr(WP[ft], 4), vr(FR(mt), 4)))
    a("s_nop 7")
    for mt in R:
        for i in range(4):
            a("v_cvt_pk_bf16_f32 v%d, v%d, v%d" % (E(mt) + i, P(mt) + 2 * i, P(mt) + 2 * i + 1))
    for mt in R:
        for i in range(4):
            a("v_lshlrev_b32 v%d, 16, v%d" % (P(mt) + 2 * i, E(mt) + i))
            a("v_and_b32 v%d, 0xffff0000, v%d" % (P(mt) + 2 * i + 1, E(mt) + i))
    for op3, op2, M in (("v_max3_f32", "v_max_f32", MX), ("v_min3_f32", "v_min_f32", MN)):
        for mt in R:
            a("%s v%d, v%d, v%d, v%d" % (op3, M(mt), P(mt), P(mt) + 1, P(mt) + 2))
        for mt in R:
            a("%s v%d, v%d, v%d, v%d" % (op3, M(mt), M(mt), P(mt) + 3, P(mt) + 4))
        for mt in R:
            a("%s v%d, v%d, v%d, v%d" % (op3, M(mt), M(mt), P(mt) + 5, P(mt) + 6))
        for mt in R:
            a("%s v%d, v%d, v%d" % (op2, M(mt), M(mt), P(mt) + 7))

    def xl(opx, opn):
        regs = [(MX(mt), opx) for mt in R] + [(MN(mt), opn) for mt in R]
        for sw in ("v_permlane16_swap_b32", "v_permlane32_swap_b32"):
            for v, o in regs:
                a("v_mov_b32 v%d, v%d" % (v + 1, v))
            a("s_nop 0")
            for v, o in regs:
                a("%s v%d, v%d" % (sw, v, v + 1))
            a("s_nop 0")
            for v, o in regs:
                a("%s v%d, v%d, v%d" % (o, v, v, v + 1))
    xl("v_max_f32", "v_min_f32")
    for mt in R:
        a("v_mul_f32 v%d, s48, v%d" % (MX(mt), MX(mt)))
        a("v_mul_f32 v%d, s48, v%d" % (MN(mt), MN(mt)))
    for mt in R:
        for i in range(4):
            a("v_pk_fma_f32 %s, %s, s[48:49], %s op_sel_hi:[1,1,0] neg_lo:[0,0,1] neg_hi:[0,0,1]" % (
                vr(E(mt) + 2 * i, 2), vr(P(mt) + 2 * i, 2), vr(MX(mt), 2)))
            a("v_pk_fma_f32 %s, %s, s[48:49], %s op_sel_hi:[1,1,0] neg_lo:[1,0,0] neg_hi:[1,0,0]" % (
                vr(E(mt) + 8 + 2 * i, 2), vr(P(mt) + 2 * i, 2), vr(MN(mt), 2)))
    for mt in R:
        for i in range(16):
            a("v_exp_f32 v%d, v%d" % (E(mt) + i, E(mt) + i))
    a("s_nop 0")
    for M, o in ((MX, 0), (MN, 8)):
        for mt in R:
            a("v_pk_add_f32 %s, %s, %s" % (vr(M(mt), 2), vr(E(mt) + o, 2), vr(E(mt) + o + 2, 2)))
        for mt in R:
            a("v_pk_add_f32 %s, %s, %s" % (vr(M(mt), 2), vr(M(mt), 2), vr(E(mt) + o + 4, 2)))
        for mt in R:
            a("v_pk_add_f32 %s, %s, %s" % (vr(M(mt), 2), vr(M(mt), 2), vr(E(mt) + o + 6, 2)))
        for mt in R:
            a("v_add_f32 v%d, v%d, v%d" % (M(mt), M(mt), M(mt) + 1))
    xl("v_add_f32", "v_add_f32")
    for mt in R:
        a("v_rcp_f32 v%d, v%d" % (MX(mt), MX(mt)))
        a("v_rcp_f32 v%d, v%d" % (MN(mt), MN(mt)))
    a("s_nop 0")
    for mt in R:
        for i in range(4):
            a("v_pk_mul_f32 %s, %s, %s op_sel_hi:[1,0]" % (vr(E(mt) + 2 * i, 2), vr(E(mt) + 2 * i, 2), vr(MX(mt), 2)))
            a("v_pk_mul_f32 %s, %s, %s op_sel_hi:[1,0]" % (vr(E(mt) + 8 + 2 * i, 2), vr(E(mt) + 8 + 2 * i, 2), vr(MN(mt), 2)))
    for mt in R:
        for i in range(8):
            a("v_cvt_pk_bf16_f32 v%d, v%d, v%d" % (P(mt) + i, E(mt) + 2 * i, E(mt) + 2 * i + 1))


def g1_qkv_epilogue(a):
    NT = 6
    WP = (G1_X, G1_X + 4)
    KS = 160
    SH = 98304

    def acc(mt, tt):
        return G1_ACC + (mt * NT + tt) * 4

    srd(a, 40, 4, WS_PQ, SZ_PQ)
    srd(a, 44, 4, WS_KV, SZ_KV)
    a("s_mov_b32 s48, 0x%08x" % LOG2E)
    a("s_mov_b32 s49, 0x%08x" % LOG2E)
    a("s_mul_i32 s50, s20, 12288")
    for i in range(8):
        a("v_lshl_or_b32 v%d, v%d, 16, v%d" % (G1_X + i, 224 + 2 * i + 1, 224 + 2 * i))
    a("s_movk_i32 s28, %d" % KS)
    a("v_mul_lo_u32 v5, v3, s28")
    a("v_lshl_add_u32 v5, v4, 3, v5")
    a("v_add_u32 v5, s50, v5")
    a("v_bfe_u32 v6, v1, 2, 2")
    a("v_lshl_add_u32 v6, v4, 2, v6")
    a("v_mul_lo_u32 v6, v6, s28")
    a("v_and_b32 v7, 3, v1")
    a("v_lshl_add_u32 v6, v7, 3, v6")
    a("v_add_u32 v6, s50, v6")
    a("v_lshlrev_b32 v7, 4, v1")
    a("s_barrier")
    g1_softmax_batch(a, acc, WP, 2)
    stamp(a, 7)
    for mt in range(4):
        for q in range(4):
            a("ds_write_b64 v5, %s offset:%d" % (vr(acc(mt, 2) + 2 * q, 2), mt * 16 * KS + q * 32))
    KV, AF, BF, ONE = 64, 32, 112, 16
    for u in range(2):
        for dt in range(2):
            for hf in range(2):
                for p in range(2):
                    c = acc(2 * u + hf, 4 + dt) + 2 * p
                    a("v_cvt_pk_bf16_f32 v%d, v%d, v%d" % (BF + (u * 2 + dt) * 4 + hf * 2 + p, c, c + 1))
    for i in range(4):
        a("v_mov_b32 v%d, 0x3f803f80" % (ONE + i))
    a("s_waitcnt lgkmcnt(0)")
    for u in range(2):
        for fq in range(4):
            for hf in range(2):
                a("ds_read_b64_tr_b16 %s, v6 offset:%d" % (vr(AF + (u * 4 + fq) * 4 + hf * 2, 2), (2 * u + hf) * 16 * KS + fq * 32))
    a("s_waitcnt lgkmcnt(8)")
    for u in range(2):
        if u == 1:
            a("s_waitcnt lgkmcnt(0)")
        for fq in range(4):
            for t in range(3):
                c = KV + (fq * 2 + t) * 4 if t < 2 else KV + (8 + fq) * 4
                b = BF + (u * 2 + t) * 4 if t < 2 else ONE
                a("v_mfma_f32_16x16x32_bf16 %s, %s, %s, %s" % (vr(c, 4), vr(AF + (u * 4 + fq) * 4, 4), vr(b, 4), vr(c, 4) if u else "0"))
    a("v_add_u32 v8, s50, v7")
    a("s_nop 7")
    for t in range(12):
        a("ds_write_b128 v8, %s offset:%d" % (vr(KV + t * 4, 4), t * 1024))
    a("s_lshr_b32 s28, s20, 2")
    a("s_mul_i32 s28, s28, 12288")
    a("s_and_b32 s29, s20, 3")
    a("s_mul_i32 s29, s29, 3072")
    a("s_add_u32 s28, s28, s29")
    a("v_add_u32 v8, s28, v7")
    a("v_add_u32 v9, 0xc000, v8")
    a("s_lshl_b32 s28, s25, 3")
    a("s_add_u32 s28, s28, s23")
    a("s_mul_i32 s28, s28, 24")
    a("s_mul_i32 s29, s20, 3")
    a("s_add_u32 s28, s28, s29")
    a("s_lshl_b32 s28, s28, 10")
    a("v_add_u32 v10, s28, v7")
    a("s_waitcnt lgkmcnt(0)")
    a("s_barrier")
    for wm in range(4):
        for i in range(3):
            a("ds_read_b128 %s, %s offset:%d" % (vr(32 + (wm * 3 + i) * 4, 4), "v9" if wm >= 2 else "v8", (wm & 1) * 24576 + i * 1024))
    a("s_waitcnt lgkmcnt(0)")
    for wm in range(1, 4):
        for i in range(6):
            a("v_pk_add_f32 %s, %s, %s" % (vr(32 + 2 * i, 2), vr(32 + 2 * i, 2), vr(32 + wm * 12 + 2 * i, 2)))
    for i in range(3):
        a("buffer_store_dwordx4 %s, v10, s[44:47], 0 offen offset:%d" % (vr(32 + i * 4, 4), i * 1024))
    stamp(a, 8)
    a("s_nop 1")
    g1_softmax_batch(a, acc, WP, 0)
    stamp(a, 9)
    stamp(a, 10)
    stamp(a, 11)
    a("s_lshl_b32 s28, s25, 3")
    a("s_add_u32 s28, s28, s23")
    a("s_lshl_b32 s28, s28, 3")
    a("s_add_u32 s28, s28, s20")
    a("s_lshl_b32 s28, s28, 13")
    a("v_add_u32 v10, s28, v7")
    a("s_movk_i32 s29, 4096")
    for mt in range(4):
        for kk in range(2):
            q = mt * 2 + kk
            a("buffer_store_dwordx4 %s, v10, s[40:43], %s offen offset:%d" % (vr(acc(mt, 0) + kk * 4, 4), "s29" if q >= 4 else "0", (q % 4) * 1024))


def g2_apply(a):
    SH = 98304

    def acc(mt, tt):
        return 128 + mt * 8

    a("s_and_b32 s57, s2, 15")
    a("s_lshr_b32 s58, s2, 4")
    a("s_lshr_b32 s59, s20, 1")
    a("s_and_b32 s38, s20, 1")
    srd(a, 48, 4, WS_PQ, SZ_PQ)
    srd(a, 52, 4, WS_KV, SZ_KV)
    a("s_mul_i32 s56, s20, 12288")
    a("v_lshlrev_b32 v7, 4, v1")
    a("s_lshl_b32 s28, s57, 3")
    a("s_add_u32 s28, s28, s58")
    a("s_lshl_b32 s28, s28, 3")
    a("s_add_u32 s28, s28, s20")
    a("s_lshl_b32 s28, s28, 13")
    a("v_add_u32 v10, s28, v7")
    a("s_movk_i32 s29, 4096")
    for q in range(8):
        a("buffer_load_dwordx4 %s, v10, s[48:51], %s offen offset:%d" % (vr(128 + q * 4, 4), "s29" if q >= 4 else "0", (q % 4) * 1024))
    a("s_mul_i32 s28, s57, %d" % (8 * 24))
    a("s_mul_i32 s29, s20, 3")
    a("s_add_u32 s28, s28, s29")
    a("s_lshl_b32 s28, s28, 10")
    a("v_add_u32 v10, s28, v7")
    for rb in range(8):
        a("s_mov_b32 s28, 0x%x" % (rb * 24576))
        for i in range(3):
            a("buffer_load_dwordx4 %s, v10, s[52:55], s28 offen offset:%d" % (vr(32 + (rb * 3 + i) * 4, 4), i * 1024))
    a("s_mul_i32 s28, s20, 1536")
    a("s_add_u32 s28, s28, %d" % SH)
    a("v_lshl_add_u32 v8, v1, 3, s28")
    a("s_mul_i32 s28, s38, 6144")
    a("s_add_u32 s28, s28, %d" % SH)
    a("v_lshl_add_u32 v9, v1, 3, s28")
    for rb in range(1, 8):
        a("s_waitcnt vmcnt(%d)" % ((7 - rb) * 3))
        for i in range(6):
            a("v_pk_add_f32 %s, %s, %s" % (vr(32 + 2 * i, 2), vr(32 + 2 * i, 2), vr(32 + rb * 12 + 2 * i, 2)))
    for i in range(6):
        a("v_cvt_pk_bf16_f32 v%d, v%d, v%d" % (16 + i, 32 + 2 * i, 33 + 2 * i))
    for i in range(3):
        a("ds_write_b64 v8, %s offset:%d" % (vr(16 + 2 * i, 2), i * 512))
    a("s_waitcnt lgkmcnt(0)")
    a("s_barrier")
    for t in range(3):
        for kk in range(2):
            for hf in range(2):
                fq = 2 * kk + hf
                tile = fq * 2 + t if t < 2 else 8 + fq
                a("ds_read_b64 %s, v9 offset:%d" % (vr(32 + (t * 2 + kk) * 4 + hf * 2, 2), tile * 512))
    a("s_movk_i32 s28, 80")
    a("v_mul_lo_u32 v5, v3, s28")
    a("v_lshl_add_u32 v5, v4, 3, v5")
    a("v_add_u32 v5, s56, v5")
    a("v_lshrrev_b32 v12, 2, v1")
    a("v_mul_lo_u32 v6, v12, s28")
    a("v_and_b32 v13, 3, v1")
    a("v_lshl_add_u32 v6, v13, 4, v6")
    a("v_add_u32 v6, s56, v6")
    a("s_lshl_b32 s28, s58, 8")
    a("s_lshl_b32 s29, s59, 6")
    a("s_add_u32 s28, s28, s29")
    a("v_add_u32 v12, s28, v12")
    a("s_movk_i32 s28, 9216")
    a("v_mul_lo_u32 v12, v12, s28")
    a("s_lshl_b32 s28, s57, 1")
    a("s_add_u32 s28, s28, s38")
    a("s_lshl_b32 s28, s28, 6")
    a("s_add_u32 s28, s28, 7168")
    a("v_lshl_add_u32 v13, v13, 4, s28")
    a("v_add_u32 v12, v12, v13")
    a("s_waitcnt lgkmcnt(0)")
    for kk in range(2):
        for mt in range(4):
            for t in range(3):
                c = 64 + (mt * 3 + t) * 4
                a("v_mfma_f32_16x16x32_bf16 %s, %s, %s, %s" % (vr(c, 4), vr(32 + (t * 2 + kk) * 4, 4), vr(acc(mt, 0) + kk * 4, 4), vr(c, 4) if kk else "0"))
    a("s_nop 7")
    R = range(4)
    for mt in R:
        a("v_cvt_pk_bf16_f32 v%d, v%d, v%d" % (112 + 2 * mt, 72 + mt * 12, 72 + mt * 12))
    for mt in R:
        a("v_lshlrev_b32 v%d, 16, v%d" % (112 + 2 * mt, 112 + 2 * mt))
    for mt in R:
        a("v_add_f32 v%d, 0x358637bd, v%d" % (112 + 2 * mt, 112 + 2 * mt))
    for mt in R:
        a("v_cvt_pk_bf16_f32 v%d, v%d, v%d" % (112 + 2 * mt, 112 + 2 * mt, 112 + 2 * mt))
    for mt in R:
        a("v_lshlrev_b32 v%d, 16, v%d" % (112 + 2 * mt, 112 + 2 * mt))
    for mt in R:
        a("v_rcp_f32 v%d, v%d" % (112 + 2 * mt, 112 + 2 * mt))
    for mt in R:
        for i in range(4):
            a("v_cvt_pk_bf16_f32 v%d, v%d, v%d" % (16 + i, 64 + mt * 12 + 2 * i, 65 + mt * 12 + 2 * i))
        for i in range(4):
            a("v_lshlrev_b32 v%d, 16, v%d" % (64 + mt * 12 + 2 * i, 16 + i))
            a("v_and_b32 v%d, 0xffff0000, v%d" % (65 + mt * 12 + 2 * i, 16 + i))
        for i in range(4):
            a("v_pk_mul_f32 %s, %s, %s op_sel_hi:[1,0]" % (vr(64 + mt * 12 + 2 * i, 2), vr(64 + mt * 12 + 2 * i, 2), vr(112 + 2 * mt, 2)))
        for i in range(4):
            a("v_cvt_pk_bf16_f32 v%d, v%d, v%d" % (20 + (mt & 1) * 4 + i, 64 + mt * 12 + 2 * i, 65 + mt * 12 + 2 * i))
        for dt in range(2):
            a("ds_write_b64 v5, %s offset:%d" % (vr(20 + (mt & 1) * 4 + 2 * dt, 2), mt * 16 * 80 + dt * 32))
    a("s_waitcnt lgkmcnt(0)")
    for j in range(4):
        a("ds_read_b128 %s, v6 offset:%d" % (vr(32 + j * 4, 4), j * 16 * 80))
    for j in range(4):
        a("s_waitcnt lgkmcnt(%d)" % (3 - j))
        a("s_mov_b32 s28, 0x%x" % (j * 16 * 9216))
        a("buffer_store_dwordx4 %s, v12, s[8:11], s28 offen sc1" % vr(32 + j * 4, 4))
    a("s_waitcnt vmcnt(0)")
    a("s_barrier")
    a("s_cmp_lg_u32 s20, 0")
    a("s_cbranch_scc1 g2_ap_sig")
    a("s_lshl_b32 s28, s58, 8")
    a("s_add_u32 s28, s28, 32768")
    a("v_mov_b32 v11, s28")
    a("v_mov_b32 v12, 1")
    a("s_mov_b64 exec, 1")
    a("buffer_atomic_add v12, v11, s[44:47], 0 offen sc1")
    a("s_mov_b64 exec, -1")
    a.label("g2_ap_sig")


def gen_apply(a):
    L = "apply_kernel"
    kernel_head(a, L)
    a("s_cmp_ge_u32 s2, 256")
    a("s_cbranch_scc1 ap_done")
    a("s_load_dwordx2 s[4:5], s[0:1], %d" % KA_WS)
    a("v_and_b32 v1, 63, v0")
    a("v_lshrrev_b32 v2, 6, v0")
    a("v_and_b32 v3, 15, v1")
    a("v_lshrrev_b32 v4, 4, v1")
    a("s_and_b32 s20, s2, 31")
    a("s_lshr_b32 s21, s2, 5")
    a("s_waitcnt lgkmcnt(0)")
    srd(a, 8, 4, WS_KV, SZ_KV)
    srd(a, 12, 4, WS_PQ, SZ_PQ)
    srd(a, 16, 4, WS_HC, SZ_HC)
    a("s_lshl_b32 s22, s20, 11")
    a("s_lshl_b32 s23, s21, 8")
    a("s_add_u32 s22, s22, s23")
    a("v_lshl_add_u32 v5, v2, 6, v3")
    a("v_add_u32 v5, s22, v5")
    a("v_lshlrev_b32 v5, 7, v5")
    a("v_lshl_add_u32 v5, v4, 4, v5")
    for st in range(4):
        for kk in range(2):
            if st < 2:
                a("buffer_load_dwordx4 %s, v5, s[12:15], 0 offen offset:%d" % (vr(64 + (st * 2 + kk) * 4, 4), st * 2048 + kk * 64))
            else:
                a("s_movk_i32 s24, 4096")
                a("buffer_load_dwordx4 %s, v5, s[12:15], s24 offen offset:%d" % (vr(64 + (st * 2 + kk) * 4, 4), (st - 2) * 2048 + kk * 64))
    a("s_lshl_b32 s22, s20, 14")
    a("v_lshlrev_b32 v6, 5, v0")
    a("v_add_u32 v6, s22, v6")
    for rb in range(8):
        a("s_mov_b32 s24, 0x%x" % (rb << 19))
        a("buffer_load_dwordx4 %s, v6, s[8:11], s24 offen" % vr(96 + rb * 8, 4))
        a("buffer_load_dwordx4 %s, v6, s[8:11], s24 offen offset:16" % vr(100 + rb * 8, 4))
    a("v_and_b32 v7, 7, v0")
    a("v_lshlrev_b32 v7, 5, v7")
    a("v_add_u32 v7, s22, v7")
    for rb in range(8):
        a("s_mov_b32 s24, 0x%x" % ((rb << 19) + 8192))
        a("buffer_load_dwordx4 %s, v7, s[8:11], s24 offen" % vr(160 + rb * 8, 4))
        a("buffer_load_dwordx4 %s, v7, s[8:11], s24 offen offset:16" % vr(164 + rb * 8, 4))
    a("s_waitcnt vmcnt(0)")
    for base in (96, 160):
        for rb in range(1, 8):
            for i in range(8):
                a("v_add_f32 v%d, v%d, v%d" % (base + i, base + i, base + rb * 8 + i))
    for i in range(4):
        a("v_cvt_pk_bf16_f32 v%d, v%d, v%d" % (8 + i, 96 + 2 * i, 97 + 2 * i))
        a("v_cvt_pk_bf16_f32 v%d, v%d, v%d" % (12 + i, 160 + 2 * i, 161 + 2 * i))
    a("v_lshlrev_b32 v6, 4, v0")
    a("ds_write_b128 v6, v[8:11]")
    a("v_and_b32 v7, 7, v0")
    a("v_lshlrev_b32 v7, 4, v7")
    a("ds_write_b128 v7, v[12:15] offset:4096")
    a("s_waitcnt lgkmcnt(0)")
    a("s_barrier")
    a("v_lshlrev_b32 v6, 7, v3")
    a("v_lshl_add_u32 v6, v4, 4, v6")
    a("v_lshlrev_b32 v7, 4, v4")
    for dt in range(2):
        for kk in range(2):
            a("ds_read_b128 %s, v6 offset:%d" % (vr(8 + (dt * 2 + kk) * 4, 4), dt * 2048 + kk * 64))
    for kk in range(2):
        a("ds_read_b128 %s, v7 offset:%d" % (vr(24 + kk * 4, 4), 4096 + kk * 64))
    a("s_lshl_b32 s23, s21, 8")
    a("v_lshl_add_u32 v5, v2, 6, v3")
    a("v_add_u32 v5, s23, v5")
    a("s_movk_i32 s24, 9216")
    a("v_mul_lo_u32 v5, v5, s24")
    a("s_lshl_b32 s23, s20, 6")
    a("s_add_u32 s23, s23, 7168")
    a("v_lshl_add_u32 v6, v4, 3, s23")
    a("v_add_u32 v5, v5, v6")
    a("s_waitcnt lgkmcnt(0)")
    for st in range(4):
        C = 96 + st * 12
        for t in range(3):
            a("v_mfma_f32_16x16x32_bf16 %s, %s, %s, 0" % (vr(C + t * 4, 4), vr(8 + t * 8, 4), vr(64 + st * 8, 4)))
        for t in range(3):
            a("v_mfma_f32_16x16x32_bf16 %s, %s, %s, %s" % (vr(C + t * 4, 4), vr(12 + t * 8, 4), vr(68 + st * 8, 4), vr(C + t * 4, 4)))
    a("s_nop 7")
    a("s_nop 7")
    for st in range(4):
        C = 96 + st * 12
        a("v_cvt_pk_bf16_f32 v32, v%d, v%d" % (C + 8, C + 8))
        a("v_lshlrev_b32 v32, 16, v32")
        a("v_add_f32 v32, 0x358637bd, v32")
        a("v_cvt_pk_bf16_f32 v32, v32, v32")
        a("v_lshlrev_b32 v32, 16, v32")
        a("v_rcp_f32 v32, v32")
        for i in range(4):
            bf16_round_pair(a, C + 2 * i, C + 2 * i + 1, 33)
        for i in range(8):
            a("v_mul_f32 v%d, v%d, v32" % (C + i, C + i))
        for i in range(4):
            a("v_cvt_pk_bf16_f32 v%d, v%d, v%d" % (40 + st * 4 + i, C + 2 * i, C + 2 * i + 1))
        a("buffer_store_dwordx2 %s, v5, s[16:19], 0 offen" % vr(40 + st * 4, 2))
        a("buffer_store_dwordx2 %s, v5, s[16:19], 0 offen offset:32" % vr(42 + st * 4, 2))
        if st < 3:
            a("v_add_u32 v5, %d, v5" % (16 * 9216))
    a.label("ap_done")
    a("s_endpgm")
    return L, 224


G2_ACC = 128
G2_FA = (32, 64)
G2_FB = (48, 80)
G2_VA = 16
G2_VB = (18, 19, 20, 21)
G2_N0 = int(os.environ.get("G2_N0", "24"))
G2_DMAPOS = (1, 5, 9, 13)


def g2_mfmas(st):
    out = []
    for mt in range(4):
        for nt in range(4):
            c = G2_ACC + (mt * 4 + nt) * 4
            out.append("v_mfma_f32_16x16x32_bf16 %s, %s, %s, %s" % (
                vr(c, 4), vr(G2_FB[st] + nt * 4, 4), vr(G2_FA[st] + mt * 4, 4), vr(c, 4)))
    return out


def g2_reads(st, buf):
    out = []
    for mt in range(4):
        out.append(["ds_read_b128 %s, %s offset:%d" % (vr(G2_FA[st] + mt * 4, 4), vr(G2_VA), buf * 16384 + mt * 2048)])
    for nt in range(4):
        for rd in range(2):
            out.append(["ds_read_b64_tr_b16 %s, %s offset:%d" % (vr(G2_FB[st] + nt * 4 + rd * 2, 2), vr(G2_VB[nt]), buf * 16384 + rd * 1024)])
    return out


def g2_dmas(buf):
    out = [["s_cmp_eq_u32 s19, 0",
            "s_cselect_b32 s12, s30, s12",
            "s_cselect_b32 s13, s31, s13",
            "s_cselect_b32 s14, 0x%x, s14" % (D * D * 2),
            "s_cselect_b32 s17, 0, s17",
            "s_sub_u32 s19, s19, 1"]]
    for j in range(2):
        out.append(["s_add_u32 m0, s27, %d" % (buf * 16384 + j * 1024),
                    "s_nop 0",
                    "buffer_load_dwordx4 v%d, s[8:11], s16 offen%s lds" % (8 + j, "" if "NOSC1A" in FLAGS else " sc1")])
    for j in range(2):
        out.append(["s_add_u32 m0, s27, %d" % (65536 + buf * 16384 + j * 1024),
                    "s_nop 0",
                    "buffer_load_dwordx4 v%d, s[12:15], s17 offen lds" % (12 + j)])
    out.append(["s_add_u32 s16, s16, 128", "s_add_u32 s17, s17, %d" % (64 * 2048)])
    return out


def g2_iter(a, i, dma, nxt, vm):
    slots = {}
    if dma and "NODMA" not in FLAGS:
        d = g2_dmas(i % 4)
        slots.setdefault(0, []).append(d[0])
        for j in range(4):
            slots.setdefault(G2_DMAPOS[j], []).append(d[1 + j])
        slots.setdefault(G2_DMAPOS[3], []).append(d[5])
    if nxt:
        r = g2_reads((i + 1) & 1, (i + 1) % 4)
        pos = [p for p in range(16) if p not in G2_DMAPOS][:12]
        for p, x in zip(pos, r):
            slots.setdefault(p, []).append(x)
    place(a, g2_mfmas(i & 1), slots)
    if nxt:
        if vm is None:
            a("s_waitcnt lgkmcnt(0)")
        else:
            a("s_waitcnt vmcnt(%d) lgkmcnt(0)" % vm)
        a("s_barrier")


def gen_gemm2(a):
    L = "gemm2_kernel"
    kernel_head(a, L)
    a("s_cmp_ge_u32 s2, 256")
    a("s_cbranch_scc1 g2_done")
    stamp(a, 0)
    stamp_rt(a, 6)
    a("s_load_dwordx2 s[4:5], s[0:1], %d" % KA_WS)
    a("s_load_dwordx2 s[6:7], s[0:1], %d" % KA_W2)
    a("s_load_dwordx2 s[30:31], s[0:1], %d" % KA_WO)
    a("s_load_dwordx2 s[32:33], s[0:1], %d" % KA_X)
    a("s_load_dwordx2 s[34:35], s[0:1], %d" % KA_B2)
    a("s_load_dwordx2 s[36:37], s[0:1], %d" % KA_OUT)
    g1_common_addr(a)
    a("s_and_b32 s21, s2, 7")
    a("s_lshr_b32 s23, s2, 7")
    a("s_bfe_u32 s24, s2, 0x20003")
    a("s_and_b32 s25, s21, 3")
    a("s_lshl_b32 s25, s25, 2")
    a("s_add_u32 s24, s24, s25")
    a("s_bfe_u32 s25, s2, 0x20005")
    a("s_lshr_b32 s26, s21, 2")
    a("s_lshl_b32 s26, s26, 2")
    a("s_add_u32 s25, s25, s26")
    if "SAMETILE" in FLAGS:
        a("s_mov_b32 s24, 0")
        a("s_mov_b32 s25, 0")
        a("s_mov_b32 s23, 0")
    a("s_lshr_b32 s21, s20, 2")
    a("s_bfe_u32 s22, s20, 0x10001")
    a("s_and_b32 s26, s20, 1")
    a("s_lshl_b32 s27, s20, 11")
    a("s_waitcnt lgkmcnt(0)")
    srd(a, 8, 4, WS_HC, SZ_HC)
    srd(a, 44, 4, WS_FL, SZ_FL)
    a("s_cmp_lg_u32 s23, 0")
    a("s_cbranch_scc1 g2_noapply")
    g2_apply(a)
    a.label("g2_noapply")
    a("v_lshrrev_b32 v5, 3, v1")
    a("s_lshl_b32 s28, s24, 7")
    a("s_lshl_b32 s29, s20, 4")
    a("s_add_u32 s28, s28, s29")
    a("v_add_u32 v5, s28, v5")
    a("s_movk_i32 s28, 9216")
    a("v_mul_lo_u32 v5, v5, s28")
    a("v_and_b32 v6, 7, v1")
    for j in range(2):
        a("v_add_u32 v7, %d, v4" % (4 * j))
        a("v_and_b32 v7, 7, v7")
        a("v_xor_b32 v7, v7, v6")
        a("v_lshl_add_u32 v7, v7, 4, v5")
        a("v_add_u32 v%d, %d, v7" % (8 + j, j * 8 * 9216))
    a("s_lshl_b32 s28, s20, 3")
    a("v_add_u32 v5, s28, v4")
    a("v_lshlrev_b32 v5, 11, v5")
    a("s_lshl_b32 s28, s25, 8")
    a("v_add_u32 v5, s28, v5")
    a("s_lshl_b32 s28, s26, 2")
    a("v_or_b32 v7, s28, v4")
    a("v_lshlrev_b32 v7, 1, v7")
    a("v_xor_b32 v7, v7, v3")
    a("v_lshl_add_u32 v12, v7, 4, v5")
    a("v_add_u32 v13, %d, v12" % (4 * 2048))
    a("s_lshl_b32 s28, s21, 2")
    a("v_add_u32 v5, s28, v4")
    a("v_lshrrev_b32 v6, 1, v3")
    a("v_xor_b32 v5, v5, v6")
    a("s_lshl_b32 s28, s22, 6")
    a("v_add_u32 v6, s28, v3")
    a("v_lshlrev_b32 v6, 7, v6")
    a("v_lshl_add_u32 v%d, v5, 4, v6" % G2_VA)
    a("v_bfe_u32 v5, v1, 2, 2")
    a("v_and_b32 v6, 1, v4")
    a("v_lshl_or_b32 v6, v6, 2, v5")
    a("v_lshl_add_u32 v5, v4, 3, v5")
    a("s_lshl_b32 s28, s21, 5")
    a("v_add_u32 v5, s28, v5")
    a("v_lshlrev_b32 v5, 8, v5")
    a("v_and_b32 v7, 3, v1")
    a("v_lshl_add_u32 v5, v7, 3, v5")
    a("v_add_u32 v5, 0x10000, v5")
    for nt in range(4):
        a("s_lshl_b32 s28, s26, 2")
        a("s_add_u32 s28, s28, %d" % nt)
        a("v_xor_b32 v7, s28, v6")
        a("v_lshl_add_u32 v%d, v7, 5, v5" % G2_VB[nt])
    srd(a, 12, 6, 0, F * D * 2)
    a("s_and_b32 s31, s31, 0xffff")
    a("s_mul_i32 s16, s23, %d" % (G2_N0 * 64 * 2))
    a("s_mul_i32 s17, s23, %d" % (G2_N0 * 64 * 2048))
    a("s_mov_b32 s19, 1000")
    a("s_mov_b32 s18, %d" % ((G2_N0 - 4) // 4))
    a("s_cmp_eq_u32 s23, 1")
    a("s_cselect_b32 s19, %d, s19" % (56 - G2_N0))
    a("s_cselect_b32 s18, %d, s18" % ((72 - G2_N0 - 4) // 4))
    a("s_cselect_b32 s3, %d, 0" % ((72 - G2_N0 - 4) // 4 - (56 - G2_N0 - 4) // 4))
    a("s_lshr_b32 s28, s24, 1")
    a("s_lshl_b32 s28, s28, 8")
    a("s_add_u32 s28, s28, 32768")
    a("v_mov_b32 v27, s28")
    srd(a, 40, 4, WS_P, SZ_P)
    a("s_lshl_b32 s28, s24, 3")
    a("s_add_u32 s28, s28, s25")
    a("s_lshl_b32 s38, s28, 8")
    a("s_lshl_b32 s39, s28, 16")
    a("s_lshl_b32 s28, s20, 13")
    a("s_add_u32 s39, s39, s28")
    a("v_mov_b32 v22, s38")
    a("v_lshlrev_b32 v24, 4, v1")
    a("v_add_u32 v24, s39, v24")
    a("s_movk_i32 s39, 4096")
    srd(a, 48, 32, 0, S * D * 2)
    srd(a, 52, 34, 0, D * 2)
    srd(a, 56, 36, 0, S * D * 2)
    a("s_lshl_b32 s28, s24, 7")
    a("s_lshl_b32 s29, s20, 4")
    a("s_add_u32 s28, s28, s29")
    a("v_add_u32 v25, s28, v4")
    a("v_lshlrev_b32 v25, 11, v25")
    a("s_lshl_b32 s28, s25, 8")
    a("v_lshl_add_u32 v26, v3, 4, s28")
    a("v_add_u32 v25, v25, v26")
    for st in range(4):
        for f in g2_dmas(st):
            for x in f:
                a(x)
    for i in range(64):
        a("v_mov_b32 v%d, 0" % (G2_ACC + i))
    stamp(a, 1)
    a("s_waitcnt vmcnt(12)")
    a("s_barrier")
    stamp(a, 2)
    for f in g2_reads(0, 0):
        for x in f:
            a(x)
    a("s_waitcnt vmcnt(8) lgkmcnt(0)")
    a("s_barrier")
    a.label("g2_loop")
    a("s_cmp_eq_u32 s18, s3")
    a("s_cbranch_scc1 g2_opoll")
    a.label("g2_loop2")
    for i in range(4):
        g2_iter(a, i, True, True, 8)
    a("s_sub_u32 s18, s18, 1")
    a("s_cmp_lg_u32 s18, 0")
    a("s_cbranch_scc1 g2_loop")
    stamp(a, 8)
    a("buffer_load_dword v23, v22, s[44:47], 0 offen sc1")
    g2_iter(a, 0, False, True, 5)
    a("s_cmp_eq_u32 s23, 0")
    a("s_cbranch_scc1 g2_pubtail")
    for j in range(4):
        a("s_mov_b32 s38, 0x%x" % (j * 4 * 2048))
        a("buffer_load_dwordx4 %s, v25, s[48:51], s38 offen" % vr(224 + j * 4, 4))
    a("buffer_load_dwordx4 v[240:243], v26, s[52:55], 0 offen")
    g2_iter(a, 1, False, True, 5)
    stamp(a, 7)
    a("s_mov_b32 s29, 0")
    a("s_branch g2_chk")
    a.label("g2_spin")
    a("buffer_load_dword v23, v22, s[44:47], 0 offen sc1")
    a("s_waitcnt vmcnt(0)")
    a.label("g2_chk")
    a("v_readfirstlane_b32 s28, v23")
    a("s_add_u32 s29, s29, 1")
    a("s_cmp_ge_u32 s28, 1")
    a("s_cbranch_scc1 g2_go")
    a("s_sleep 2")
    a("s_cmp_lt_u32 s29, 0x100000")
    a("s_cbranch_scc1 g2_spin")
    a.label("g2_go")
    stamp(a, 9)
    for t in range(8):
        a("buffer_load_dwordx4 %s, v24, s[40:43], %s offen offset:%d sc1" % (vr(192 + t * 4, 4), "s39" if t >= 4 else "0", (t % 4) * 1024))
    a("s_branch g2_tail")
    a.label("g2_pubtail")
    g2_iter(a, 1, False, True, 0)
    a.label("g2_tail")
    g2_iter(a, 2, False, True, None)
    g2_iter(a, 3, False, False, None)
    stamp(a, 3)
    a("s_nop 7")
    a("s_barrier")
    a("s_mul_i32 s28, s21, %d" % (128 * 528))
    a("s_mul_i32 s29, s22, %d" % (64 * 528))
    a("s_add_u32 s28, s28, s29")
    a("s_lshl_b32 s29, s26, 8")
    a("s_add_u32 s28, s28, s29")
    a("s_movk_i32 s29, 528")
    a("v_mul_lo_u32 v6, v3, s29")
    a("v_lshl_add_u32 v6, v4, 4, v6")
    a("v_add_u32 v6, s28, v6")
    for mt in range(4):
        for nt in range(4):
            a("ds_write_b128 v6, %s offset:%d" % (vr(G2_ACC + (mt * 4 + nt) * 4, 4), mt * 16 * 528 + nt * 64))
    a("s_lshl_b32 s28, s20, 4")
    a("v_add_u32 v7, s28, v4")
    a("v_mul_lo_u32 v7, v7, s29")
    a("v_lshl_add_u32 v7, v3, 5, v7")
    a("v_add_u32 v6, %d, v7" % (128 * 528))
    a("s_waitcnt lgkmcnt(0)")
    a("s_barrier")
    for j in range(4):
        for hf in range(2):
            a("ds_read_b128 %s, v7 offset:%d" % (vr(128 + j * 8 + hf * 4, 4), j * 4 * 528 + hf * 16))
            a("ds_read_b128 %s, v6 offset:%d" % (vr(32 + j * 8 + hf * 4, 4), j * 4 * 528 + hf * 16))
    a("s_waitcnt lgkmcnt(0)")
    for i in range(32):
        a("v_add_f32 v%d, v%d, v%d" % (128 + i, 128 + i, 32 + i))
    a("s_cmp_lg_u32 s23, 0")
    a("s_cbranch_scc1 g2_second")
    for t in range(8):
        a("buffer_store_dwordx4 %s, v24, s[40:43], %s offen offset:%d sc1" % (vr(128 + t * 4, 4), "s39" if t >= 4 else "0", (t % 4) * 1024))
    a("s_waitcnt vmcnt(0)")
    stamp(a, 8)
    a("s_barrier")
    a("s_cmp_lg_u32 s20, 0")
    a("s_cbranch_scc1 g2_fin")
    a("v_mov_b32 v23, 1")
    a("s_mov_b64 exec, 1")
    a("buffer_atomic_add v23, v22, s[44:47], 0 offen sc1")
    a("s_mov_b64 exec, -1")
    a("s_branch g2_fin")
    a.label("g2_second")
    a("s_waitcnt vmcnt(0)")
    for p in range(4):
        a("v_lshlrev_b32 v%d, 16, v%d" % (32 + 2 * p, 240 + p))
        a("v_and_b32 v%d, 0xffff0000, v%d" % (33 + 2 * p, 240 + p))
    for j in range(4):
        for p in range(4):
            c = 128 + j * 8 + 2 * p
            a("v_lshlrev_b32 v12, 16, v%d" % (224 + j * 4 + p))
            a("v_and_b32 v13, 0xffff0000, v%d" % (224 + j * 4 + p))
            a("v_add_f32 v12, v12, v%d" % (32 + 2 * p))
            a("v_add_f32 v13, v13, v%d" % (33 + 2 * p))
            a("v_add_f32 v%d, v%d, v%d" % (c, c, 192 + j * 8 + 2 * p))
            a("v_add_f32 v%d, v%d, v%d" % (c + 1, c + 1, 193 + j * 8 + 2 * p))
            a("v_add_f32 v%d, v%d, v12" % (c, c))
            a("v_add_f32 v%d, v%d, v13" % (c + 1, c + 1))
            a("v_cvt_pk_bf16_f32 v%d, v%d, v%d" % (64 + j * 4 + p, c, c + 1))
        a("s_mov_b32 s38, 0x%x" % (j * 4 * 2048))
        a("buffer_store_dwordx4 %s, v25, s[56:59], s38 offen" % vr(64 + j * 4, 4))
    a.label("g2_fin")
    if "STAMP" in FLAGS:
        a("s_waitcnt vmcnt(0)")
    stamp(a, 4)
    stamp_rt(a, 5)
    stamp_flush(a, 10, 1)
    a.label("g2_done")
    a("s_endpgm")
    a.label("g2_opoll")
    a("s_mov_b32 s29, 0")
    a.label("g2_ospin")
    a("buffer_load_dword v23, v27, s[44:47], 0 offen sc1")
    a("s_waitcnt vmcnt(0)")
    a("v_readfirstlane_b32 s28, v23")
    a("s_add_u32 s29, s29, 1")
    a("s_cmp_ge_u32 s28, 16")
    a("s_cbranch_scc1 g2_loop2")
    a("s_sleep 2")
    a("s_cmp_lt_u32 s29, 0x100000")
    a("s_cbranch_scc1 g2_ospin")
    a("s_branch g2_loop2")
    return L, 248


def gen_combine(a):
    L = "combine_kernel"
    kernel_head(a, L)
    a("s_cmp_ge_u32 s2, 1024")
    a("s_cbranch_scc1 cb_done")
    a("s_load_dwordx2 s[4:5], s[0:1], %d" % KA_WS)
    a("s_load_dwordx2 s[6:7], s[0:1], %d" % KA_X)
    a("s_load_dwordx2 s[20:21], s[0:1], %d" % KA_B2)
    a("s_load_dwordx2 s[22:23], s[0:1], %d" % KA_OUT)
    a("s_lshl_b32 s3, s2, 8")
    a("v_add_u32 v1, s3, v0")
    a("v_lshlrev_b32 v2, 5, v1")
    a("v_lshlrev_b32 v3, 4, v1")
    a("v_and_b32 v4, 127, v1")
    a("v_lshlrev_b32 v4, 4, v4")
    a("s_waitcnt lgkmcnt(0)")
    srd(a, 8, 4, WS_P, SZ_P)
    srd(a, 12, 6, 0, S * D * 2)
    srd(a, 16, 20, 0, D * 2)
    srd(a, 24, 22, 0, S * D * 2)
    a("s_mov_b32 s28, 0x800000")
    a("buffer_load_dwordx4 v[8:11], v2, s[8:11], 0 offen")
    a("buffer_load_dwordx4 v[12:15], v2, s[8:11], 0 offen offset:16")
    a("buffer_load_dwordx4 v[16:19], v2, s[8:11], s28 offen")
    a("buffer_load_dwordx4 v[20:23], v2, s[8:11], s28 offen offset:16")
    a("buffer_load_dwordx4 v[24:27], v3, s[12:15], 0 offen")
    a("buffer_load_dwordx4 v[28:31], v4, s[16:19], 0 offen")
    a("s_waitcnt vmcnt(0)")
    for i in range(8):
        a("v_add_f32 v%d, v%d, v%d" % (8 + i, 8 + i, 16 + i))
    for i in range(4):
        a("v_lshlrev_b32 v32, 16, v%d" % (24 + i))
        a("v_and_b32 v33, 0xffff0000, v%d" % (24 + i))
        a("v_lshlrev_b32 v34, 16, v%d" % (28 + i))
        a("v_and_b32 v35, 0xffff0000, v%d" % (28 + i))
        a("v_add_f32 v32, v32, v34")
        a("v_add_f32 v33, v33, v35")
        a("v_add_f32 v%d, v%d, v32" % (8 + 2 * i, 8 + 2 * i))
        a("v_add_f32 v%d, v%d, v33" % (9 + 2 * i, 9 + 2 * i))
        a("v_cvt_pk_bf16_f32 v%d, v%d, v%d" % (36 + i, 8 + 2 * i, 9 + 2 * i))
    a("buffer_store_dwordx4 v[36:39], v3, s[24:27], 0 offen")
    a.label("cb_done")
    a("s_endpgm")
    return L, 40


def main():
    a = Asm()
    hdr = open("cdna_kernels/%s.s.ref" % NAME).read().split("\n")
    head = [l for l in hdr if l.startswith(";") and "@launch" not in l and "Override launch" not in l and "grid=ceil" not in l]
    launches = [
        "; @launch kernel=ln_kernel grid=(512,1,1) block=(256,1,1) lds=0",
        "; @launch kernel=gemm1_kernel grid=(256,1,1) block=(512,1,1) lds=131072",
        "; @launch kernel=gemm2_kernel grid=(256,1,1) block=(512,1,1) lds=135168",
    ]
    a.raw("\n".join(head + launches))
    a.raw('.amdgcn_target "amdgcn-amd-amdhsa--gfx950"')
    a.raw(".text")
    descs = []
    for g in (gen_ln, gen_gemm1, gen_gemm2):
        label, v = g(a)
        descs.append(kernel_desc(label, v))
    a.raw('.section .rodata,"a"')
    for d in descs:
        a.raw(".p2align 6")
        a.raw(d)
    open(OUT, "w").write(a.text())
    print("wrote", OUT, len(a.lines), "lines")


if __name__ == "__main__":
    main()
```

```python
import sys
import re
import os
FLAGS = set(os.environ.get("FLAGS", "").split(","))

NAME = "parallel_sum__linear_kernel_hedgehog__dense_activation_gelu__prompt"
OUT = os.environ.get("OUT", "cdna_kernels/%s.s" % NAME)

S, D, H, DH, F = 2048, 1024, 32, 32, 3584
KCAT = F + D
KA_X, KA_WQKV, KA_WPHI, KA_WO, KA_BX, KA_W1, KA_B1, KA_W2, KA_B2, KA_OUT, KA_DBG, KA_WS = [8 * i for i in range(12)]
WS_XN = 0x0000000
WS_HC = 0x0400000
WS_PQ = 0x1800000
WS_KV = 0x2000000
WS_P = 0x2400000
WS_FL = 0x3800000
SZ_FL = 65536
SZ_XN = S * D * 2
SZ_HC = S * KCAT * 2
SZ_PQ = H * S * 64 * 2
SZ_KV = 8 * 32 * 16384
SZ_P = S * D * 4

LOG2E = 0x3fb8aa3b
ST = os.environ.get("ST", "")
ST = (" " + ST) if ST else ""
ST2 = os.environ.get("ST2", "")
ST2 = (" " + ST2) if ST2 else ""
PF_ROWS = int(os.environ.get("PF_ROWS", "256"))
PF_LANES = int(os.environ.get("PF_LANES", "4"))


class Asm:
    def __init__(self):
        self.lines = []

    def __call__(self, s):
        m = re.search(r"offset:(\d+)", s)
        if m:
            lim = 4096 if s.startswith("buffer_") else 65536
            assert int(m.group(1)) < lim, s
        self.lines.append("    " + s)

    def label(self, s):
        self.lines.append(s + ":")

    def raw(self, s):
        self.lines.append(s)

    def text(self):
        return "\n".join(self.lines) + "\n"


def vr(b, n=1):
    return "v%d" % b if n == 1 else "v[%d:%d]" % (b, b + n - 1)


def sr(b, n=1):
    return "s%d" % b if n == 1 else "s[%d:%d]" % (b, b + n - 1)


def srd(a, d, base, off, size):
    if off:
        a("s_add_u32 s%d, s%d, 0x%x" % (d, base, off))
        a("s_addc_u32 s%d, s%d, 0" % (d + 1, base + 1))
    else:
        a("s_mov_b32 s%d, s%d" % (d, base))
        a("s_mov_b32 s%d, s%d" % (d + 1, base + 1))
    a("s_and_b32 s%d, s%d, 0xffff" % (d + 1, d + 1))
    a("s_mov_b32 s%d, 0x%x" % (d + 2, size))
    a("s_mov_b32 s%d, 0x00020000" % (d + 3))


def kernel_head(a, label):
    a.raw(".globl %s" % label)
    a.raw(".p2align 8")
    a.raw(".type %s,@function" % label)
    a.label(label)


def kernel_desc(label, vgpr, sgpr=102):
    acc = (vgpr + 3) // 4 * 4
    return """.amdhsa_kernel %s
  .amdhsa_next_free_vgpr %d
  .amdhsa_next_free_sgpr %d
  .amdhsa_accum_offset %d
  .amdhsa_group_segment_fixed_size 0
  .amdhsa_kernarg_size 96
  .amdhsa_user_sgpr_count 2
  .amdhsa_user_sgpr_kernarg_segment_ptr 1
  .amdhsa_system_sgpr_workgroup_id_x 1
.end_amdhsa_kernel
""" % (label, vgpr, sgpr, acc)


def stamp(a, i):
    if "STAMP" in FLAGS:
        a("s_memtime s[%d:%d]" % (60 + 2 * i, 61 + 2 * i))


def stamp_rt(a, i):
    if "STAMP" in FLAGS:
        a("s_memrealtime s[%d:%d]" % (60 + 2 * i, 61 + 2 * i))


def stamp_flush(a, n, kidx):
    if "STAMP" not in FLAGS:
        return
    a("s_waitcnt lgkmcnt(0)")
    srd(a, 88, 4, 0x8000000 + kidx * 0x100000, 0x100000)
    a("s_lshl_b32 s92, s2, 3")
    a("s_add_u32 s92, s92, s20")
    a("s_lshl_b32 s92, s92, 7")
    a("v_mov_b32 v2, s92")
    for i in range(n):
        a("v_mov_b32 v4, s%d" % (60 + 2 * i))
        a("v_mov_b32 v5, s%d" % (61 + 2 * i))
        a("buffer_store_dwordx2 v[4:5], v2, s[88:91], 0 offen offset:%d" % (8 * i))
        a("s_nop 1")


def allreduce64(a, op, v, t):
    for ctl in ("quad_perm:[1,0,3,2]", "quad_perm:[2,3,0,1]", "row_half_mirror", "row_mirror"):
        a("s_nop 1")
        a("%s_dpp %s, %s, %s %s row_mask:0xf bank_mask:0xf" % (op, vr(v), vr(v), vr(v), ctl))
    for sw in ("v_permlane16_swap_b32", "v_permlane32_swap_b32"):
        a("v_mov_b32 %s, %s" % (vr(t), vr(v)))
        a("s_nop 1")
        a("%s %s, %s" % (sw, vr(v), vr(t)))
        a("s_nop 1")
        a("%s %s, %s, %s" % (op, vr(v), vr(v), vr(t)))


def gen_ln(a):
    L = "ln_kernel"
    kernel_head(a, L)
    a("s_cmp_ge_u32 s2, 512")
    a("s_cbranch_scc1 ln_done")
    a("s_load_dwordx2 s[4:5], s[0:1], %d" % KA_X)
    a("s_load_dwordx2 s[6:7], s[0:1], %d" % KA_WS)
    a("s_load_dwordx2 s[20:21], s[0:1], %d" % KA_WQKV)
    a("s_load_dwordx2 s[22:23], s[0:1], %d" % KA_W1)
    a("v_lshrrev_b32 v1, 6, v0")
    a("v_and_b32 v2, 63, v0")
    a("s_lshl_b32 s3, s2, 2")
    a("v_add_u32 v1, s3, v1")
    a("v_lshlrev_b32 v3, 12, v1")
    a("v_lshl_add_u32 v3, v2, 6, v3")
    a("v_lshlrev_b32 v1, 11, v1")
    a("v_lshl_add_u32 v1, v2, 4, v1")
    a("s_waitcnt lgkmcnt(0)")
    srd(a, 8, 4, 0, SZ_XN)
    srd(a, 12, 6, WS_XN, SZ_XN)
    a("buffer_load_dwordx4 v[4:7], v1, s[8:11], 0 offen")
    a("buffer_load_dwordx4 v[8:11], v1, s[8:11], 0 offen offset:1024")
    if "NOPF" not in FLAGS:
        srd(a, 24, 20, 0, PF_ROWS * 3 * D * 2)
        srd(a, 28, 22, 0, PF_ROWS * F * 2)
        a("buffer_load_dword v39, v3, s[24:27], 0 offen")
        a("buffer_load_dword v39, v3, s[28:31], 0 offen")
    a("s_cmp_ge_u32 s2, 16")
    a("s_cbranch_scc1 ln_nz")
    srd(a, 16, 6, WS_FL, SZ_FL)
    a("s_lshl_b32 s3, s2, 12")
    a("v_lshl_add_u32 v12, v0, 4, s3")
    for i in range(4):
        a("v_mov_b32 v%d, 0" % (16 + i))
    a("buffer_store_dwordx4 v[16:19], v12, s[16:19], 0 offen")
    a("s_waitcnt vmcnt(3)")
    a.label("ln_nz")
    a("s_waitcnt vmcnt(%d)" % (0 if "NOPF" in FLAGS else 2))
    for i in range(8):
        a("v_lshlrev_b32 v%d, 16, v%d" % (16 + 2 * i, 4 + i))
        a("v_and_b32 v%d, 0xffff0000, v%d" % (17 + 2 * i, 4 + i))
    a("v_add_f32 v32, v16, v17")
    for i in range(2, 16):
        a("v_add_f32 v32, v32, v%d" % (16 + i))
    allreduce64(a, "v_add_f32", 32, 33)
    a("v_mul_f32 v32, 0x3a800000, v32")
    a("v_sub_f32 v34, v16, v32")
    a("v_mul_f32 v35, v34, v34")
    for i in range(1, 16):
        a("v_sub_f32 v34, v%d, v32" % (16 + i))
        a("v_fmac_f32 v35, v34, v34")
    allreduce64(a, "v_add_f32", 35, 33)
    a("v_mul_f32 v35, 0x3a800000, v35")
    a("v_cvt_pk_bf16_f32 v36, v32, v35")
    a("v_lshlrev_b32 v32, 16, v36")
    a("v_and_b32 v35, 0xffff0000, v36")
    a("v_add_f32 v35, 0x3727c5ac, v35")
    a("v_cvt_pk_bf16_f32 v36, v35, v35")
    a("v_lshlrev_b32 v35, 16, v36")
    a("v_sqrt_f32 v35, v35")
    a("s_nop 0")
    a("v_cvt_pk_bf16_f32 v36, v35, v35")
    a("v_lshlrev_b32 v35, 16, v36")
    a("v_rcp_f32 v35, v35")
    a("s_nop 0")
    for i in range(8):
        a("v_sub_f32 v%d, v%d, v32" % (16 + 2 * i, 16 + 2 * i))
        a("v_sub_f32 v%d, v%d, v32" % (17 + 2 * i, 17 + 2 * i))
        a("v_cvt_pk_bf16_f32 v36, v%d, v%d" % (16 + 2 * i, 17 + 2 * i))
        a("v_lshlrev_b32 v37, 16, v36")
        a("v_and_b32 v38, 0xffff0000, v36")
        a("v_mul_f32 v37, v37, v35")
        a("v_mul_f32 v38, v38, v35")
        a("v_cvt_pk_bf16_f32 v%d, v37, v38" % (4 + i))
    a("buffer_store_dwordx4 v[4:7], v1, s[12:15], 0 offen%s" % ST2)
    a("buffer_store_dwordx4 v[8:11], v1, s[12:15], 0 offen offset:1024%s" % ST2)
    a.label("ln_done")
    a("s_endpgm")
    return L, 40


def interleave(a, mfmas, fillers):
    n = len(mfmas)
    nf = len(fillers)
    fi = 0
    for i, m in enumerate(mfmas):
        a(m)
        want = ((i + 1) * nf + n - 1) // n if nf <= n else ((i + 1) * nf) // n
        want = min(nf, max(want, min(nf, i + 1)))
        while fi < want:
            for x in fillers[fi]:
                a(x)
            fi += 1
    while fi < nf:
        for x in fillers[fi]:
            a(x)
        fi += 1


def place(a, mfmas, slots):
    for i, m in enumerate(mfmas):
        a(m)
        for grp in slots.get(i, []):
            for x in grp:
                a(x)


class Gemm:
    def __init__(self, a, MT, NT, acc, fragA, fragB, vA, vB, voffA, voffB,
                 orient, sM0, sOffA, sOffB, srdA, srdB, stepA, stepB):
        self.__dict__.update(locals())

    def mfmas(self, st):
        out = []
        for mt in range(self.MT):
            for nt in range(self.NT):
                c = self.acc + (mt * self.NT + nt) * 4
                fa = self.fragA[st] + mt * 4
                fb = self.fragB[st] + nt * 4
                x, y = (fb, fa) if self.orient(nt) else (fa, fb)
                out.append("v_mfma_f32_16x16x32_bf16 %s, %s, %s, %s" % (vr(c, 4), vr(x, 4), vr(y, 4), vr(c, 4)))
        return out

    def reads(self, st, buf):
        out = []
        for mt in range(self.MT):
            out.append(["ds_read_b128 %s, %s offset:%d" % (vr(self.fragA[st] + mt * 4, 4), vr(self.vA), buf * 16384 + mt * 1024)])
        for nt in range(self.NT):
            for rd in range(2):
                out.append(["ds_read_b64_tr_b16 %s, %s offset:%d" % (vr(self.fragB[st] + nt * 4 + rd * 2, 2), vr(self.vB[nt]), buf * 16384 + rd * 2048)])
        return out

    def dmas(self, buf):
        out = []
        for j in range(2):
            out.append(["s_add_u32 m0, s%d, %d" % (self.sM0, buf * 16384 + j * 1024),
                        "s_nop 0",
                        "buffer_load_dwordx4 %s, %s, s%d offen lds" % (vr(self.voffA + j), sr(self.srdA, 4), self.sOffA)])
        for j in range(2):
            out.append(["s_add_u32 m0, s%d, %d" % (self.sM0, 65536 + buf * 16384 + j * 1024),
                        "s_nop 0",
                        "buffer_load_dwordx4 %s, %s, s%d offen lds" % (vr(self.voffB + j), sr(self.srdB, 4), self.sOffB)])
        out.append(["s_add_u32 s%d, s%d, %d" % (self.sOffA, self.sOffA, self.stepA),
                    "s_add_u32 s%d, s%d, %d" % (self.sOffB, self.sOffB, self.stepB)])
        return out

    def pf(self):
        return ["buffer_load_dword v30, v31, s[40:43], s19 offen",
                "s_add_u32 s19, s19, 0x%x" % (PF_LANES * 64 * 1024)]

    def iteration(self, i, dma, nxt, vm):
        a = self.a
        mf = self.mfmas(i & 1)
        n = len(mf)
        dpos = [1 + (j * (n - 2)) // 4 for j in range(4)]
        slots = {}
        if dma and "NODMA" not in FLAGS:
            d = self.dmas(i % 4)
            for j in range(4):
                slots.setdefault(dpos[j], []).append(d[j])
            slots.setdefault(dpos[3], []).append(d[4])
            slots.setdefault(dpos[3] + 1, []).append(self.pf())
        if nxt:
            r = self.reads((i + 1) & 1, (i + 1) % 4)
            pos = [p for p in range(n) if p not in dpos][:len(r)]
            for p, x in zip(pos, r):
                slots.setdefault(p, []).append(x)
        place(a, mf, slots)
        if nxt:
            if vm is None:
                a("s_waitcnt lgkmcnt(0)")
            else:
                a("s_waitcnt vmcnt(%d) lgkmcnt(0)" % vm)
            a("s_barrier")

    def run(self, nstages, tag, sCnt):
        a = self.a
        a("s_lshl_b32 s28, s23, 4")
        a("s_add_u32 s28, s28, s25")
        a("s_lshl_b32 s28, s28, 3")
        a("s_add_u32 s28, s28, s20")
        a("s_mul_i32 s28, s28, %d" % (PF_LANES * 64))
        a("v_lshl_add_u32 v31, v1, 6, s28")
        a("v_cmp_gt_u32 vcc, %d, v1" % PF_LANES)
        a("v_mov_b32 v29, 0x7f000000")
        a("s_nop 0")
        a("v_cndmask_b32 v31, v29, v31, vcc")
        a("s_mov_b32 s19, 0x%x" % (PF_ROWS * (self.stepB // 32)))
        for i in range(4):
            a("s_mov_b32 s%d, s%d" % (40 + i, self.srdB + i))
        for st in range(4):
            for f in self.dmas(st):
                for x in f:
                    a(x)
            if st >= 2:
                for x in self.pf():
                    a(x)
        for i in range(self.MT * self.NT * 4):
            a("v_mov_b32 v%d, 0" % (self.acc + i))
        stamp(a, 1)
        a("s_waitcnt vmcnt(14)")
        a("s_barrier")
        stamp(a, 2)
        for f in self.reads(0, 0):
            for x in f:
                a(x)
        a("s_waitcnt vmcnt(10) lgkmcnt(0)")
        a("s_barrier")
        a("s_mov_b32 s%d, %d" % (sCnt, (nstages - 4) // 4))
        a.label(tag + "_loop")
        for i in range(4):
            self.iteration(i, True, True, 11)
        a("s_sub_u32 s%d, s%d, 1" % (sCnt, sCnt))
        a("s_cmp_lg_u32 s%d, 0" % sCnt)
        a("s_cbranch_scc1 %s_loop" % tag)
        self.iteration(0, False, True, 6)
        self.iteration(1, False, True, 1)
        self.iteration(2, False, True, None)
        self.iteration(3, False, False, None)
        stamp(a, 3)
        a("s_lshl_b32 s28, s2, 3")
        a("s_add_u32 s28, s28, s20")
        a("s_lshl_b32 s28, s28, 12")
        a("v_lshl_add_u32 v31, v1, 6, s28")
        srd(a, 40, 48, 0, F * D * 2)
        a("buffer_load_dword v30, v31, s[40:43], 0 offen")
        srd(a, 40, 44, 0, D * D * 2)
        a("buffer_load_dword v30, v31, s[40:43], 0 offen")


G1_ACC = 128
G1_FA = (32, 76)
G1_FB = (48, 92)
G1_VOA, G1_VOB = 8, 12
G1_VA = 16
G1_VB = (18, 19, 20, 21, 22, 23, 24)
G1_X = 240


def g1_common_addr(a):
    a("v_and_b32 v1, 63, v0")
    a("v_lshrrev_b32 v2, 6, v0")
    a("s_nop 0")
    a("v_readfirstlane_b32 s20, v2")
    a("v_and_b32 v3, 15, v1")
    a("v_lshrrev_b32 v4, 4, v1")


def gen_gemm1(a):
    L = "gemm1_kernel"
    kernel_head(a, L)
    a("s_cmp_ge_u32 s2, 256")
    a("s_cbranch_scc1 g1_done")
    stamp(a, 0)
    stamp_rt(a, 6)
    a("s_load_dwordx2 s[4:5], s[0:1], %d" % KA_WS)
    a("s_load_dwordx2 s[6:7], s[0:1], %d" % KA_WQKV)
    a("s_load_dwordx2 s[30:31], s[0:1], %d" % KA_W1)
    a("s_load_dwordx2 s[32:33], s[0:1], %d" % KA_WPHI)
    a("s_load_dwordx2 s[34:35], s[0:1], %d" % KA_B1)
    a("s_load_dwordx2 s[44:45], s[0:1], %d" % KA_WO)
    a("s_load_dwordx2 s[48:49], s[0:1], %d" % KA_W2)
    g1_common_addr(a)
    a("s_and_b32 s21, s2, 7")
    a("s_lshr_b32 s22, s2, 3")
    a("s_and_b32 s23, s21, 1")
    a("s_lshl_b32 s23, s23, 2")
    a("s_and_b32 s24, s22, 3")
    a("s_add_u32 s23, s23, s24")
    a("s_lshr_b32 s24, s22, 2")
    a("s_lshr_b32 s25, s21, 1")
    a("s_lshl_b32 s25, s25, 2")
    a("s_and_b32 s26, s24, 3")
    a("s_add_u32 s25, s25, s26")
    a("s_lshr_b32 s21, s20, 1")
    a("s_and_b32 s22, s20, 1")
    a("s_lshl_b32 s27, s20, 11")
    a("v_lshrrev_b32 v5, 2, v1")
    a("s_lshl_b32 s28, s23, 8")
    a("s_lshl_b32 s29, s20, 5")
    a("s_add_u32 s28, s28, s29")
    a("v_add_u32 v5, s28, v5")
    a("v_lshlrev_b32 v5, 11, v5")
    a("v_lshrrev_b32 v6, 1, v4")
    a("v_xor_b32 v7, v6, v4")
    a("v_and_b32 v7, 1, v7")
    a("v_lshl_or_b32 v6, v7, 1, v6")
    a("v_and_b32 v7, 3, v1")
    a("v_xor_b32 v7, v7, v6")
    a("v_lshl_add_u32 v%d, v7, 4, v5" % G1_VOA)
    a("v_add_u32 v%d, %d, v%d" % (G1_VOA + 1, 16 * 2048, G1_VOA))
    a("v_bfe_u32 v5, v1, 2, 2")
    a("v_lshrrev_b32 v6, 1, v5")
    a("v_xor_b32 v7, v6, v5")
    a("v_and_b32 v7, 1, v7")
    a("v_lshl_or_b32 v6, v7, 1, v6")
    a("v_xor_b32 v5, v6, v4")
    a("s_lshl_b32 s28, s21, 6")
    a("v_add_u32 v6, s28, v3")
    a("v_lshlrev_b32 v6, 6, v6")
    a("v_lshl_add_u32 v%d, v5, 4, v6" % G1_VA)
    a("v_bfe_u32 v5, v1, 2, 2")
    a("v_and_b32 v6, 1, v4")
    a("v_lshl_or_b32 v6, v6, 2, v5")
    a("v_lshl_add_u32 v5, v4, 3, v5")
    a("v_lshlrev_b32 v5, 9, v5")
    a("v_and_b32 v7, 3, v1")
    a("v_lshl_add_u32 v5, v7, 3, v5")
    a("v_add_u32 v5, 0x10000, v5")
    a("s_waitcnt lgkmcnt(0)")
    srd(a, 8, 4, WS_XN, SZ_XN)
    a("s_mov_b32 s16, 0")
    a("s_mov_b32 s17, 0")
    a("s_cmp_ge_u32 s24, 4")
    a("s_cbranch_scc1 g1_w1")

    def b_dma_rows(a, j):
        a("v_lshrrev_b32 v25, 5, v1")
        a("v_add_u32 v25, %d, v25" % (2 * j))
        a("s_bfe_u32 s28, s20, 0x10001")
        a("s_lshl_b32 s28, s28, 2")
        a("v_or_b32 v26, s28, v25")
        a("v_lshlrev_b32 v26, 1, v26")
        a("v_and_b32 v27, 31, v1")
        a("v_xor_b32 v26, v26, v27")
        a("s_lshl_b32 s28, s20, 2")
        a("v_add_u32 v25, s28, v25")

    NT = 6
    for tt in range(NT):
        a("s_mul_i32 s28, s22, %d" % NT)
        a("s_add_u32 s28, s28, %d" % tt)
        a("v_xor_b32 v7, s28, v6")
        a("v_lshl_add_u32 v%d, v7, 5, v5" % G1_VB[tt])
    srd(a, 12, 6, 0, D * 3 * D * 2)
    for j in range(2):
        b_dma_rows(a, j)
        a("v_lshrrev_b32 v27, 2, v26")
        a("v_cmp_le_u32 vcc, 3, v27")
        a("s_nop 1")
        a("v_cndmask_b32 v28, 0, 1, vcc")
        a("v_mul_u32_u24 v29, 3, v28")
        a("v_sub_u32 v29, v27, v29")
        a("s_lshl_b32 s28, s25, 1")
        a("v_add_u32 v28, s28, v28")
        a("v_lshlrev_b32 v28, 6, v28")
        a("v_lshl_add_u32 v28, v29, 11, v28")
        a("v_and_b32 v29, 3, v26")
        a("v_lshl_add_u32 v28, v29, 4, v28")
        a("s_movk_i32 s28, 6144")
        a("v_mul_lo_u32 v29, v25, s28")
        a("v_add_u32 v28, v28, v29")
        a("v_cmp_gt_u32 vcc, 6, v27")
        a("v_mov_b32 v29, 0x7f000000")
        a("s_nop 0")
        a("v_cndmask_b32 v%d, v29, v28, vcc" % (G1_VOB + j))
    srd(a, 36, 32, 0, H * DH * DH * 2)
    a("s_lshl_b32 s28, s25, 1")
    a("s_add_u32 s28, s28, s22")
    a("s_lshl_b32 s28, s28, 11")
    a("v_lshlrev_b32 v25, 8, v4")
    a("v_lshl_add_u32 v25, v3, 1, v25")
    a("v_add_u32 v25, s28, v25")
    for ft in range(2):
        for j in range(8):
            d = (j & 3) + (16 if j >= 4 else 0)
            a("buffer_load_ushort v%d, v25, s[36:39], 0 offen offset:%d" % (224 + ft * 8 + j, d * 64 + ft * 32))
    g = Gemm(a, 4, NT, G1_ACC, G1_FA, G1_FB, G1_VA, G1_VB, G1_VOA, G1_VOB,
             lambda nt: nt < 4, 27, 16, 17, 8, 12, 64, 32 * 6144)
    g.run(32, "g1q", 18)
    if "NOEPI" not in FLAGS:
        g1_qkv_epilogue(a)
    a("s_branch g1_fin")

    a.label("g1_w1")
    NT = 7
    for tt in range(NT):
        a("s_mul_i32 s28, s22, %d" % NT)
        a("s_add_u32 s28, s28, %d" % tt)
        a("v_xor_b32 v7, s28, v6")
        a("v_lshl_add_u32 v%d, v7, 5, v5" % G1_VB[tt])
    srd(a, 12, 30, 0, D * F * 2)
    for j in range(2):
        b_dma_rows(a, j)
        a("s_mul_i32 s28, s25, 448")
        a("v_lshlrev_b32 v28, 4, v26")
        a("v_add_u32 v28, s28, v28")
        a("s_movk_i32 s28, 7168")
        a("v_mul_lo_u32 v29, v25, s28")
        a("v_add_u32 v28, v28, v29")
        a("v_cmp_gt_u32 vcc, 28, v26")
        a("v_mov_b32 v29, 0x7f000000")
        a("s_nop 0")
        a("v_cndmask_b32 v%d, v29, v28, vcc" % (G1_VOB + j))
    srd(a, 36, 34, 0, F * 2)
    a("s_mul_i32 s28, s25, 448")
    a("s_mul_i32 s29, s22, 224")
    a("s_add_u32 s28, s28, s29")
    a("v_lshlrev_b32 v25, 3, v4")
    a("v_add_u32 v25, s28, v25")
    for tt in range(NT):
        a("buffer_load_dwordx2 %s, v25, s[36:39], 0 offen offset:%d" % (vr(G1_X + 2 * tt, 2), tt * 32))
    g = Gemm(a, 4, NT, G1_ACC, G1_FA, G1_FB, G1_VA, G1_VB, G1_VOA, G1_VOB,
             lambda nt: True, 27, 16, 17, 8, 12, 64, 32 * 7168)
    g.run(32, "g1w", 18)
    if "NOEPI" not in FLAGS:
        g1_w1_epilogue(a)
    a.label("g1_fin")
    if "STAMP" in FLAGS:
        a("s_waitcnt vmcnt(0)")
    stamp(a, 4)
    stamp_rt(a, 5)
    stamp_flush(a, 12, 0)
    a.label("g1_done")
    a("s_endpgm")
    return L, 256


def f32bits(x):
    import struct
    return struct.unpack("<I", struct.pack("<f", x))[0]


def g1_w1_epilogue(a):
    NT = 7
    RS = 240
    srd(a, 40, 4, WS_HC, SZ_HC)
    for tt in range(NT):
        for p in range(2):
            a("v_lshlrev_b32 v%d, 16, v%d" % (32 + tt * 4 + 2 * p, G1_X + 2 * tt + p))
            a("v_and_b32 v%d, 0xffff0000, v%d" % (33 + tt * 4 + 2 * p, G1_X + 2 * tt + p))
    a("s_mul_i32 s28, s20, %d" % (64 * RS))
    a("s_movk_i32 s29, %d" % RS)
    a("v_mul_lo_u32 v6, v3, s29")
    a("v_lshl_add_u32 v6, v4, 3, v6")
    a("v_add_u32 v6, s28, v6")
    a("v_subrev_u32 v7, 56, v1")
    a("v_cmp_gt_u32 vcc, 56, v1")
    a("s_nop 1")
    a("v_cndmask_b32 v7, v7, v1, vcc")
    a("v_mul_u32_u24 v8, 0x4a, v7")
    a("v_lshrrev_b32 v8, 10, v8")
    a("v_mul_u32_u24 v9, 14, v8")
    a("v_sub_u32 v9, v7, v9")
    a("v_mul_lo_u32 v7, v8, s29")
    a("v_lshl_add_u32 v7, v9, 4, v7")
    a("v_add_u32 v7, s28, v7")
    a("s_lshl_b32 s28, s23, 8")
    a("s_lshl_b32 s29, s21, 6")
    a("s_add_u32 s28, s28, s29")
    a("v_add_u32 v5, s28, v8")
    a("s_movk_i32 s28, 9216")
    a("v_mul_lo_u32 v5, v5, s28")
    a("s_mul_i32 s28, s25, 448")
    a("s_mul_i32 s29, s22, 224")
    a("s_add_u32 s28, s28, s29")
    a("v_lshl_add_u32 v9, v9, 4, s28")
    a("v_add_u32 v5, v5, v9")
    k0 = -2.0 * 0.7978845608028654 * 1.4426950408889634
    k1 = k0 * 0.044715
    a("s_mov_b32 s44, 0x%08x" % f32bits(k1))
    a("s_mov_b32 s45, 0x%08x" % f32bits(k1))
    a("s_mov_b32 s46, 1.0")
    a("s_mov_b32 s47, 1.0")
    a("v_mov_b32 v8, 0x%08x" % f32bits(k0))
    a("v_mov_b32 v9, 0x%08x" % f32bits(k0))
    a("s_barrier")

    def flush(mt):
        for j in range(4):
            a("ds_read_b128 %s, v7 offset:%d" % (vr(96 + j * 4, 4), (mt * 16 + j * 4) * RS))
        for j in range(4):
            a("s_waitcnt lgkmcnt(%d)" % (3 - j))
            a("s_mov_b32 s28, 0x%x" % ((mt * 16 + j * 4) * 9216))
            a("buffer_store_dwordx4 %s, v5, s[40:43], s28 offen%s" % (vr(96 + j * 4, 4), ST))

    for mt in range(4):
        for tt in range(NT):
            c = G1_ACC + (mt * NT + tt) * 4
            T = 64 + ((mt * NT + tt) & 1) * 16
            for p in range(2):
                a("v_pk_add_f32 %s, %s, %s" % (vr(T + 2 * p, 2), vr(c + 2 * p, 2), vr(32 + tt * 4 + 2 * p, 2)))
            for p in range(2):
                a("v_pk_mul_f32 %s, %s, %s" % (vr(T + 4 + 2 * p, 2), vr(T + 2 * p, 2), vr(T + 2 * p, 2)))
            for p in range(2):
                a("v_pk_fma_f32 %s, %s, s[44:45], v[8:9]" % (vr(T + 4 + 2 * p, 2), vr(T + 4 + 2 * p, 2)))
            for p in range(2):
                a("v_pk_mul_f32 %s, %s, %s" % (vr(T + 4 + 2 * p, 2), vr(T + 4 + 2 * p, 2), vr(T + 2 * p, 2)))
            for r in range(4):
                a("v_exp_f32 v%d, v%d" % (T + 4 + r, T + 4 + r))
            a("s_nop 0")
            for p in range(2):
                a("v_pk_add_f32 %s, %s, s[46:47]" % (vr(T + 4 + 2 * p, 2), vr(T + 4 + 2 * p, 2)))
            for r in range(4):
                a("v_rcp_f32 v%d, v%d" % (T + 4 + r, T + 4 + r))
            a("s_nop 0")
            for p in range(2):
                a("v_pk_mul_f32 %s, %s, %s" % (vr(T + 4 + 2 * p, 2), vr(T + 4 + 2 * p, 2), vr(T + 2 * p, 2)))
            a("v_cvt_pk_bf16_f32 v%d, v%d, v%d" % (T + 8, T + 4, T + 5))
            a("v_cvt_pk_bf16_f32 v%d, v%d, v%d" % (T + 9, T + 6, T + 7))
            a("ds_write_b64 v6, %s offset:%d" % (vr(T + 8, 2), mt * 16 * RS + tt * 32))
            if tt == 2 and mt > 0:
                flush(mt - 1)
        a("s_waitcnt lgkmcnt(0)")
    flush(3)


def bf16_round_pair(a, x0, x1, t):
    a("v_cvt_pk_bf16_f32 v%d, v%d, v%d" % (t, x0, x1))
    a("v_lshlrev_b32 v%d, 16, v%d" % (x0, t))
    a("v_and_b32 v%d, 0xffff0000, v%d" % (x1, t))


def xlane_g(a, op, regs, temps):
    for sw in ("v_permlane16_swap_b32", "v_permlane32_swap_b32"):
        for v, t in zip(regs, temps):
            a("v_mov_b32 v%d, v%d" % (t, v))
        a("s_nop 1")
        for v, t in zip(regs, temps):
            a("%s v%d, v%d" % (sw, v, t))
        a("s_nop 1")
        for (v, t), o in zip(zip(regs, temps), op):
            a("%s v%d, v%d, v%d" % (o, v, v, t))


def dpp16(a, ops, regs):
    for ctl in ("quad_perm:[1,0,3,2]", "quad_perm:[2,3,0,1]", "row_half_mirror", "row_mirror"):
        if len(regs) < 3:
            a("s_nop 1")
        for v, o in zip(regs, ops):
            a("%s_dpp v%d, v%d, v%d %s row_mask:0xf bank_mask:0xf" % (o, v, v, v, ctl))


def g1_softmax_batch(a, acc, WP, tt0):
    E = lambda mt: 32 + mt * 16
    FR = lambda mt: 96 + mt * 4
    MX = lambda mt: 112 + 2 * mt
    MN = lambda mt: 120 + 2 * mt
    P = lambda mt: acc(mt, tt0)
    R = range(4)
    for mt in R:
        for i in range(4):
            a("v_cvt_pk_bf16_f32 v%d, v%d, v%d" % (FR(mt) + i, P(mt) + 2 * i, P(mt) + 2 * i + 1))
    a("s_nop 1")
    for mt in R:
        for ft in range(2):
            a("v_mfma_f32_16x16x32_bf16 %s, %s, %s, 0" % (vr(P(mt) + ft * 4, 4), vr(WP[ft], 4), vr(FR(mt), 4)))
    a("s_nop 7")
    for mt in R:
        for i in range(4):
            a("v_cvt_pk_bf16_f32 v%d, v%d, v%d" % (E(mt) + i, P(mt) + 2 * i, P(mt) + 2 * i + 1))
    for mt in R:
        for i in range(4):
            a("v_lshlrev_b32 v%d, 16, v%d" % (P(mt) + 2 * i, E(mt) + i))
            a("v_and_b32 v%d, 0xffff0000, v%d" % (P(mt) + 2 * i + 1, E(mt) + i))
    for op3, op2, M in (("v_max3_f32", "v_max_f32", MX), ("v_min3_f32", "v_min_f32", MN)):
        for mt in R:
            a("%s v%d, v%d, v%d, v%d" % (op3, M(mt), P(mt), P(mt) + 1, P(mt) + 2))
        for mt in R:
            a("%s v%d, v%d, v%d, v%d" % (op3, M(mt), M(mt), P(mt) + 3, P(mt) + 4))
        for mt in R:
            a("%s v%d, v%d, v%d, v%d" % (op3, M(mt), M(mt), P(mt) + 5, P(mt) + 6))
        for mt in R:
            a("%s v%d, v%d, v%d" % (op2, M(mt), M(mt), P(mt) + 7))

    def xl(opx, opn):
        regs = [(MX(mt), opx) for mt in R] + [(MN(mt), opn) for mt in R]
        for sw in ("v_permlane16_swap_b32", "v_permlane32_swap_b32"):
            for v, o in regs:
                a("v_mov_b32 v%d, v%d" % (v + 1, v))
            a("s_nop 0")
            for v, o in regs:
                a("%s v%d, v%d" % (sw, v, v + 1))
            a("s_nop 0")
            for v, o in regs:
                a("%s v%d, v%d, v%d" % (o, v, v, v + 1))
    xl("v_max_f32", "v_min_f32")
    for mt in R:
        a("v_mul_f32 v%d, s48, v%d" % (MX(mt), MX(mt)))
        a("v_mul_f32 v%d, s48, v%d" % (MN(mt), MN(mt)))
    for mt in R:
        for i in range(4):
            a("v_pk_fma_f32 %s, %s, s[48:49], %s op_sel_hi:[1,1,0] neg_lo:[0,0,1] neg_hi:[0,0,1]" % (
                vr(E(mt) + 2 * i, 2), vr(P(mt) + 2 * i, 2), vr(MX(mt), 2)))
            a("v_pk_fma_f32 %s, %s, s[48:49], %s op_sel_hi:[1,1,0] neg_lo:[1,0,0] neg_hi:[1,0,0]" % (
                vr(E(mt) + 8 + 2 * i, 2), vr(P(mt) + 2 * i, 2), vr(MN(mt), 2)))
    for mt in R:
        for i in range(16):
            a("v_exp_f32 v%d, v%d" % (E(mt) + i, E(mt) + i))
    a("s_nop 0")
    for M, o in ((MX, 0), (MN, 8)):
        for mt in R:
            a("v_pk_add_f32 %s, %s, %s" % (vr(M(mt), 2), vr(E(mt) + o, 2), vr(E(mt) + o + 2, 2)))
        for mt in R:
            a("v_pk_add_f32 %s, %s, %s" % (vr(M(mt), 2), vr(M(mt), 2), vr(E(mt) + o + 4, 2)))
        for mt in R:
            a("v_pk_add_f32 %s, %s, %s" % (vr(M(mt), 2), vr(M(mt), 2), vr(E(mt) + o + 6, 2)))
        for mt in R:
            a("v_add_f32 v%d, v%d, v%d" % (M(mt), M(mt), M(mt) + 1))
    xl("v_add_f32", "v_add_f32")
    for mt in R:
        a("v_rcp_f32 v%d, v%d" % (MX(mt), MX(mt)))
        a("v_rcp_f32 v%d, v%d" % (MN(mt), MN(mt)))
    a("s_nop 0")
    for mt in R:
        for i in range(4):
            a("v_pk_mul_f32 %s, %s, %s op_sel_hi:[1,0]" % (vr(E(mt) + 2 * i, 2), vr(E(mt) + 2 * i, 2), vr(MX(mt), 2)))
            a("v_pk_mul_f32 %s, %s, %s op_sel_hi:[1,0]" % (vr(E(mt) + 8 + 2 * i, 2), vr(E(mt) + 8 + 2 * i, 2), vr(MN(mt), 2)))
    for mt in R:
        for i in range(8):
            a("v_cvt_pk_bf16_f32 v%d, v%d, v%d" % (P(mt) + i, E(mt) + 2 * i, E(mt) + 2 * i + 1))


def g1_qkv_epilogue(a):
    NT = 6
    WP = (G1_X, G1_X + 4)
    KS = 160
    SH = 98304

    def acc(mt, tt):
        return G1_ACC + (mt * NT + tt) * 4

    srd(a, 40, 4, WS_PQ, SZ_PQ)
    srd(a, 44, 4, WS_KV, SZ_KV)
    a("s_mov_b32 s48, 0x%08x" % LOG2E)
    a("s_mov_b32 s49, 0x%08x" % LOG2E)
    a("s_mul_i32 s50, s20, 12288")
    for i in range(8):
        a("v_lshl_or_b32 v%d, v%d, 16, v%d" % (G1_X + i, 224 + 2 * i + 1, 224 + 2 * i))
    a("s_movk_i32 s28, %d" % KS)
    a("v_mul_lo_u32 v5, v3, s28")
    a("v_lshl_add_u32 v5, v4, 3, v5")
    a("v_add_u32 v5, s50, v5")
    a("v_bfe_u32 v6, v1, 2, 2")
    a("v_lshl_add_u32 v6, v4, 2, v6")
    a("v_mul_lo_u32 v6, v6, s28")
    a("v_and_b32 v7, 3, v1")
    a("v_lshl_add_u32 v6, v7, 3, v6")
    a("v_add_u32 v6, s50, v6")
    a("v_lshlrev_b32 v7, 4, v1")
    a("s_barrier")
    g1_softmax_batch(a, acc, WP, 2)
    stamp(a, 7)
    for mt in range(4):
        for q in range(4):
            a("ds_write_b64 v5, %s offset:%d" % (vr(acc(mt, 2) + 2 * q, 2), mt * 16 * KS + q * 32))
    KV, AF, BF, ONE = 64, 32, 112, 16
    for u in range(2):
        for dt in range(2):
            for hf in range(2):
                for p in range(2):
                    c = acc(2 * u + hf, 4 + dt) + 2 * p
                    a("v_cvt_pk_bf16_f32 v%d, v%d, v%d" % (BF + (u * 2 + dt) * 4 + hf * 2 + p, c, c + 1))
    for i in range(4):
        a("v_mov_b32 v%d, 0x3f803f80" % (ONE + i))
    a("s_waitcnt lgkmcnt(0)")
    for u in range(2):
        for fq in range(4):
            for hf in range(2):
                a("ds_read_b64_tr_b16 %s, v6 offset:%d" % (vr(AF + (u * 4 + fq) * 4 + hf * 2, 2), (2 * u + hf) * 16 * KS + fq * 32))
    a("s_waitcnt lgkmcnt(8)")
    for u in range(2):
        if u == 1:
            a("s_waitcnt lgkmcnt(0)")
        for fq in range(4):
            for t in range(3):
                c = KV + (fq * 2 + t) * 4 if t < 2 else KV + (8 + fq) * 4
                b = BF + (u * 2 + t) * 4 if t < 2 else ONE
                a("v_mfma_f32_16x16x32_bf16 %s, %s, %s, %s" % (vr(c, 4), vr(AF + (u * 4 + fq) * 4, 4), vr(b, 4), vr(c, 4) if u else "0"))
    a("v_add_u32 v8, s50, v7")
    a("s_nop 7")
    for t in range(12):
        a("ds_write_b128 v8, %s offset:%d" % (vr(KV + t * 4, 4), t * 1024))
    a("s_lshr_b32 s28, s20, 2")
    a("s_mul_i32 s28, s28, 12288")
    a("s_and_b32 s29, s20, 3")
    a("s_mul_i32 s29, s29, 3072")
    a("s_add_u32 s28, s28, s29")
    a("v_add_u32 v8, s28, v7")
    a("v_add_u32 v9, 0xc000, v8")
    a("s_lshl_b32 s28, s25, 3")
    a("s_add_u32 s28, s28, s23")
    a("s_mul_i32 s28, s28, 24")
    a("s_mul_i32 s29, s20, 3")
    a("s_add_u32 s28, s28, s29")
    a("s_lshl_b32 s28, s28, 10")
    a("v_add_u32 v10, s28, v7")
    a("s_waitcnt lgkmcnt(0)")
    a("s_barrier")
    for wm in range(4):
        for i in range(3):
            a("ds_read_b128 %s, %s offset:%d" % (vr(32 + (wm * 3 + i) * 4, 4), "v9" if wm >= 2 else "v8", (wm & 1) * 24576 + i * 1024))
    a("s_waitcnt lgkmcnt(0)")
    for wm in range(1, 4):
        for i in range(6):
            a("v_pk_add_f32 %s, %s, %s" % (vr(32 + 2 * i, 2), vr(32 + 2 * i, 2), vr(32 + wm * 12 + 2 * i, 2)))
    for i in range(3):
        a("buffer_store_dwordx4 %s, v10, s[44:47], 0 offen offset:%d%s" % (vr(32 + i * 4, 4), i * 1024, ST))
    stamp(a, 8)
    a("s_nop 1")
    g1_softmax_batch(a, acc, WP, 0)
    stamp(a, 9)
    stamp(a, 10)
    stamp(a, 11)
    a("s_lshl_b32 s28, s25, 3")
    a("s_add_u32 s28, s28, s23")
    a("s_lshl_b32 s28, s28, 3")
    a("s_add_u32 s28, s28, s20")
    a("s_lshl_b32 s28, s28, 13")
    a("v_add_u32 v10, s28, v7")
    a("s_movk_i32 s29, 4096")
    for mt in range(4):
        for kk in range(2):
            q = mt * 2 + kk
            a("buffer_store_dwordx4 %s, v10, s[40:43], %s offen offset:%d%s" % (vr(acc(mt, 0) + kk * 4, 4), "s29" if q >= 4 else "0", (q % 4) * 1024, ST))


def g2_apply(a):
    SH = 98304

    def acc(mt, tt):
        return 128 + mt * 8

    a("s_and_b32 s57, s2, 15")
    a("s_lshr_b32 s58, s2, 4")
    a("s_lshr_b32 s59, s20, 1")
    a("s_and_b32 s38, s20, 1")
    srd(a, 48, 4, WS_PQ, SZ_PQ)
    srd(a, 52, 4, WS_KV, SZ_KV)
    a("s_mul_i32 s56, s20, 12288")
    a("v_lshlrev_b32 v7, 4, v1")
    a("s_lshl_b32 s28, s57, 3")
    a("s_add_u32 s28, s28, s58")
    a("s_lshl_b32 s28, s28, 3")
    a("s_add_u32 s28, s28, s20")
    a("s_lshl_b32 s28, s28, 13")
    a("v_add_u32 v10, s28, v7")
    a("s_movk_i32 s29, 4096")
    for q in range(8):
        a("buffer_load_dwordx4 %s, v10, s[48:51], %s offen offset:%d" % (vr(128 + q * 4, 4), "s29" if q >= 4 else "0", (q % 4) * 1024))
    a("s_mul_i32 s28, s57, %d" % (8 * 24))
    a("s_mul_i32 s29, s20, 3")
    a("s_add_u32 s28, s28, s29")
    a("s_lshl_b32 s28, s28, 10")
    a("v_add_u32 v10, s28, v7")
    for rb in range(8):
        a("s_mov_b32 s28, 0x%x" % (rb * 24576))
        for i in range(3):
            a("buffer_load_dwordx4 %s, v10, s[52:55], s28 offen offset:%d" % (vr(32 + (rb * 3 + i) * 4, 4), i * 1024))
    a("s_mul_i32 s28, s20, 1536")
    a("s_add_u32 s28, s28, %d" % SH)
    a("v_lshl_add_u32 v8, v1, 3, s28")
    a("s_mul_i32 s28, s38, 6144")
    a("s_add_u32 s28, s28, %d" % SH)
    a("v_lshl_add_u32 v9, v1, 3, s28")
    for rb in range(1, 8):
        a("s_waitcnt vmcnt(%d)" % ((7 - rb) * 3))
        for i in range(6):
            a("v_pk_add_f32 %s, %s, %s" % (vr(32 + 2 * i, 2), vr(32 + 2 * i, 2), vr(32 + rb * 12 + 2 * i, 2)))
    for i in range(6):
        a("v_cvt_pk_bf16_f32 v%d, v%d, v%d" % (16 + i, 32 + 2 * i, 33 + 2 * i))
    for i in range(3):
        a("ds_write_b64 v8, %s offset:%d" % (vr(16 + 2 * i, 2), i * 512))
    a("s_waitcnt lgkmcnt(0)")
    a("s_barrier")
    for t in range(3):
        for kk in range(2):
            for hf in range(2):
                fq = 2 * kk + hf
                tile = fq * 2 + t if t < 2 else 8 + fq
                a("ds_read_b64 %s, v9 offset:%d" % (vr(32 + (t * 2 + kk) * 4 + hf * 2, 2), tile * 512))
    a("s_movk_i32 s28, 80")
    a("v_mul_lo_u32 v5, v3, s28")
    a("v_lshl_add_u32 v5, v4, 3, v5")
    a("v_add_u32 v5, s56, v5")
    a("v_lshrrev_b32 v12, 2, v1")
    a("v_mul_lo_u32 v6, v12, s28")
    a("v_and_b32 v13, 3, v1")
    a("v_lshl_add_u32 v6, v13, 4, v6")
    a("v_add_u32 v6, s56, v6")
    a("s_lshl_b32 s28, s58, 8")
    a("s_lshl_b32 s29, s59, 6")
    a("s_add_u32 s28, s28, s29")
    a("v_add_u32 v12, s28, v12")
    a("s_movk_i32 s28, 9216")
    a("v_mul_lo_u32 v12, v12, s28")
    a("s_lshl_b32 s28, s57, 1")
    a("s_add_u32 s28, s28, s38")
    a("s_lshl_b32 s28, s28, 6")
    a("s_add_u32 s28, s28, 7168")
    a("v_lshl_add_u32 v13, v13, 4, s28")
    a("v_add_u32 v12, v12, v13")
    a("s_waitcnt lgkmcnt(0)")
    for kk in range(2):
        for mt in range(4):
            for t in range(3):
                c = 64 + (mt * 3 + t) * 4
                a("v_mfma_f32_16x16x32_bf16 %s, %s, %s, %s" % (vr(c, 4), vr(32 + (t * 2 + kk) * 4, 4), vr(acc(mt, 0) + kk * 4, 4), vr(c, 4) if kk else "0"))
    a("s_nop 7")
    R = range(4)
    for mt in R:
        a("v_cvt_pk_bf16_f32 v%d, v%d, v%d" % (112 + 2 * mt, 72 + mt * 12, 72 + mt * 12))
    for mt in R:
        a("v_lshlrev_b32 v%d, 16, v%d" % (112 + 2 * mt, 112 + 2 * mt))
    for mt in R:
        a("v_add_f32 v%d, 0x358637bd, v%d" % (112 + 2 * mt, 112 + 2 * mt))
    for mt in R:
        a("v_cvt_pk_bf16_f32 v%d, v%d, v%d" % (112 + 2 * mt, 112 + 2 * mt, 112 + 2 * mt))
    for mt in R:
        a("v_lshlrev_b32 v%d, 16, v%d" % (112 + 2 * mt, 112 + 2 * mt))
    for mt in R:
        a("v_rcp_f32 v%d, v%d" % (112 + 2 * mt, 112 + 2 * mt))
    for mt in R:
        for i in range(4):
            a("v_cvt_pk_bf16_f32 v%d, v%d, v%d" % (16 + i, 64 + mt * 12 + 2 * i, 65 + mt * 12 + 2 * i))
        for i in range(4):
            a("v_lshlrev_b32 v%d, 16, v%d" % (64 + mt * 12 + 2 * i, 16 + i))
            a("v_and_b32 v%d, 0xffff0000, v%d" % (65 + mt * 12 + 2 * i, 16 + i))
        for i in range(4):
            a("v_pk_mul_f32 %s, %s, %s op_sel_hi:[1,0]" % (vr(64 + mt * 12 + 2 * i, 2), vr(64 + mt * 12 + 2 * i, 2), vr(112 + 2 * mt, 2)))
        for i in range(4):
            a("v_cvt_pk_bf16_f32 v%d, v%d, v%d" % (20 + (mt & 1) * 4 + i, 64 + mt * 12 + 2 * i, 65 + mt * 12 + 2 * i))
        for dt in range(2):
            a("ds_write_b64 v5, %s offset:%d" % (vr(20 + (mt & 1) * 4 + 2 * dt, 2), mt * 16 * 80 + dt * 32))
    a("s_waitcnt lgkmcnt(0)")
    for j in range(4):
        a("ds_read_b128 %s, v6 offset:%d" % (vr(32 + j * 4, 4), j * 16 * 80))
    for j in range(4):
        a("s_waitcnt lgkmcnt(%d)" % (3 - j))
        a("s_mov_b32 s28, 0x%x" % (j * 16 * 9216))
        a("buffer_store_dwordx4 %s, v12, s[8:11], s28 offen sc1" % vr(32 + j * 4, 4))
    a("s_barrier")


def g2_apply_signal(a):
    a("s_lshr_b32 s28, s2, 4")
    a("s_lshl_b32 s28, s28, 8")
    a("s_add_u32 s28, s28, 32768")
    a("v_mov_b32 v28, s28")
    a("s_waitcnt vmcnt(16)")
    a("s_barrier")
    a("s_cmp_lg_u32 s20, 0")
    a("s_cbranch_scc1 g2_ap_sig")
    a("v_mov_b32 v29, 1")
    a("s_mov_b64 exec, 1")
    a("buffer_atomic_add v29, v28, s[44:47], 0 offen sc1")
    a("s_mov_b64 exec, -1")
    a.label("g2_ap_sig")


def gen_apply(a):
    L = "apply_kernel"
    kernel_head(a, L)
    a("s_cmp_ge_u32 s2, 256")
    a("s_cbranch_scc1 ap_done")
    a("s_load_dwordx2 s[4:5], s[0:1], %d" % KA_WS)
    a("v_and_b32 v1, 63, v0")
    a("v_lshrrev_b32 v2, 6, v0")
    a("v_and_b32 v3, 15, v1")
    a("v_lshrrev_b32 v4, 4, v1")
    a("s_and_b32 s20, s2, 31")
    a("s_lshr_b32 s21, s2, 5")
    a("s_waitcnt lgkmcnt(0)")
    srd(a, 8, 4, WS_KV, SZ_KV)
    srd(a, 12, 4, WS_PQ, SZ_PQ)
    srd(a, 16, 4, WS_HC, SZ_HC)
    a("s_lshl_b32 s22, s20, 11")
    a("s_lshl_b32 s23, s21, 8")
    a("s_add_u32 s22, s22, s23")
    a("v_lshl_add_u32 v5, v2, 6, v3")
    a("v_add_u32 v5, s22, v5")
    a("v_lshlrev_b32 v5, 7, v5")
    a("v_lshl_add_u32 v5, v4, 4, v5")
    for st in range(4):
        for kk in range(2):
            if st < 2:
                a("buffer_load_dwordx4 %s, v5, s[12:15], 0 offen offset:%d" % (vr(64 + (st * 2 + kk) * 4, 4), st * 2048 + kk * 64))
            else:
                a("s_movk_i32 s24, 4096")
                a("buffer_load_dwordx4 %s, v5, s[12:15], s24 offen offset:%d" % (vr(64 + (st * 2 + kk) * 4, 4), (st - 2) * 2048 + kk * 64))
    a("s_lshl_b32 s22, s20, 14")
    a("v_lshlrev_b32 v6, 5, v0")
    a("v_add_u32 v6, s22, v6")
    for rb in range(8):
        a("s_mov_b32 s24, 0x%x" % (rb << 19))
        a("buffer_load_dwordx4 %s, v6, s[8:11], s24 offen" % vr(96 + rb * 8, 4))
        a("buffer_load_dwordx4 %s, v6, s[8:11], s24 offen offset:16" % vr(100 + rb * 8, 4))
    a("v_and_b32 v7, 7, v0")
    a("v_lshlrev_b32 v7, 5, v7")
    a("v_add_u32 v7, s22, v7")
    for rb in range(8):
        a("s_mov_b32 s24, 0x%x" % ((rb << 19) + 8192))
        a("buffer_load_dwordx4 %s, v7, s[8:11], s24 offen" % vr(160 + rb * 8, 4))
        a("buffer_load_dwordx4 %s, v7, s[8:11], s24 offen offset:16" % vr(164 + rb * 8, 4))
    a("s_waitcnt vmcnt(0)")
    for base in (96, 160):
        for rb in range(1, 8):
            for i in range(8):
                a("v_add_f32 v%d, v%d, v%d" % (base + i, base + i, base + rb * 8 + i))
    for i in range(4):
        a("v_cvt_pk_bf16_f32 v%d, v%d, v%d" % (8 + i, 96 + 2 * i, 97 + 2 * i))
        a("v_cvt_pk_bf16_f32 v%d, v%d, v%d" % (12 + i, 160 + 2 * i, 161 + 2 * i))
    a("v_lshlrev_b32 v6, 4, v0")
    a("ds_write_b128 v6, v[8:11]")
    a("v_and_b32 v7, 7, v0")
    a("v_lshlrev_b32 v7, 4, v7")
    a("ds_write_b128 v7, v[12:15] offset:4096")
    a("s_waitcnt lgkmcnt(0)")
    a("s_barrier")
    a("v_lshlrev_b32 v6, 7, v3")
    a("v_lshl_add_u32 v6, v4, 4, v6")
    a("v_lshlrev_b32 v7, 4, v4")
    for dt in range(2):
        for kk in range(2):
            a("ds_read_b128 %s, v6 offset:%d" % (vr(8 + (dt * 2 + kk) * 4, 4), dt * 2048 + kk * 64))
    for kk in range(2):
        a("ds_read_b128 %s, v7 offset:%d" % (vr(24 + kk * 4, 4), 4096 + kk * 64))
    a("s_lshl_b32 s23, s21, 8")
    a("v_lshl_add_u32 v5, v2, 6, v3")
    a("v_add_u32 v5, s23, v5")
    a("s_movk_i32 s24, 9216")
    a("v_mul_lo_u32 v5, v5, s24")
    a("s_lshl_b32 s23, s20, 6")
    a("s_add_u32 s23, s23, 7168")
    a("v_lshl_add_u32 v6, v4, 3, s23")
    a("v_add_u32 v5, v5, v6")
    a("s_waitcnt lgkmcnt(0)")
    for st in range(4):
        C = 96 + st * 12
        for t in range(3):
            a("v_mfma_f32_16x16x32_bf16 %s, %s, %s, 0" % (vr(C + t * 4, 4), vr(8 + t * 8, 4), vr(64 + st * 8, 4)))
        for t in range(3):
            a("v_mfma_f32_16x16x32_bf16 %s, %s, %s, %s" % (vr(C + t * 4, 4), vr(12 + t * 8, 4), vr(68 + st * 8, 4), vr(C + t * 4, 4)))
    a("s_nop 7")
    a("s_nop 7")
    for st in range(4):
        C = 96 + st * 12
        a("v_cvt_pk_bf16_f32 v32, v%d, v%d" % (C + 8, C + 8))
        a("v_lshlrev_b32 v32, 16, v32")
        a("v_add_f32 v32, 0x358637bd, v32")
        a("v_cvt_pk_bf16_f32 v32, v32, v32")
        a("v_lshlrev_b32 v32, 16, v32")
        a("v_rcp_f32 v32, v32")
        for i in range(4):
            bf16_round_pair(a, C + 2 * i, C + 2 * i + 1, 33)
        for i in range(8):
            a("v_mul_f32 v%d, v%d, v32" % (C + i, C + i))
        for i in range(4):
            a("v_cvt_pk_bf16_f32 v%d, v%d, v%d" % (40 + st * 4 + i, C + 2 * i, C + 2 * i + 1))
        a("buffer_store_dwordx2 %s, v5, s[16:19], 0 offen" % vr(40 + st * 4, 2))
        a("buffer_store_dwordx2 %s, v5, s[16:19], 0 offen offset:32" % vr(42 + st * 4, 2))
        if st < 3:
            a("v_add_u32 v5, %d, v5" % (16 * 9216))
    a.label("ap_done")
    a("s_endpgm")
    return L, 224


G2_ACC = 128
G2_FA = (32, 64)
G2_FB = (48, 80)
G2_VA = 16
G2_VB = (18, 19, 20, 21)
G2_N0 = int(os.environ.get("G2_N0", "24"))
G2_DMAPOS = (1, 5, 9, 13)


def g2_mfmas(st):
    out = []
    for mt in range(4):
        for nt in range(4):
            c = G2_ACC + (mt * 4 + nt) * 4
            out.append("v_mfma_f32_16x16x32_bf16 %s, %s, %s, %s" % (
                vr(c, 4), vr(G2_FB[st] + nt * 4, 4), vr(G2_FA[st] + mt * 4, 4), vr(c, 4)))
    return out


def g2_reads(st, buf):
    out = []
    for mt in range(4):
        out.append(["ds_read_b128 %s, %s offset:%d" % (vr(G2_FA[st] + mt * 4, 4), vr(G2_VA), buf * 16384 + mt * 2048)])
    for nt in range(4):
        for rd in range(2):
            out.append(["ds_read_b64_tr_b16 %s, %s offset:%d" % (vr(G2_FB[st] + nt * 4 + rd * 2, 2), vr(G2_VB[nt]), buf * 16384 + rd * 1024)])
    return out


def g2_dmas(buf):
    out = [["s_cmp_eq_u32 s19, 0",
            "s_cselect_b32 s12, s30, s12",
            "s_cselect_b32 s13, s31, s13",
            "s_cselect_b32 s14, 0x%x, s14" % (D * D * 2),
            "s_cselect_b32 s17, 0, s17",
            "s_sub_u32 s19, s19, 1"]]
    for j in range(2):
        out.append(["s_add_u32 m0, s27, %d" % (buf * 16384 + j * 1024),
                    "s_nop 0",
                    "buffer_load_dwordx4 v%d, s[8:11], s16 offen%s lds" % (8 + j, "" if "NOSC1A" in FLAGS else " sc1")])
    for j in range(2):
        out.append(["s_add_u32 m0, s27, %d" % (65536 + buf * 16384 + j * 1024),
                    "s_nop 0",
                    "buffer_load_dwordx4 v%d, s[12:15], s17 offen lds" % (12 + j)])
    out.append(["s_add_u32 s16, s16, 128", "s_add_u32 s17, s17, %d" % (64 * 2048)])
    return out


def g2_iter(a, i, dma, nxt, vm):
    slots = {}
    if dma and "NODMA" not in FLAGS:
        d = g2_dmas(i % 4)
        slots.setdefault(0, []).append(d[0])
        for j in range(4):
            slots.setdefault(G2_DMAPOS[j], []).append(d[1 + j])
        slots.setdefault(G2_DMAPOS[3], []).append(d[5])
    if nxt:
        r = g2_reads((i + 1) & 1, (i + 1) % 4)
        pos = [p for p in range(16) if p not in G2_DMAPOS][:12]
        for p, x in zip(pos, r):
            slots.setdefault(p, []).append(x)
    place(a, g2_mfmas(i & 1), slots)
    if nxt:
        if vm is None:
            a("s_waitcnt lgkmcnt(0)")
        else:
            a("s_waitcnt vmcnt(%d) lgkmcnt(0)" % vm)
        a("s_barrier")


def gen_gemm2(a):
    L = "gemm2_kernel"
    kernel_head(a, L)
    a("s_cmp_ge_u32 s2, 256")
    a("s_cbranch_scc1 g2_done")
    stamp(a, 0)
    stamp_rt(a, 6)
    a("s_load_dwordx2 s[4:5], s[0:1], %d" % KA_WS)
    a("s_load_dwordx2 s[6:7], s[0:1], %d" % KA_W2)
    a("s_load_dwordx2 s[30:31], s[0:1], %d" % KA_WO)
    a("s_load_dwordx2 s[32:33], s[0:1], %d" % KA_X)
    a("s_load_dwordx2 s[34:35], s[0:1], %d" % KA_B2)
    a("s_load_dwordx2 s[36:37], s[0:1], %d" % KA_OUT)
    g1_common_addr(a)
    a("s_and_b32 s21, s2, 7")
    a("s_lshr_b32 s23, s2, 7")
    a("s_bfe_u32 s24, s2, 0x20003")
    a("s_and_b32 s25, s21, 3")
    a("s_lshl_b32 s25, s25, 2")
    a("s_add_u32 s24, s24, s25")
    a("s_bfe_u32 s25, s2, 0x20005")
    a("s_lshr_b32 s26, s21, 2")
    a("s_lshl_b32 s26, s26, 2")
    a("s_add_u32 s25, s25, s26")
    if "SAMETILE" in FLAGS:
        a("s_mov_b32 s24, 0")
        a("s_mov_b32 s25, 0")
        a("s_mov_b32 s23, 0")
    a("s_lshr_b32 s21, s20, 2")
    a("s_bfe_u32 s22, s20, 0x10001")
    a("s_and_b32 s26, s20, 1")
    a("s_lshl_b32 s27, s20, 11")
    a("s_waitcnt lgkmcnt(0)")
    srd(a, 8, 4, WS_HC, SZ_HC)
    srd(a, 44, 4, WS_FL, SZ_FL)
    a("s_cmp_lg_u32 s23, 0")
    a("s_cbranch_scc1 g2_noapply")
    g2_apply(a)
    a.label("g2_noapply")
    a("v_lshrrev_b32 v5, 3, v1")
    a("s_lshl_b32 s28, s24, 7")
    a("s_lshl_b32 s29, s20, 4")
    a("s_add_u32 s28, s28, s29")
    a("v_add_u32 v5, s28, v5")
    a("s_movk_i32 s28, 9216")
    a("v_mul_lo_u32 v5, v5, s28")
    a("v_and_b32 v6, 7, v1")
    for j in range(2):
        a("v_add_u32 v7, %d, v4" % (4 * j))
        a("v_and_b32 v7, 7, v7")
        a("v_xor_b32 v7, v7, v6")
        a("v_lshl_add_u32 v7, v7, 4, v5")
        a("v_add_u32 v%d, %d, v7" % (8 + j, j * 8 * 9216))
    a("s_lshl_b32 s28, s20, 3")
    a("v_add_u32 v5, s28, v4")
    a("v_lshlrev_b32 v5, 11, v5")
    a("s_lshl_b32 s28, s25, 8")
    a("v_add_u32 v5, s28, v5")
    a("s_lshl_b32 s28, s26, 2")
    a("v_or_b32 v7, s28, v4")
    a("v_lshlrev_b32 v7, 1, v7")
    a("v_xor_b32 v7, v7, v3")
    a("v_lshl_add_u32 v12, v7, 4, v5")
    a("v_add_u32 v13, %d, v12" % (4 * 2048))
    a("s_lshl_b32 s28, s21, 2")
    a("v_add_u32 v5, s28, v4")
    a("v_lshrrev_b32 v6, 1, v3")
    a("v_xor_b32 v5, v5, v6")
    a("s_lshl_b32 s28, s22, 6")
    a("v_add_u32 v6, s28, v3")
    a("v_lshlrev_b32 v6, 7, v6")
    a("v_lshl_add_u32 v%d, v5, 4, v6" % G2_VA)
    a("v_bfe_u32 v5, v1, 2, 2")
    a("v_and_b32 v6, 1, v4")
    a("v_lshl_or_b32 v6, v6, 2, v5")
    a("v_lshl_add_u32 v5, v4, 3, v5")
    a("s_lshl_b32 s28, s21, 5")
    a("v_add_u32 v5, s28, v5")
    a("v_lshlrev_b32 v5, 8, v5")
    a("v_and_b32 v7, 3, v1")
    a("v_lshl_add_u32 v5, v7, 3, v5")
    a("v_add_u32 v5, 0x10000, v5")
    for nt in range(4):
        a("s_lshl_b32 s28, s26, 2")
        a("s_add_u32 s28, s28, %d" % nt)
        a("v_xor_b32 v7, s28, v6")
        a("v_lshl_add_u32 v%d, v7, 5, v5" % G2_VB[nt])
    srd(a, 12, 6, 0, F * D * 2)
    a("s_and_b32 s31, s31, 0xffff")
    a("s_mul_i32 s16, s23, %d" % (G2_N0 * 64 * 2))
    a("s_mul_i32 s17, s23, %d" % (G2_N0 * 64 * 2048))
    a("s_mov_b32 s19, 1000")
    a("s_mov_b32 s18, %d" % ((G2_N0 - 4) // 4))
    a("s_cmp_eq_u32 s23, 1")
    a("s_cselect_b32 s19, %d, s19" % (56 - G2_N0))
    a("s_cselect_b32 s18, %d, s18" % ((72 - G2_N0 - 4) // 4))
    a("s_cselect_b32 s3, %d, 0" % ((72 - G2_N0 - 4) // 4 - (56 - G2_N0 - 4) // 4))
    a("s_lshr_b32 s28, s24, 1")
    a("s_lshl_b32 s28, s28, 8")
    a("s_add_u32 s28, s28, 32768")
    a("v_mov_b32 v27, s28")
    srd(a, 40, 4, WS_P, SZ_P)
    a("s_lshl_b32 s28, s24, 3")
    a("s_add_u32 s28, s28, s25")
    a("s_lshl_b32 s38, s28, 8")
    a("s_lshl_b32 s39, s28, 16")
    a("s_lshl_b32 s28, s20, 13")
    a("s_add_u32 s39, s39, s28")
    a("v_mov_b32 v22, s38")
    a("v_lshlrev_b32 v24, 4, v1")
    a("v_add_u32 v24, s39, v24")
    a("s_movk_i32 s39, 4096")
    srd(a, 48, 32, 0, S * D * 2)
    srd(a, 52, 34, 0, D * 2)
    srd(a, 56, 36, 0, S * D * 2)
    a("s_lshl_b32 s28, s24, 7")
    a("s_lshl_b32 s29, s20, 4")
    a("s_add_u32 s28, s28, s29")
    a("v_add_u32 v25, s28, v4")
    a("v_lshlrev_b32 v25, 11, v25")
    a("s_lshl_b32 s28, s25, 8")
    a("v_lshl_add_u32 v26, v3, 4, s28")
    a("v_add_u32 v25, v25, v26")
    for st in range(4):
        for f in g2_dmas(st):
            for x in f:
                a(x)
    for i in range(64):
        a("v_mov_b32 v%d, 0" % (G2_ACC + i))
    a("s_cmp_lg_u32 s23, 0")
    a("s_cbranch_scc1 g2_nosig")
    g2_apply_signal(a)
    a.label("g2_nosig")
    stamp(a, 1)
    a("s_waitcnt vmcnt(12)")
    a("s_barrier")
    stamp(a, 2)
    for f in g2_reads(0, 0):
        for x in f:
            a(x)
    a("s_waitcnt vmcnt(8) lgkmcnt(0)")
    a("s_barrier")
    a.label("g2_loop")
    a("s_cmp_eq_u32 s18, s3")
    a("s_cbranch_scc1 g2_opoll")
    a.label("g2_loop2")
    for i in range(4):
        g2_iter(a, i, True, True, 8)
    a("s_sub_u32 s18, s18, 1")
    a("s_cmp_lg_u32 s18, 0")
    a("s_cbranch_scc1 g2_loop")
    stamp(a, 8)
    a("buffer_load_dword v23, v22, s[44:47], 0 offen sc1")
    g2_iter(a, 0, False, True, 5)
    a("s_cmp_eq_u32 s23, 0")
    a("s_cbranch_scc1 g2_pubtail")
    for j in range(4):
        a("s_mov_b32 s38, 0x%x" % (j * 4 * 2048))
        a("buffer_load_dwordx4 %s, v25, s[48:51], s38 offen" % vr(224 + j * 4, 4))
    a("buffer_load_dwordx4 v[240:243], v26, s[52:55], 0 offen")
    g2_iter(a, 1, False, True, 5)
    stamp(a, 7)
    a("s_mov_b32 s29, 0")
    a("s_branch g2_chk")
    a.label("g2_spin")
    a("buffer_load_dword v23, v22, s[44:47], 0 offen sc1")
    a("s_waitcnt vmcnt(0)")
    a.label("g2_chk")
    a("v_readfirstlane_b32 s28, v23")
    a("s_add_u32 s29, s29, 1")
    a("s_cmp_ge_u32 s28, 1")
    a("s_cbranch_scc1 g2_go")
    a("s_sleep 2")
    a("s_cmp_lt_u32 s29, 0x100000")
    a("s_cbranch_scc1 g2_spin")
    a.label("g2_go")
    stamp(a, 9)
    for t in range(8):
        a("buffer_load_dwordx4 %s, v24, s[40:43], %s offen offset:%d sc1" % (vr(192 + t * 4, 4), "s39" if t >= 4 else "0", (t % 4) * 1024))
    a("s_branch g2_tail")
    a.label("g2_pubtail")
    g2_iter(a, 1, False, True, 0)
    a.label("g2_tail")
    g2_iter(a, 2, False, True, None)
    g2_iter(a, 3, False, False, None)
    stamp(a, 3)
    a("s_nop 7")
    a("s_barrier")
    a("s_mul_i32 s28, s21, %d" % (128 * 528))
    a("s_mul_i32 s29, s22, %d" % (64 * 528))
    a("s_add_u32 s28, s28, s29")
    a("s_lshl_b32 s29, s26, 8")
    a("s_add_u32 s28, s28, s29")
    a("s_movk_i32 s29, 528")
    a("v_mul_lo_u32 v6, v3, s29")
    a("v_lshl_add_u32 v6, v4, 4, v6")
    a("v_add_u32 v6, s28, v6")
    for mt in range(4):
        for nt in range(4):
            a("ds_write_b128 v6, %s offset:%d" % (vr(G2_ACC + (mt * 4 + nt) * 4, 4), mt * 16 * 528 + nt * 64))
    a("s_lshl_b32 s28, s20, 4")
    a("v_add_u32 v7, s28, v4")
    a("v_mul_lo_u32 v7, v7, s29")
    a("v_lshl_add_u32 v7, v3, 5, v7")
    a("v_add_u32 v6, %d, v7" % (128 * 528))
    a("s_waitcnt lgkmcnt(0)")
    a("s_barrier")
    for j in range(4):
        for hf in range(2):
            a("ds_read_b128 %s, v7 offset:%d" % (vr(128 + j * 8 + hf * 4, 4), j * 4 * 528 + hf * 16))
            a("ds_read_b128 %s, v6 offset:%d" % (vr(32 + j * 8 + hf * 4, 4), j * 4 * 528 + hf * 16))
    a("s_waitcnt lgkmcnt(0)")
    for i in range(32):
        a("v_add_f32 v%d, v%d, v%d" % (128 + i, 128 + i, 32 + i))
    a("s_cmp_lg_u32 s23, 0")
    a("s_cbranch_scc1 g2_second")
    for t in range(8):
        a("buffer_store_dwordx4 %s, v24, s[40:43], %s offen offset:%d sc1" % (vr(128 + t * 4, 4), "s39" if t >= 4 else "0", (t % 4) * 1024))
    a("s_waitcnt vmcnt(0)")
    stamp(a, 8)
    a("s_barrier")
    a("s_cmp_lg_u32 s20, 0")
    a("s_cbranch_scc1 g2_fin")
    a("v_mov_b32 v23, 1")
    a("s_mov_b64 exec, 1")
    a("buffer_atomic_add v23, v22, s[44:47], 0 offen sc1")
    a("s_mov_b64 exec, -1")
    a("s_branch g2_fin")
    a.label("g2_second")
    a("s_waitcnt vmcnt(0)")
    for p in range(4):
        a("v_lshlrev_b32 v%d, 16, v%d" % (32 + 2 * p, 240 + p))
        a("v_and_b32 v%d, 0xffff0000, v%d" % (33 + 2 * p, 240 + p))
    for j in range(4):
        for p in range(4):
            c = 128 + j * 8 + 2 * p
            a("v_lshlrev_b32 v12, 16, v%d" % (224 + j * 4 + p))
            a("v_and_b32 v13, 0xffff0000, v%d" % (224 + j * 4 + p))
            a("v_add_f32 v12, v12, v%d" % (32 + 2 * p))
            a("v_add_f32 v13, v13, v%d" % (33 + 2 * p))
            a("v_add_f32 v%d, v%d, v%d" % (c, c, 192 + j * 8 + 2 * p))
            a("v_add_f32 v%d, v%d, v%d" % (c + 1, c + 1, 193 + j * 8 + 2 * p))
            a("v_add_f32 v%d, v%d, v12" % (c, c))
            a("v_add_f32 v%d, v%d, v13" % (c + 1, c + 1))
            a("v_cvt_pk_bf16_f32 v%d, v%d, v%d" % (64 + j * 4 + p, c, c + 1))
        a("s_mov_b32 s38, 0x%x" % (j * 4 * 2048))
        a("buffer_store_dwordx4 %s, v25, s[56:59], s38 offen%s" % (vr(64 + j * 4, 4), ST2))
    a.label("g2_fin")
    if "STAMP" in FLAGS:
        a("s_waitcnt vmcnt(0)")
    stamp(a, 4)
    stamp_rt(a, 5)
    stamp_flush(a, 10, 1)
    a.label("g2_done")
    a("s_endpgm")
    a.label("g2_opoll")
    a("s_mov_b32 s29, 0")
    a.label("g2_ospin")
    a("buffer_load_dword v23, v27, s[44:47], 0 offen sc1")
    a("s_waitcnt vmcnt(0)")
    a("v_readfirstlane_b32 s28, v23")
    a("s_add_u32 s29, s29, 1")
    a("s_cmp_ge_u32 s28, 16")
    a("s_cbranch_scc1 g2_loop2")
    a("s_sleep 2")
    a("s_cmp_lt_u32 s29, 0x100000")
    a("s_cbranch_scc1 g2_ospin")
    a("s_branch g2_loop2")
    return L, 248


def gen_combine(a):
    L = "combine_kernel"
    kernel_head(a, L)
    a("s_cmp_ge_u32 s2, 1024")
    a("s_cbranch_scc1 cb_done")
    a("s_load_dwordx2 s[4:5], s[0:1], %d" % KA_WS)
    a("s_load_dwordx2 s[6:7], s[0:1], %d" % KA_X)
    a("s_load_dwordx2 s[20:21], s[0:1], %d" % KA_B2)
    a("s_load_dwordx2 s[22:23], s[0:1], %d" % KA_OUT)
    a("s_lshl_b32 s3, s2, 8")
    a("v_add_u32 v1, s3, v0")
    a("v_lshlrev_b32 v2, 5, v1")
    a("v_lshlrev_b32 v3, 4, v1")
    a("v_and_b32 v4, 127, v1")
    a("v_lshlrev_b32 v4, 4, v4")
    a("s_waitcnt lgkmcnt(0)")
    srd(a, 8, 4, WS_P, SZ_P)
    srd(a, 12, 6, 0, S * D * 2)
    srd(a, 16, 20, 0, D * 2)
    srd(a, 24, 22, 0, S * D * 2)
    a("s_mov_b32 s28, 0x800000")
    a("buffer_load_dwordx4 v[8:11], v2, s[8:11], 0 offen")
    a("buffer_load_dwordx4 v[12:15], v2, s[8:11], 0 offen offset:16")
    a("buffer_load_dwordx4 v[16:19], v2, s[8:11], s28 offen")
    a("buffer_load_dwordx4 v[20:23], v2, s[8:11], s28 offen offset:16")
    a("buffer_load_dwordx4 v[24:27], v3, s[12:15], 0 offen")
    a("buffer_load_dwordx4 v[28:31], v4, s[16:19], 0 offen")
    a("s_waitcnt vmcnt(0)")
    for i in range(8):
        a("v_add_f32 v%d, v%d, v%d" % (8 + i, 8 + i, 16 + i))
    for i in range(4):
        a("v_lshlrev_b32 v32, 16, v%d" % (24 + i))
        a("v_and_b32 v33, 0xffff0000, v%d" % (24 + i))
        a("v_lshlrev_b32 v34, 16, v%d" % (28 + i))
        a("v_and_b32 v35, 0xffff0000, v%d" % (28 + i))
        a("v_add_f32 v32, v32, v34")
        a("v_add_f32 v33, v33, v35")
        a("v_add_f32 v%d, v%d, v32" % (8 + 2 * i, 8 + 2 * i))
        a("v_add_f32 v%d, v%d, v33" % (9 + 2 * i, 9 + 2 * i))
        a("v_cvt_pk_bf16_f32 v%d, v%d, v%d" % (36 + i, 8 + 2 * i, 9 + 2 * i))
    a("buffer_store_dwordx4 v[36:39], v3, s[24:27], 0 offen")
    a.label("cb_done")
    a("s_endpgm")
    return L, 40


def main():
    a = Asm()
    hdr = open("cdna_kernels/%s.s.ref" % NAME).read().split("\n")
    head = [l for l in hdr if l.startswith(";") and "@launch" not in l and "Override launch" not in l and "grid=ceil" not in l]
    launches = [
        "; @launch kernel=ln_kernel grid=(512,1,1) block=(256,1,1) lds=0",
        "; @launch kernel=gemm1_kernel grid=(256,1,1) block=(512,1,1) lds=131072",
        "; @launch kernel=gemm2_kernel grid=(256,1,1) block=(512,1,1) lds=135168",
    ]
    a.raw("\n".join(head + launches))
    a.raw('.amdgcn_target "amdgcn-amd-amdhsa--gfx950"')
    a.raw(".text")
    descs = []
    for g in (gen_ln, gen_gemm1, gen_gemm2):
        label, v = g(a)
        descs.append(kernel_desc(label, v))
    a.raw('.section .rodata,"a"')
    for d in descs:
        a.raw(".p2align 6")
        a.raw(d)
    open(OUT, "w").write(a.text())
    print("wrote", OUT, len(a.lines), "lines")


if __name__ == "__main__":
    main()
```

```python
import sys
import re
import os
FLAGS = set(os.environ.get("FLAGS", "").split(","))

NAME = "parallel_sum__linear_kernel_hedgehog__dense_activation_gelu__prompt"
OUT = os.environ.get("OUT", "cdna_kernels/%s.s" % NAME)

S, D, H, DH, F = 2048, 1024, 32, 32, 3584
KCAT = F + D
KA_X, KA_WQKV, KA_WPHI, KA_WO, KA_BX, KA_W1, KA_B1, KA_W2, KA_B2, KA_OUT, KA_DBG, KA_WS = [8 * i for i in range(12)]
WS_XN = 0x0000000
WS_HC = 0x0400000
WS_PQ = 0x1800000
WS_KV = 0x2000000
WS_P = 0x2400000
WS_FL = 0x3800000
SZ_FL = 65536
SZ_XN = S * D * 2
SZ_HC = S * KCAT * 2
SZ_PQ = H * S * 64 * 2
SZ_KV = 8 * 32 * 16384
SZ_P = S * D * 4

LOG2E = 0x3fb8aa3b
ST = os.environ.get("ST", "")
ST = (" " + ST) if ST else ""
ST2 = os.environ.get("ST2", "")
ST2 = (" " + ST2) if ST2 else ""
PF_ROWS = int(os.environ.get("PF_ROWS", "256"))
PF_LANES = int(os.environ.get("PF_LANES", "4"))


class Asm:
    def __init__(self):
        self.lines = []

    def __call__(self, s):
        m = re.search(r"offset:(\d+)", s)
        if m:
            lim = 4096 if s.startswith("buffer_") else 65536
            assert int(m.group(1)) < lim, s
        self.lines.append("    " + s)

    def label(self, s):
        self.lines.append(s + ":")

    def raw(self, s):
        self.lines.append(s)

    def text(self):
        return "\n".join(self.lines) + "\n"


def vr(b, n=1):
    return "v%d" % b if n == 1 else "v[%d:%d]" % (b, b + n - 1)


def sr(b, n=1):
    return "s%d" % b if n == 1 else "s[%d:%d]" % (b, b + n - 1)


def srd(a, d, base, off, size):
    if off:
        a("s_add_u32 s%d, s%d, 0x%x" % (d, base, off))
        a("s_addc_u32 s%d, s%d, 0" % (d + 1, base + 1))
    else:
        a("s_mov_b32 s%d, s%d" % (d, base))
        a("s_mov_b32 s%d, s%d" % (d + 1, base + 1))
    a("s_and_b32 s%d, s%d, 0xffff" % (d + 1, d + 1))
    a("s_mov_b32 s%d, 0x%x" % (d + 2, size))
    a("s_mov_b32 s%d, 0x00020000" % (d + 3))


def kernel_head(a, label):
    a.raw(".globl %s" % label)
    a.raw(".p2align 8")
    a.raw(".type %s,@function" % label)
    a.label(label)


def kernel_desc(label, vgpr, sgpr=102):
    acc = (vgpr + 3) // 4 * 4
    return """.amdhsa_kernel %s
  .amdhsa_next_free_vgpr %d
  .amdhsa_next_free_sgpr %d
  .amdhsa_accum_offset %d
  .amdhsa_group_segment_fixed_size 0
  .amdhsa_kernarg_size 96
  .amdhsa_user_sgpr_count 2
  .amdhsa_user_sgpr_kernarg_segment_ptr 1
  .amdhsa_system_sgpr_workgroup_id_x 1
.end_amdhsa_kernel
""" % (label, vgpr, sgpr, acc)


def stamp(a, i):
    if "STAMP" in FLAGS:
        a("s_memtime s[%d:%d]" % (60 + 2 * i, 61 + 2 * i))


def stamp_rt(a, i):
    if "STAMP" in FLAGS:
        a("s_memrealtime s[%d:%d]" % (60 + 2 * i, 61 + 2 * i))


def stamp_flush(a, n, kidx):
    if "STAMP" not in FLAGS:
        return
    a("s_waitcnt lgkmcnt(0)")
    srd(a, 88, 4, 0x8000000 + kidx * 0x100000, 0x100000)
    a("s_lshl_b32 s92, s2, 3")
    a("s_add_u32 s92, s92, s20")
    a("s_lshl_b32 s92, s92, 7")
    a("v_mov_b32 v2, s92")
    for i in range(n):
        a("v_mov_b32 v4, s%d" % (60 + 2 * i))
        a("v_mov_b32 v5, s%d" % (61 + 2 * i))
        a("buffer_store_dwordx2 v[4:5], v2, s[88:91], 0 offen offset:%d" % (8 * i))
        a("s_nop 1")


def allreduce64(a, op, v, t):
    for ctl in ("quad_perm:[1,0,3,2]", "quad_perm:[2,3,0,1]", "row_half_mirror", "row_mirror"):
        a("s_nop 1")
        a("%s_dpp %s, %s, %s %s row_mask:0xf bank_mask:0xf" % (op, vr(v), vr(v), vr(v), ctl))
    for sw in ("v_permlane16_swap_b32", "v_permlane32_swap_b32"):
        a("v_mov_b32 %s, %s" % (vr(t), vr(v)))
        a("s_nop 1")
        a("%s %s, %s" % (sw, vr(v), vr(t)))
        a("s_nop 1")
        a("%s %s, %s, %s" % (op, vr(v), vr(v), vr(t)))


def gen_ln(a):
    L = "ln_kernel"
    kernel_head(a, L)
    a("s_cmp_ge_u32 s2, 512")
    a("s_cbranch_scc1 ln_done")
    a("s_load_dwordx2 s[4:5], s[0:1], %d" % KA_X)
    a("s_load_dwordx2 s[6:7], s[0:1], %d" % KA_WS)
    a("s_load_dwordx2 s[20:21], s[0:1], %d" % KA_WQKV)
    a("s_load_dwordx2 s[22:23], s[0:1], %d" % KA_W1)
    a("v_lshrrev_b32 v1, 6, v0")
    a("v_and_b32 v2, 63, v0")
    a("s_lshl_b32 s3, s2, 2")
    a("v_add_u32 v1, s3, v1")
    a("v_lshlrev_b32 v3, 12, v1")
    a("v_lshl_add_u32 v3, v2, 6, v3")
    a("v_lshlrev_b32 v1, 11, v1")
    a("v_lshl_add_u32 v1, v2, 4, v1")
    a("s_waitcnt lgkmcnt(0)")
    srd(a, 8, 4, 0, SZ_XN)
    srd(a, 12, 6, WS_XN, SZ_XN)
    a("buffer_load_dwordx4 v[4:7], v1, s[8:11], 0 offen")
    a("buffer_load_dwordx4 v[8:11], v1, s[8:11], 0 offen offset:1024")
    if "NOPF" not in FLAGS:
        srd(a, 24, 20, 0, PF_ROWS * 3 * D * 2)
        srd(a, 28, 22, 0, PF_ROWS * F * 2)
        a("buffer_load_dword v39, v3, s[24:27], 0 offen")
        a("buffer_load_dword v39, v3, s[28:31], 0 offen")
    a("s_cmp_ge_u32 s2, 16")
    a("s_cbranch_scc1 ln_nz")
    srd(a, 16, 6, WS_FL, SZ_FL)
    a("s_lshl_b32 s3, s2, 12")
    a("v_lshl_add_u32 v12, v0, 4, s3")
    for i in range(4):
        a("v_mov_b32 v%d, 0" % (16 + i))
    a("buffer_store_dwordx4 v[16:19], v12, s[16:19], 0 offen")
    a("s_waitcnt vmcnt(3)")
    a.label("ln_nz")
    a("s_waitcnt vmcnt(%d)" % (0 if "NOPF" in FLAGS else 2))
    for i in range(8):
        a("v_lshlrev_b32 v%d, 16, v%d" % (16 + 2 * i, 4 + i))
        a("v_and_b32 v%d, 0xffff0000, v%d" % (17 + 2 * i, 4 + i))
    a("v_add_f32 v32, v16, v17")
    for i in range(2, 16):
        a("v_add_f32 v32, v32, v%d" % (16 + i))
    allreduce64(a, "v_add_f32", 32, 33)
    a("v_mul_f32 v32, 0x3a800000, v32")
    a("v_sub_f32 v34, v16, v32")
    a("v_mul_f32 v35, v34, v34")
    for i in range(1, 16):
        a("v_sub_f32 v34, v%d, v32" % (16 + i))
        a("v_fmac_f32 v35, v34, v34")
    allreduce64(a, "v_add_f32", 35, 33)
    a("v_mul_f32 v35, 0x3a800000, v35")
    a("v_cvt_pk_bf16_f32 v36, v32, v35")
    a("v_lshlrev_b32 v32, 16, v36")
    a("v_and_b32 v35, 0xffff0000, v36")
    a("v_add_f32 v35, 0x3727c5ac, v35")
    a("v_cvt_pk_bf16_f32 v36, v35, v35")
    a("v_lshlrev_b32 v35, 16, v36")
    a("v_sqrt_f32 v35, v35")
    a("s_nop 0")
    a("v_cvt_pk_bf16_f32 v36, v35, v35")
    a("v_lshlrev_b32 v35, 16, v36")
    a("v_rcp_f32 v35, v35")
    a("s_nop 0")
    for i in range(8):
        a("v_sub_f32 v%d, v%d, v32" % (16 + 2 * i, 16 + 2 * i))
        a("v_sub_f32 v%d, v%d, v32" % (17 + 2 * i, 17 + 2 * i))
        a("v_cvt_pk_bf16_f32 v36, v%d, v%d" % (16 + 2 * i, 17 + 2 * i))
        a("v_lshlrev_b32 v37, 16, v36")
        a("v_and_b32 v38, 0xffff0000, v36")
        a("v_mul_f32 v37, v37, v35")
        a("v_mul_f32 v38, v38, v35")
        a("v_cvt_pk_bf16_f32 v%d, v37, v38" % (4 + i))
    a("buffer_store_dwordx4 v[4:7], v1, s[12:15], 0 offen%s" % ST2)
    a("buffer_store_dwordx4 v[8:11], v1, s[12:15], 0 offen offset:1024%s" % ST2)
    a.label("ln_done")
    a("s_endpgm")
    return L, 40


def interleave(a, mfmas, fillers):
    n = len(mfmas)
    nf = len(fillers)
    fi = 0
    for i, m in enumerate(mfmas):
        a(m)
        want = ((i + 1) * nf + n - 1) // n if nf <= n else ((i + 1) * nf) // n
        want = min(nf, max(want, min(nf, i + 1)))
        while fi < want:
            for x in fillers[fi]:
                a(x)
            fi += 1
    while fi < nf:
        for x in fillers[fi]:
            a(x)
        fi += 1


def place(a, mfmas, slots):
    for i, m in enumerate(mfmas):
        a(m)
        for grp in slots.get(i, []):
            for x in grp:
                a(x)


class Gemm:
    def __init__(self, a, MT, NT, acc, fragA, fragB, vA, vB, voffA, voffB,
                 orient, sM0, sOffA, sOffB, srdA, srdB, stepA, stepB):
        self.__dict__.update(locals())

    def mfmas(self, st):
        out = []
        for mt in range(self.MT):
            for nt in range(self.NT):
                c = self.acc + (mt * self.NT + nt) * 4
                fa = self.fragA[st] + mt * 4
                fb = self.fragB[st] + nt * 4
                x, y = (fb, fa) if self.orient(nt) else (fa, fb)
                out.append("v_mfma_f32_16x16x32_bf16 %s, %s, %s, %s" % (vr(c, 4), vr(x, 4), vr(y, 4), vr(c, 4)))
        return out

    def reads(self, st, buf):
        out = []
        for mt in range(self.MT):
            out.append(["ds_read_b128 %s, %s offset:%d" % (vr(self.fragA[st] + mt * 4, 4), vr(self.vA), buf * 16384 + mt * 1024)])
        for nt in range(self.NT):
            for rd in range(2):
                out.append(["ds_read_b64_tr_b16 %s, %s offset:%d" % (vr(self.fragB[st] + nt * 4 + rd * 2, 2), vr(self.vB[nt]), buf * 16384 + rd * 2048)])
        return out

    def dmas(self, buf):
        out = []
        for j in range(2):
            out.append(["s_add_u32 m0, s%d, %d" % (self.sM0, buf * 16384 + j * 1024),
                        "s_nop 0",
                        "buffer_load_dwordx4 %s, %s, s%d offen lds" % (vr(self.voffA + j), sr(self.srdA, 4), self.sOffA)])
        for j in range(2):
            out.append(["s_add_u32 m0, s%d, %d" % (self.sM0, 65536 + buf * 16384 + j * 1024),
                        "s_nop 0",
                        "buffer_load_dwordx4 %s, %s, s%d offen lds" % (vr(self.voffB + j), sr(self.srdB, 4), self.sOffB)])
        out.append(["s_add_u32 s%d, s%d, %d" % (self.sOffA, self.sOffA, self.stepA),
                    "s_add_u32 s%d, s%d, %d" % (self.sOffB, self.sOffB, self.stepB)])
        return out

    def pf(self):
        return ["buffer_load_dword v30, v31, s[40:43], s19 offen",
                "s_add_u32 s19, s19, 0x%x" % (PF_LANES * 64 * 1024)]

    def iteration(self, i, dma, nxt, vm):
        a = self.a
        mf = self.mfmas(i & 1)
        n = len(mf)
        dpos = [1 + (j * (n - 2)) // 4 for j in range(4)]
        slots = {}
        if dma and "NODMA" not in FLAGS:
            d = self.dmas(i % 4)
            for j in range(4):
                slots.setdefault(dpos[j], []).append(d[j])
            slots.setdefault(dpos[3], []).append(d[4])
            slots.setdefault(dpos[3] + 1, []).append(self.pf())
        if nxt:
            r = self.reads((i + 1) & 1, (i + 1) % 4)
            pos = [p for p in range(n) if p not in dpos][:len(r)]
            for p, x in zip(pos, r):
                slots.setdefault(p, []).append(x)
        place(a, mf, slots)
        if nxt:
            if vm is None:
                a("s_waitcnt lgkmcnt(0)")
            else:
                a("s_waitcnt vmcnt(%d) lgkmcnt(0)" % vm)
            a("s_barrier")

    def run(self, nstages, tag, sCnt, late=None, nlate=0):
        a = self.a
        a("s_lshl_b32 s28, s23, 4")
        a("s_add_u32 s28, s28, s25")
        a("s_lshl_b32 s28, s28, 3")
        a("s_add_u32 s28, s28, s20")
        a("s_mul_i32 s28, s28, %d" % (PF_LANES * 64))
        a("v_lshl_add_u32 v31, v1, 6, s28")
        a("v_cmp_gt_u32 vcc, %d, v1" % PF_LANES)
        a("v_mov_b32 v29, 0x7f000000")
        a("s_nop 0")
        a("v_cndmask_b32 v31, v29, v31, vcc")
        a("s_mov_b32 s19, 0x%x" % (PF_ROWS * (self.stepB // 32)))
        for i in range(4):
            a("s_mov_b32 s%d, s%d" % (40 + i, self.srdB + i))
        for st in range(4):
            for f in self.dmas(st):
                for x in f:
                    a(x)
            if st >= 2:
                for x in self.pf():
                    a(x)
        for i in range(self.MT * self.NT * 4):
            a("v_mov_b32 v%d, 0" % (self.acc + i))
        stamp(a, 1)
        a("s_waitcnt vmcnt(14)")
        a("s_barrier")
        stamp(a, 2)
        for f in self.reads(0, 0):
            for x in f:
                a(x)
        a("s_waitcnt vmcnt(10) lgkmcnt(0)")
        a("s_barrier")
        a("s_mov_b32 s%d, %d" % (sCnt, (nstages - 4) // 4))
        a.label(tag + "_loop")
        for i in range(4):
            self.iteration(i, True, True, 11)
        a("s_sub_u32 s%d, s%d, 1" % (sCnt, sCnt))
        a("s_cmp_lg_u32 s%d, 0" % sCnt)
        a("s_cbranch_scc1 %s_loop" % tag)
        if late:
            late()
        self.iteration(0, False, True, 6 + nlate)
        self.iteration(1, False, True, 1 + nlate)
        self.iteration(2, False, True, None)
        self.iteration(3, False, False, None)
        stamp(a, 3)
        a("s_lshl_b32 s28, s2, 3")
        a("s_add_u32 s28, s28, s20")
        a("s_lshl_b32 s28, s28, 12")
        a("v_lshl_add_u32 v31, v1, 6, s28")
        srd(a, 40, 48, 0, F * D * 2)
        a("buffer_load_dword v30, v31, s[40:43], 0 offen")
        srd(a, 40, 44, 0, D * D * 2)
        a("buffer_load_dword v30, v31, s[40:43], 0 offen")
        a("s_waitcnt vmcnt(2)")


G1_ACC = 128
G1_FA = (32, 76)
G1_FB = (48, 92)
G1_VOA, G1_VOB = 8, 12
G1_VA = 16
G1_VB = (18, 19, 20, 21, 22, 23, 24)
G1_X = 240


def g1_common_addr(a):
    a("v_and_b32 v1, 63, v0")
    a("v_lshrrev_b32 v2, 6, v0")
    a("s_nop 0")
    a("v_readfirstlane_b32 s20, v2")
    a("v_and_b32 v3, 15, v1")
    a("v_lshrrev_b32 v4, 4, v1")


def gen_gemm1(a):
    L = "gemm1_kernel"
    kernel_head(a, L)
    a("s_cmp_ge_u32 s2, 256")
    a("s_cbranch_scc1 g1_done")
    stamp(a, 0)
    stamp_rt(a, 6)
    a("s_load_dwordx2 s[4:5], s[0:1], %d" % KA_WS)
    a("s_load_dwordx2 s[6:7], s[0:1], %d" % KA_WQKV)
    a("s_load_dwordx2 s[30:31], s[0:1], %d" % KA_W1)
    a("s_load_dwordx2 s[32:33], s[0:1], %d" % KA_WPHI)
    a("s_load_dwordx2 s[34:35], s[0:1], %d" % KA_B1)
    a("s_load_dwordx2 s[44:45], s[0:1], %d" % KA_WO)
    a("s_load_dwordx2 s[48:49], s[0:1], %d" % KA_W2)
    g1_common_addr(a)
    a("s_and_b32 s21, s2, 7")
    a("s_lshr_b32 s22, s2, 3")
    a("s_and_b32 s23, s21, 1")
    a("s_lshl_b32 s23, s23, 2")
    a("s_and_b32 s24, s22, 3")
    a("s_add_u32 s23, s23, s24")
    a("s_lshr_b32 s24, s22, 2")
    a("s_lshr_b32 s25, s21, 1")
    a("s_lshl_b32 s25, s25, 2")
    a("s_and_b32 s26, s24, 3")
    a("s_add_u32 s25, s25, s26")
    a("s_lshr_b32 s21, s20, 1")
    a("s_and_b32 s22, s20, 1")
    a("s_lshl_b32 s27, s20, 11")
    a("v_lshrrev_b32 v5, 2, v1")
    a("s_lshl_b32 s28, s23, 8")
    a("s_lshl_b32 s29, s20, 5")
    a("s_add_u32 s28, s28, s29")
    a("v_add_u32 v5, s28, v5")
    a("v_lshlrev_b32 v5, 11, v5")
    a("v_lshrrev_b32 v6, 1, v4")
    a("v_xor_b32 v7, v6, v4")
    a("v_and_b32 v7, 1, v7")
    a("v_lshl_or_b32 v6, v7, 1, v6")
    a("v_and_b32 v7, 3, v1")
    a("v_xor_b32 v7, v7, v6")
    a("v_lshl_add_u32 v%d, v7, 4, v5" % G1_VOA)
    a("v_add_u32 v%d, %d, v%d" % (G1_VOA + 1, 16 * 2048, G1_VOA))
    a("v_bfe_u32 v5, v1, 2, 2")
    a("v_lshrrev_b32 v6, 1, v5")
    a("v_xor_b32 v7, v6, v5")
    a("v_and_b32 v7, 1, v7")
    a("v_lshl_or_b32 v6, v7, 1, v6")
    a("v_xor_b32 v5, v6, v4")
    a("s_lshl_b32 s28, s21, 6")
    a("v_add_u32 v6, s28, v3")
    a("v_lshlrev_b32 v6, 6, v6")
    a("v_lshl_add_u32 v%d, v5, 4, v6" % G1_VA)
    a("v_bfe_u32 v5, v1, 2, 2")
    a("v_and_b32 v6, 1, v4")
    a("v_lshl_or_b32 v6, v6, 2, v5")
    a("v_lshl_add_u32 v5, v4, 3, v5")
    a("v_lshlrev_b32 v5, 9, v5")
    a("v_and_b32 v7, 3, v1")
    a("v_lshl_add_u32 v5, v7, 3, v5")
    a("v_add_u32 v5, 0x10000, v5")
    a("s_waitcnt lgkmcnt(0)")
    srd(a, 8, 4, WS_XN, SZ_XN)
    a("s_mov_b32 s16, 0")
    a("s_mov_b32 s17, 0")
    a("s_cmp_ge_u32 s24, 4")
    a("s_cbranch_scc1 g1_w1")

    def b_dma_rows(a, j):
        a("v_lshrrev_b32 v25, 5, v1")
        a("v_add_u32 v25, %d, v25" % (2 * j))
        a("s_bfe_u32 s28, s20, 0x10001")
        a("s_lshl_b32 s28, s28, 2")
        a("v_or_b32 v26, s28, v25")
        a("v_lshlrev_b32 v26, 1, v26")
        a("v_and_b32 v27, 31, v1")
        a("v_xor_b32 v26, v26, v27")
        a("s_lshl_b32 s28, s20, 2")
        a("v_add_u32 v25, s28, v25")

    NT = 6
    for tt in range(NT):
        a("s_mul_i32 s28, s22, %d" % NT)
        a("s_add_u32 s28, s28, %d" % tt)
        a("v_xor_b32 v7, s28, v6")
        a("v_lshl_add_u32 v%d, v7, 5, v5" % G1_VB[tt])
    srd(a, 12, 6, 0, D * 3 * D * 2)
    for j in range(2):
        b_dma_rows(a, j)
        a("v_lshrrev_b32 v27, 2, v26")
        a("v_cmp_le_u32 vcc, 3, v27")
        a("s_nop 1")
        a("v_cndmask_b32 v28, 0, 1, vcc")
        a("v_mul_u32_u24 v29, 3, v28")
        a("v_sub_u32 v29, v27, v29")
        a("s_lshl_b32 s28, s25, 1")
        a("v_add_u32 v28, s28, v28")
        a("v_lshlrev_b32 v28, 6, v28")
        a("v_lshl_add_u32 v28, v29, 11, v28")
        a("v_and_b32 v29, 3, v26")
        a("v_lshl_add_u32 v28, v29, 4, v28")
        a("s_movk_i32 s28, 6144")
        a("v_mul_lo_u32 v29, v25, s28")
        a("v_add_u32 v28, v28, v29")
        a("v_cmp_gt_u32 vcc, 6, v27")
        a("v_mov_b32 v29, 0x7f000000")
        a("s_nop 0")
        a("v_cndmask_b32 v%d, v29, v28, vcc" % (G1_VOB + j))
    def late_q():
        srd(a, 36, 32, 0, H * DH * DH * 2)
        a("s_lshl_b32 s28, s25, 1")
        a("s_add_u32 s28, s28, s22")
        a("s_lshl_b32 s28, s28, 11")
        a("v_lshlrev_b32 v25, 8, v4")
        a("v_lshl_add_u32 v25, v3, 1, v25")
        a("v_add_u32 v25, s28, v25")
        for ft in range(2):
            for j in range(8):
                d = (j & 3) + (16 if j >= 4 else 0)
                a("buffer_load_ushort v%d, v25, s[36:39], 0 offen offset:%d" % (224 + ft * 8 + j, d * 64 + ft * 32))
    g = Gemm(a, 4, NT, G1_ACC, G1_FA, G1_FB, G1_VA, G1_VB, G1_VOA, G1_VOB,
             lambda nt: nt < 4, 27, 16, 17, 8, 12, 64, 32 * 6144)
    g.run(32, "g1q", 18, late_q, 16)
    if "NOEPI" not in FLAGS:
        g1_qkv_epilogue(a)
    a("s_branch g1_fin")

    a.label("g1_w1")
    NT = 7
    for tt in range(NT):
        a("s_mul_i32 s28, s22, %d" % NT)
        a("s_add_u32 s28, s28, %d" % tt)
        a("v_xor_b32 v7, s28, v6")
        a("v_lshl_add_u32 v%d, v7, 5, v5" % G1_VB[tt])
    srd(a, 12, 30, 0, D * F * 2)
    for j in range(2):
        b_dma_rows(a, j)
        a("s_mul_i32 s28, s25, 448")
        a("v_lshlrev_b32 v28, 4, v26")
        a("v_add_u32 v28, s28, v28")
        a("s_movk_i32 s28, 7168")
        a("v_mul_lo_u32 v29, v25, s28")
        a("v_add_u32 v28, v28, v29")
        a("v_cmp_gt_u32 vcc, 28, v26")
        a("v_mov_b32 v29, 0x7f000000")
        a("s_nop 0")
        a("v_cndmask_b32 v%d, v29, v28, vcc" % (G1_VOB + j))
    def late_w():
        srd(a, 36, 34, 0, F * 2)
        a("s_mul_i32 s28, s25, 448")
        a("s_mul_i32 s29, s22, 224")
        a("s_add_u32 s28, s28, s29")
        a("v_lshlrev_b32 v25, 3, v4")
        a("v_add_u32 v25, s28, v25")
        for tt in range(NT):
            a("buffer_load_dwordx2 %s, v25, s[36:39], 0 offen offset:%d" % (vr(G1_X + 2 * tt, 2), tt * 32))
    g = Gemm(a, 4, NT, G1_ACC, G1_FA, G1_FB, G1_VA, G1_VB, G1_VOA, G1_VOB,
             lambda nt: True, 27, 16, 17, 8, 12, 64, 32 * 7168)
    g.run(32, "g1w", 18, late_w, 7)
    if "NOEPI" not in FLAGS:
        g1_w1_epilogue(a)
    a.label("g1_fin")
    if "STAMP" in FLAGS:
        a("s_waitcnt vmcnt(0)")
    stamp(a, 4)
    stamp_rt(a, 5)
    stamp_flush(a, 12, 0)
    a.label("g1_done")
    a("s_endpgm")
    return L, 256


def f32bits(x):
    import struct
    return struct.unpack("<I", struct.pack("<f", x))[0]


def g1_w1_epilogue(a):
    NT = 7
    RS = 240
    srd(a, 40, 4, WS_HC, SZ_HC)
    for tt in range(NT):
        for p in range(2):
            a("v_lshlrev_b32 v%d, 16, v%d" % (32 + tt * 4 + 2 * p, G1_X + 2 * tt + p))
            a("v_and_b32 v%d, 0xffff0000, v%d" % (33 + tt * 4 + 2 * p, G1_X + 2 * tt + p))
    a("s_mul_i32 s28, s20, %d" % (64 * RS))
    a("s_movk_i32 s29, %d" % RS)
    a("v_mul_lo_u32 v6, v3, s29")
    a("v_lshl_add_u32 v6, v4, 3, v6")
    a("v_add_u32 v6, s28, v6")
    a("v_subrev_u32 v7, 56, v1")
    a("v_cmp_gt_u32 vcc, 56, v1")
    a("s_nop 1")
    a("v_cndmask_b32 v7, v7, v1, vcc")
    a("v_mul_u32_u24 v8, 0x4a, v7")
    a("v_lshrrev_b32 v8, 10, v8")
    a("v_mul_u32_u24 v9, 14, v8")
    a("v_sub_u32 v9, v7, v9")
    a("v_mul_lo_u32 v7, v8, s29")
    a("v_lshl_add_u32 v7, v9, 4, v7")
    a("v_add_u32 v7, s28, v7")
    a("s_lshl_b32 s28, s23, 8")
    a("s_lshl_b32 s29, s21, 6")
    a("s_add_u32 s28, s28, s29")
    a("v_add_u32 v5, s28, v8")
    a("s_movk_i32 s28, 9216")
    a("v_mul_lo_u32 v5, v5, s28")
    a("s_mul_i32 s28, s25, 448")
    a("s_mul_i32 s29, s22, 224")
    a("s_add_u32 s28, s28, s29")
    a("v_lshl_add_u32 v9, v9, 4, s28")
    a("v_add_u32 v5, v5, v9")
    k0 = -2.0 * 0.7978845608028654 * 1.4426950408889634
    k1 = k0 * 0.044715
    a("s_mov_b32 s44, 0x%08x" % f32bits(k1))
    a("s_mov_b32 s45, 0x%08x" % f32bits(k1))
    a("s_mov_b32 s46, 1.0")
    a("s_mov_b32 s47, 1.0")
    a("v_mov_b32 v8, 0x%08x" % f32bits(k0))
    a("v_mov_b32 v9, 0x%08x" % f32bits(k0))
    a("s_barrier")

    def flush(mt):
        for j in range(4):
            a("ds_read_b128 %s, v7 offset:%d" % (vr(96 + j * 4, 4), (mt * 16 + j * 4) * RS))
        for j in range(4):
            a("s_waitcnt lgkmcnt(%d)" % (3 - j))
            a("s_mov_b32 s28, 0x%x" % ((mt * 16 + j * 4) * 9216))
            a("buffer_store_dwordx4 %s, v5, s[40:43], s28 offen%s" % (vr(96 + j * 4, 4), ST))

    for mt in range(4):
        for tt in range(NT):
            c = G1_ACC + (mt * NT + tt) * 4
            T = 64 + ((mt * NT + tt) & 1) * 16
            for p in range(2):
                a("v_pk_add_f32 %s, %s, %s" % (vr(T + 2 * p, 2), vr(c + 2 * p, 2), vr(32 + tt * 4 + 2 * p, 2)))
            for p in range(2):
                a("v_pk_mul_f32 %s, %s, %s" % (vr(T + 4 + 2 * p, 2), vr(T + 2 * p, 2), vr(T + 2 * p, 2)))
            for p in range(2):
                a("v_pk_fma_f32 %s, %s, s[44:45], v[8:9]" % (vr(T + 4 + 2 * p, 2), vr(T + 4 + 2 * p, 2)))
            for p in range(2):
                a("v_pk_mul_f32 %s, %s, %s" % (vr(T + 4 + 2 * p, 2), vr(T + 4 + 2 * p, 2), vr(T + 2 * p, 2)))
            for r in range(4):
                a("v_exp_f32 v%d, v%d" % (T + 4 + r, T + 4 + r))
            a("s_nop 0")
            for p in range(2):
                a("v_pk_add_f32 %s, %s, s[46:47]" % (vr(T + 4 + 2 * p, 2), vr(T + 4 + 2 * p, 2)))
            for r in range(4):
                a("v_rcp_f32 v%d, v%d" % (T + 4 + r, T + 4 + r))
            a("s_nop 0")
            for p in range(2):
                a("v_pk_mul_f32 %s, %s, %s" % (vr(T + 4 + 2 * p, 2), vr(T + 4 + 2 * p, 2), vr(T + 2 * p, 2)))
            a("v_cvt_pk_bf16_f32 v%d, v%d, v%d" % (T + 8, T + 4, T + 5))
            a("v_cvt_pk_bf16_f32 v%d, v%d, v%d" % (T + 9, T + 6, T + 7))
            a("ds_write_b64 v6, %s offset:%d" % (vr(T + 8, 2), mt * 16 * RS + tt * 32))
            if tt == 2 and mt > 0:
                flush(mt - 1)
        a("s_waitcnt lgkmcnt(0)")
    flush(3)


def bf16_round_pair(a, x0, x1, t):
    a("v_cvt_pk_bf16_f32 v%d, v%d, v%d" % (t, x0, x1))
    a("v_lshlrev_b32 v%d, 16, v%d" % (x0, t))
    a("v_and_b32 v%d, 0xffff0000, v%d" % (x1, t))


def xlane_g(a, op, regs, temps):
    for sw in ("v_permlane16_swap_b32", "v_permlane32_swap_b32"):
        for v, t in zip(regs, temps):
            a("v_mov_b32 v%d, v%d" % (t, v))
        a("s_nop 1")
        for v, t in zip(regs, temps):
            a("%s v%d, v%d" % (sw, v, t))
        a("s_nop 1")
        for (v, t), o in zip(zip(regs, temps), op):
            a("%s v%d, v%d, v%d" % (o, v, v, t))


def dpp16(a, ops, regs):
    for ctl in ("quad_perm:[1,0,3,2]", "quad_perm:[2,3,0,1]", "row_half_mirror", "row_mirror"):
        if len(regs) < 3:
            a("s_nop 1")
        for v, o in zip(regs, ops):
            a("%s_dpp v%d, v%d, v%d %s row_mask:0xf bank_mask:0xf" % (o, v, v, v, ctl))


def g1_softmax_batch(a, acc, WP, tt0):
    E = lambda mt: 32 + mt * 16
    FR = lambda mt: 96 + mt * 4
    MX = lambda mt: 112 + 2 * mt
    MN = lambda mt: 120 + 2 * mt
    P = lambda mt: acc(mt, tt0)
    R = range(4)
    for mt in R:
        for i in range(4):
            a("v_cvt_pk_bf16_f32 v%d, v%d, v%d" % (FR(mt) + i, P(mt) + 2 * i, P(mt) + 2 * i + 1))
    a("s_nop 1")
    for mt in R:
        for ft in range(2):
            a("v_mfma_f32_16x16x32_bf16 %s, %s, %s, 0" % (vr(P(mt) + ft * 4, 4), vr(WP[ft], 4), vr(FR(mt), 4)))
    a("s_nop 7")
    for mt in R:
        for i in range(4):
            a("v_cvt_pk_bf16_f32 v%d, v%d, v%d" % (E(mt) + i, P(mt) + 2 * i, P(mt) + 2 * i + 1))
    for mt in R:
        for i in range(4):
            a("v_lshlrev_b32 v%d, 16, v%d" % (P(mt) + 2 * i, E(mt) + i))
            a("v_and_b32 v%d, 0xffff0000, v%d" % (P(mt) + 2 * i + 1, E(mt) + i))
    for op3, op2, M in (("v_max3_f32", "v_max_f32", MX), ("v_min3_f32", "v_min_f32", MN)):
        for mt in R:
            a("%s v%d, v%d, v%d, v%d" % (op3, M(mt), P(mt), P(mt) + 1, P(mt) + 2))
        for mt in R:
            a("%s v%d, v%d, v%d, v%d" % (op3, M(mt), M(mt), P(mt) + 3, P(mt) + 4))
        for mt in R:
            a("%s v%d, v%d, v%d, v%d" % (op3, M(mt), M(mt), P(mt) + 5, P(mt) + 6))
        for mt in R:
            a("%s v%d, v%d, v%d" % (op2, M(mt), M(mt), P(mt) + 7))

    def xl(opx, opn):
        regs = [(MX(mt), opx) for mt in R] + [(MN(mt), opn) for mt in R]
        for sw in ("v_permlane16_swap_b32", "v_permlane32_swap_b32"):
            for v, o in regs:
                a("v_mov_b32 v%d, v%d" % (v + 1, v))
            a("s_nop 0")
            for v, o in regs:
                a("%s v%d, v%d" % (sw, v, v + 1))
            a("s_nop 0")
            for v, o in regs:
                a("%s v%d, v%d, v%d" % (o, v, v, v + 1))
    xl("v_max_f32", "v_min_f32")
    for mt in R:
        a("v_mul_f32 v%d, s48, v%d" % (MX(mt), MX(mt)))
        a("v_mul_f32 v%d, s48, v%d" % (MN(mt), MN(mt)))
    for mt in R:
        for i in range(4):
            a("v_pk_fma_f32 %s, %s, s[48:49], %s op_sel_hi:[1,1,0] neg_lo:[0,0,1] neg_hi:[0,0,1]" % (
                vr(E(mt) + 2 * i, 2), vr(P(mt) + 2 * i, 2), vr(MX(mt), 2)))
            a("v_pk_fma_f32 %s, %s, s[48:49], %s op_sel_hi:[1,1,0] neg_lo:[1,0,0] neg_hi:[1,0,0]" % (
                vr(E(mt) + 8 + 2 * i, 2), vr(P(mt) + 2 * i, 2), vr(MN(mt), 2)))
    for mt in R:
        for i in range(16):
            a("v_exp_f32 v%d, v%d" % (E(mt) + i, E(mt) + i))
    a("s_nop 0")
    for M, o in ((MX, 0), (MN, 8)):
        for mt in R:
            a("v_pk_add_f32 %s, %s, %s" % (vr(M(mt), 2), vr(E(mt) + o, 2), vr(E(mt) + o + 2, 2)))
        for mt in R:
            a("v_pk_add_f32 %s, %s, %s" % (vr(M(mt), 2), vr(M(mt), 2), vr(E(mt) + o + 4, 2)))
        for mt in R:
            a("v_pk_add_f32 %s, %s, %s" % (vr(M(mt), 2), vr(M(mt), 2), vr(E(mt) + o + 6, 2)))
        for mt in R:
            a("v_add_f32 v%d, v%d, v%d" % (M(mt), M(mt), M(mt) + 1))
    xl("v_add_f32", "v_add_f32")
    for mt in R:
        a("v_rcp_f32 v%d, v%d" % (MX(mt), MX(mt)))
        a("v_rcp_f32 v%d, v%d" % (MN(mt), MN(mt)))
    a("s_nop 0")
    for mt in R:
        for i in range(4):
            a("v_pk_mul_f32 %s, %s, %s op_sel_hi:[1,0]" % (vr(E(mt) + 2 * i, 2), vr(E(mt) + 2 * i, 2), vr(MX(mt), 2)))
            a("v_pk_mul_f32 %s, %s, %s op_sel_hi:[1,0]" % (vr(E(mt) + 8 + 2 * i, 2), vr(E(mt) + 8 + 2 * i, 2), vr(MN(mt), 2)))
    for mt in R:
        for i in range(8):
            a("v_cvt_pk_bf16_f32 v%d, v%d, v%d" % (P(mt) + i, E(mt) + 2 * i, E(mt) + 2 * i + 1))


def g1_qkv_epilogue(a):
    NT = 6
    WP = (G1_X, G1_X + 4)
    KS = 160
    SH = 98304

    def acc(mt, tt):
        return G1_ACC + (mt * NT + tt) * 4

    srd(a, 40, 4, WS_PQ, SZ_PQ)
    srd(a, 44, 4, WS_KV, SZ_KV)
    a("s_mov_b32 s48, 0x%08x" % LOG2E)
    a("s_mov_b32 s49, 0x%08x" % LOG2E)
    a("s_mul_i32 s50, s20, 12288")
    for i in range(8):
        a("v_lshl_or_b32 v%d, v%d, 16, v%d" % (G1_X + i, 224 + 2 * i + 1, 224 + 2 * i))
    a("s_movk_i32 s28, %d" % KS)
    a("v_mul_lo_u32 v5, v3, s28")
    a("v_lshl_add_u32 v5, v4, 3, v5")
    a("v_add_u32 v5, s50, v5")
    a("v_bfe_u32 v6, v1, 2, 2")
    a("v_lshl_add_u32 v6, v4, 2, v6")
    a("v_mul_lo_u32 v6, v6, s28")
    a("v_and_b32 v7, 3, v1")
    a("v_lshl_add_u32 v6, v7, 3, v6")
    a("v_add_u32 v6, s50, v6")
    a("v_lshlrev_b32 v7, 4, v1")
    a("s_barrier")
    g1_softmax_batch(a, acc, WP, 2)
    stamp(a, 7)
    for mt in range(4):
        for q in range(4):
            a("ds_write_b64 v5, %s offset:%d" % (vr(acc(mt, 2) + 2 * q, 2), mt * 16 * KS + q * 32))
    KV, AF, BF, ONE = 64, 32, 112, 16
    for u in range(2):
        for dt in range(2):
            for hf in range(2):
                for p in range(2):
                    c = acc(2 * u + hf, 4 + dt) + 2 * p
                    a("v_cvt_pk_bf16_f32 v%d, v%d, v%d" % (BF + (u * 2 + dt) * 4 + hf * 2 + p, c, c + 1))
    for i in range(4):
        a("v_mov_b32 v%d, 0x3f803f80" % (ONE + i))
    a("s_waitcnt lgkmcnt(0)")
    for u in range(2):
        for fq in range(4):
            for hf in range(2):
                a("ds_read_b64_tr_b16 %s, v6 offset:%d" % (vr(AF + (u * 4 + fq) * 4 + hf * 2, 2), (2 * u + hf) * 16 * KS + fq * 32))
    a("s_waitcnt lgkmcnt(8)")
    for u in range(2):
        if u == 1:
            a("s_waitcnt lgkmcnt(0)")
        for fq in range(4):
            for t in range(3):
                c = KV + (fq * 2 + t) * 4 if t < 2 else KV + (8 + fq) * 4
                b = BF + (u * 2 + t) * 4 if t < 2 else ONE
                a("v_mfma_f32_16x16x32_bf16 %s, %s, %s, %s" % (vr(c, 4), vr(AF + (u * 4 + fq) * 4, 4), vr(b, 4), vr(c, 4) if u else "0"))
    a("v_add_u32 v8, s50, v7")
    a("s_nop 7")
    for t in range(12):
        a("ds_write_b128 v8, %s offset:%d" % (vr(KV + t * 4, 4), t * 1024))
    a("s_lshr_b32 s28, s20, 2")
    a("s_mul_i32 s28, s28, 12288")
    a("s_and_b32 s29, s20, 3")
    a("s_mul_i32 s29, s29, 3072")
    a("s_add_u32 s28, s28, s29")
    a("v_add_u32 v8, s28, v7")
    a("v_add_u32 v9, 0xc000, v8")
    a("s_lshl_b32 s28, s25, 3")
    a("s_add_u32 s28, s28, s23")
    a("s_mul_i32 s28, s28, 24")
    a("s_mul_i32 s29, s20, 3")
    a("s_add_u32 s28, s28, s29")
    a("s_lshl_b32 s28, s28, 10")
    a("v_add_u32 v10, s28, v7")
    a("s_waitcnt lgkmcnt(0)")
    a("s_barrier")
    for wm in range(4):
        for i in range(3):
            a("ds_read_b128 %s, %s offset:%d" % (vr(32 + (wm * 3 + i) * 4, 4), "v9" if wm >= 2 else "v8", (wm & 1) * 24576 + i * 1024))
    a("s_waitcnt lgkmcnt(0)")
    for wm in range(1, 4):
        for i in range(6):
            a("v_pk_add_f32 %s, %s, %s" % (vr(32 + 2 * i, 2), vr(32 + 2 * i, 2), vr(32 + wm * 12 + 2 * i, 2)))
    for i in range(3):
        a("buffer_store_dwordx4 %s, v10, s[44:47], 0 offen offset:%d%s" % (vr(32 + i * 4, 4), i * 1024, ST))
    stamp(a, 8)
    a("s_nop 1")
    g1_softmax_batch(a, acc, WP, 0)
    stamp(a, 9)
    stamp(a, 10)
    stamp(a, 11)
    a("s_lshl_b32 s28, s25, 3")
    a("s_add_u32 s28, s28, s23")
    a("s_lshl_b32 s28, s28, 3")
    a("s_add_u32 s28, s28, s20")
    a("s_lshl_b32 s28, s28, 13")
    a("v_add_u32 v10, s28, v7")
    a("s_movk_i32 s29, 4096")
    for mt in range(4):
        for kk in range(2):
            q = mt * 2 + kk
            a("buffer_store_dwordx4 %s, v10, s[40:43], %s offen offset:%d%s" % (vr(acc(mt, 0) + kk * 4, 4), "s29" if q >= 4 else "0", (q % 4) * 1024, ST))


def g2_apply(a):
    SH = 98304

    def acc(mt, tt):
        return 128 + mt * 8

    a("s_and_b32 s57, s2, 15")
    a("s_lshr_b32 s58, s2, 4")
    a("s_lshr_b32 s59, s20, 1")
    a("s_and_b32 s38, s20, 1")
    srd(a, 48, 4, WS_PQ, SZ_PQ)
    srd(a, 52, 4, WS_KV, SZ_KV)
    a("s_mul_i32 s56, s20, 12288")
    a("v_lshlrev_b32 v7, 4, v1")
    a("s_lshl_b32 s28, s57, 3")
    a("s_add_u32 s28, s28, s58")
    a("s_lshl_b32 s28, s28, 3")
    a("s_add_u32 s28, s28, s20")
    a("s_lshl_b32 s28, s28, 13")
    a("v_add_u32 v10, s28, v7")
    a("s_movk_i32 s29, 4096")
    for q in range(8):
        a("buffer_load_dwordx4 %s, v10, s[48:51], %s offen offset:%d" % (vr(128 + q * 4, 4), "s29" if q >= 4 else "0", (q % 4) * 1024))
    a("s_mul_i32 s28, s57, %d" % (8 * 24))
    a("s_mul_i32 s29, s20, 3")
    a("s_add_u32 s28, s28, s29")
    a("s_lshl_b32 s28, s28, 10")
    a("v_add_u32 v10, s28, v7")
    for rb in range(8):
        a("s_mov_b32 s28, 0x%x" % (rb * 24576))
        for i in range(3):
            a("buffer_load_dwordx4 %s, v10, s[52:55], s28 offen offset:%d" % (vr(32 + (rb * 3 + i) * 4, 4), i * 1024))
    a("s_mul_i32 s28, s20, 1536")
    a("s_add_u32 s28, s28, %d" % SH)
    a("v_lshl_add_u32 v8, v1, 3, s28")
    a("s_mul_i32 s28, s38, 6144")
    a("s_add_u32 s28, s28, %d" % SH)
    a("v_lshl_add_u32 v9, v1, 3, s28")
    for rb in range(1, 8):
        a("s_waitcnt vmcnt(%d)" % ((7 - rb) * 3))
        for i in range(6):
            a("v_pk_add_f32 %s, %s, %s" % (vr(32 + 2 * i, 2), vr(32 + 2 * i, 2), vr(32 + rb * 12 + 2 * i, 2)))
    for i in range(6):
        a("v_cvt_pk_bf16_f32 v%d, v%d, v%d" % (16 + i, 32 + 2 * i, 33 + 2 * i))
    for i in range(3):
        a("ds_write_b64 v8, %s offset:%d" % (vr(16 + 2 * i, 2), i * 512))
    a("s_waitcnt lgkmcnt(0)")
    a("s_barrier")
    for t in range(3):
        for kk in range(2):
            for hf in range(2):
                fq = 2 * kk + hf
                tile = fq * 2 + t if t < 2 else 8 + fq
                a("ds_read_b64 %s, v9 offset:%d" % (vr(32 + (t * 2 + kk) * 4 + hf * 2, 2), tile * 512))
    a("s_movk_i32 s28, 80")
    a("v_mul_lo_u32 v5, v3, s28")
    a("v_lshl_add_u32 v5, v4, 3, v5")
    a("v_add_u32 v5, s56, v5")
    a("v_lshrrev_b32 v12, 2, v1")
    a("v_mul_lo_u32 v6, v12, s28")
    a("v_and_b32 v13, 3, v1")
    a("v_lshl_add_u32 v6, v13, 4, v6")
    a("v_add_u32 v6, s56, v6")
    a("s_lshl_b32 s28, s58, 8")
    a("s_lshl_b32 s29, s59, 6")
    a("s_add_u32 s28, s28, s29")
    a("v_add_u32 v12, s28, v12")
    a("s_movk_i32 s28, 9216")
    a("v_mul_lo_u32 v12, v12, s28")
    a("s_lshl_b32 s28, s57, 1")
    a("s_add_u32 s28, s28, s38")
    a("s_lshl_b32 s28, s28, 6")
    a("s_add_u32 s28, s28, 7168")
    a("v_lshl_add_u32 v13, v13, 4, s28")
    a("v_add_u32 v12, v12, v13")
    a("s_waitcnt lgkmcnt(0)")
    for kk in range(2):
        for mt in range(4):
            for t in range(3):
                c = 64 + (mt * 3 + t) * 4
                a("v_mfma_f32_16x16x32_bf16 %s, %s, %s, %s" % (vr(c, 4), vr(32 + (t * 2 + kk) * 4, 4), vr(acc(mt, 0) + kk * 4, 4), vr(c, 4) if kk else "0"))
    a("s_nop 7")
    R = range(4)
    for mt in R:
        a("v_cvt_pk_bf16_f32 v%d, v%d, v%d" % (112 + 2 * mt, 72 + mt * 12, 72 + mt * 12))
    for mt in R:
        a("v_lshlrev_b32 v%d, 16, v%d" % (112 + 2 * mt, 112 + 2 * mt))
    for mt in R:
        a("v_add_f32 v%d, 0x358637bd, v%d" % (112 + 2 * mt, 112 + 2 * mt))
    for mt in R:
        a("v_cvt_pk_bf16_f32 v%d, v%d, v%d" % (112 + 2 * mt, 112 + 2 * mt, 112 + 2 * mt))
    for mt in R:
        a("v_lshlrev_b32 v%d, 16, v%d" % (112 + 2 * mt, 112 + 2 * mt))
    for mt in R:
        a("v_rcp_f32 v%d, v%d" % (112 + 2 * mt, 112 + 2 * mt))
    for mt in R:
        for i in range(4):
            a("v_cvt_pk_bf16_f32 v%d, v%d, v%d" % (16 + i, 64 + mt * 12 + 2 * i, 65 + mt * 12 + 2 * i))
        for i in range(4):
            a("v_lshlrev_b32 v%d, 16, v%d" % (64 + mt * 12 + 2 * i, 16 + i))
            a("v_and_b32 v%d, 0xffff0000, v%d" % (65 + mt * 12 + 2 * i, 16 + i))
        for i in range(4):
            a("v_pk_mul_f32 %s, %s, %s op_sel_hi:[1,0]" % (vr(64 + mt * 12 + 2 * i, 2), vr(64 + mt * 12 + 2 * i, 2), vr(112 + 2 * mt, 2)))
        for i in range(4):
            a("v_cvt_pk_bf16_f32 v%d, v%d, v%d" % (20 + (mt & 1) * 4 + i, 64 + mt * 12 + 2 * i, 65 + mt * 12 + 2 * i))
        for dt in range(2):
            a("ds_write_b64 v5, %s offset:%d" % (vr(20 + (mt & 1) * 4 + 2 * dt, 2), mt * 16 * 80 + dt * 32))
    a("s_waitcnt lgkmcnt(0)")
    for j in range(4):
        a("ds_read_b128 %s, v6 offset:%d" % (vr(32 + j * 4, 4), j * 16 * 80))
    for j in range(4):
        a("s_waitcnt lgkmcnt(%d)" % (3 - j))
        a("s_mov_b32 s28, 0x%x" % (j * 16 * 9216))
        a("buffer_store_dwordx4 %s, v12, s[8:11], s28 offen sc1" % vr(32 + j * 4, 4))
    a("s_barrier")


def g2_apply_signal(a):
    a("s_lshr_b32 s28, s2, 4")
    a("s_lshl_b32 s28, s28, 8")
    a("s_add_u32 s28, s28, 32768")
    a("v_mov_b32 v28, s28")
    a("s_waitcnt vmcnt(16)")
    a("s_barrier")
    a("s_cmp_lg_u32 s20, 0")
    a("s_cbranch_scc1 g2_ap_sig")
    a("v_mov_b32 v29, 1")
    a("s_mov_b64 exec, 1")
    a("buffer_atomic_add v29, v28, s[44:47], 0 offen sc1")
    a("s_mov_b64 exec, -1")
    a.label("g2_ap_sig")


def gen_apply(a):
    L = "apply_kernel"
    kernel_head(a, L)
    a("s_cmp_ge_u32 s2, 256")
    a("s_cbranch_scc1 ap_done")
    a("s_load_dwordx2 s[4:5], s[0:1], %d" % KA_WS)
    a("v_and_b32 v1, 63, v0")
    a("v_lshrrev_b32 v2, 6, v0")
    a("v_and_b32 v3, 15, v1")
    a("v_lshrrev_b32 v4, 4, v1")
    a("s_and_b32 s20, s2, 31")
    a("s_lshr_b32 s21, s2, 5")
    a("s_waitcnt lgkmcnt(0)")
    srd(a, 8, 4, WS_KV, SZ_KV)
    srd(a, 12, 4, WS_PQ, SZ_PQ)
    srd(a, 16, 4, WS_HC, SZ_HC)
    a("s_lshl_b32 s22, s20, 11")
    a("s_lshl_b32 s23, s21, 8")
    a("s_add_u32 s22, s22, s23")
    a("v_lshl_add_u32 v5, v2, 6, v3")
    a("v_add_u32 v5, s22, v5")
    a("v_lshlrev_b32 v5, 7, v5")
    a("v_lshl_add_u32 v5, v4, 4, v5")
    for st in range(4):
        for kk in range(2):
            if st < 2:
                a("buffer_load_dwordx4 %s, v5, s[12:15], 0 offen offset:%d" % (vr(64 + (st * 2 + kk) * 4, 4), st * 2048 + kk * 64))
            else:
                a("s_movk_i32 s24, 4096")
                a("buffer_load_dwordx4 %s, v5, s[12:15], s24 offen offset:%d" % (vr(64 + (st * 2 + kk) * 4, 4), (st - 2) * 2048 + kk * 64))
    a("s_lshl_b32 s22, s20, 14")
    a("v_lshlrev_b32 v6, 5, v0")
    a("v_add_u32 v6, s22, v6")
    for rb in range(8):
        a("s_mov_b32 s24, 0x%x" % (rb << 19))
        a("buffer_load_dwordx4 %s, v6, s[8:11], s24 offen" % vr(96 + rb * 8, 4))
        a("buffer_load_dwordx4 %s, v6, s[8:11], s24 offen offset:16" % vr(100 + rb * 8, 4))
    a("v_and_b32 v7, 7, v0")
    a("v_lshlrev_b32 v7, 5, v7")
    a("v_add_u32 v7, s22, v7")
    for rb in range(8):
        a("s_mov_b32 s24, 0x%x" % ((rb << 19) + 8192))
        a("buffer_load_dwordx4 %s, v7, s[8:11], s24 offen" % vr(160 + rb * 8, 4))
        a("buffer_load_dwordx4 %s, v7, s[8:11], s24 offen offset:16" % vr(164 + rb * 8, 4))
    a("s_waitcnt vmcnt(0)")
    for base in (96, 160):
        for rb in range(1, 8):
            for i in range(8):
                a("v_add_f32 v%d, v%d, v%d" % (base + i, base + i, base + rb * 8 + i))
    for i in range(4):
        a("v_cvt_pk_bf16_f32 v%d, v%d, v%d" % (8 + i, 96 + 2 * i, 97 + 2 * i))
        a("v_cvt_pk_bf16_f32 v%d, v%d, v%d" % (12 + i, 160 + 2 * i, 161 + 2 * i))
    a("v_lshlrev_b32 v6, 4, v0")
    a("ds_write_b128 v6, v[8:11]")
    a("v_and_b32 v7, 7, v0")
    a("v_lshlrev_b32 v7, 4, v7")
    a("ds_write_b128 v7, v[12:15] offset:4096")
    a("s_waitcnt lgkmcnt(0)")
    a("s_barrier")
    a("v_lshlrev_b32 v6, 7, v3")
    a("v_lshl_add_u32 v6, v4, 4, v6")
    a("v_lshlrev_b32 v7, 4, v4")
    for dt in range(2):
        for kk in range(2):
            a("ds_read_b128 %s, v6 offset:%d" % (vr(8 + (dt * 2 + kk) * 4, 4), dt * 2048 + kk * 64))
    for kk in range(2):
        a("ds_read_b128 %s, v7 offset:%d" % (vr(24 + kk * 4, 4), 4096 + kk * 64))
    a("s_lshl_b32 s23, s21, 8")
    a("v_lshl_add_u32 v5, v2, 6, v3")
    a("v_add_u32 v5, s23, v5")
    a("s_movk_i32 s24, 9216")
    a("v_mul_lo_u32 v5, v5, s24")
    a("s_lshl_b32 s23, s20, 6")
    a("s_add_u32 s23, s23, 7168")
    a("v_lshl_add_u32 v6, v4, 3, s23")
    a("v_add_u32 v5, v5, v6")
    a("s_waitcnt lgkmcnt(0)")
    for st in range(4):
        C = 96 + st * 12
        for t in range(3):
            a("v_mfma_f32_16x16x32_bf16 %s, %s, %s, 0" % (vr(C + t * 4, 4), vr(8 + t * 8, 4), vr(64 + st * 8, 4)))
        for t in range(3):
            a("v_mfma_f32_16x16x32_bf16 %s, %s, %s, %s" % (vr(C + t * 4, 4), vr(12 + t * 8, 4), vr(68 + st * 8, 4), vr(C + t * 4, 4)))
    a("s_nop 7")
    a("s_nop 7")
    for st in range(4):
        C = 96 + st * 12
        a("v_cvt_pk_bf16_f32 v32, v%d, v%d" % (C + 8, C + 8))
        a("v_lshlrev_b32 v32, 16, v32")
        a("v_add_f32 v32, 0x358637bd, v32")
        a("v_cvt_pk_bf16_f32 v32, v32, v32")
        a("v_lshlrev_b32 v32, 16, v32")
        a("v_rcp_f32 v32, v32")
        for i in range(4):
            bf16_round_pair(a, C + 2 * i, C + 2 * i + 1, 33)
        for i in range(8):
            a("v_mul_f32 v%d, v%d, v32" % (C + i, C + i))
        for i in range(4):
            a("v_cvt_pk_bf16_f32 v%d, v%d, v%d" % (40 + st * 4 + i, C + 2 * i, C + 2 * i + 1))
        a("buffer_store_dwordx2 %s, v5, s[16:19], 0 offen" % vr(40 + st * 4, 2))
        a("buffer_store_dwordx2 %s, v5, s[16:19], 0 offen offset:32" % vr(42 + st * 4, 2))
        if st < 3:
            a("v_add_u32 v5, %d, v5" % (16 * 9216))
    a.label("ap_done")
    a("s_endpgm")
    return L, 224


G2_ACC = 128
G2_FA = (32, 64)
G2_FB = (48, 80)
G2_VA = 16
G2_VB = (18, 19, 20, 21)
G2_N0 = int(os.environ.get("G2_N0", "24"))
G2_DMAPOS = (1, 5, 9, 13)


def g2_mfmas(st):
    out = []
    for mt in range(4):
        for nt in range(4):
            c = G2_ACC + (mt * 4 + nt) * 4
            out.append("v_mfma_f32_16x16x32_bf16 %s, %s, %s, %s" % (
                vr(c, 4), vr(G2_FB[st] + nt * 4, 4), vr(G2_FA[st] + mt * 4, 4), vr(c, 4)))
    return out


def g2_reads(st, buf):
    out = []
    for mt in range(4):
        out.append(["ds_read_b128 %s, %s offset:%d" % (vr(G2_FA[st] + mt * 4, 4), vr(G2_VA), buf * 16384 + mt * 2048)])
    for nt in range(4):
        for rd in range(2):
            out.append(["ds_read_b64_tr_b16 %s, %s offset:%d" % (vr(G2_FB[st] + nt * 4 + rd * 2, 2), vr(G2_VB[nt]), buf * 16384 + rd * 1024)])
    return out


def g2_dmas(buf):
    out = [["s_cmp_eq_u32 s19, 0",
            "s_cselect_b32 s12, s30, s12",
            "s_cselect_b32 s13, s31, s13",
            "s_cselect_b32 s14, 0x%x, s14" % (D * D * 2),
            "s_cselect_b32 s17, 0, s17",
            "s_sub_u32 s19, s19, 1"]]
    for j in range(2):
        out.append(["s_add_u32 m0, s27, %d" % (buf * 16384 + j * 1024),
                    "s_nop 0",
                    "buffer_load_dwordx4 v%d, s[8:11], s16 offen%s lds" % (8 + j, "" if "NOSC1A" in FLAGS else " sc1")])
    for j in range(2):
        out.append(["s_add_u32 m0, s27, %d" % (65536 + buf * 16384 + j * 1024),
                    "s_nop 0",
                    "buffer_load_dwordx4 v%d, s[12:15], s17 offen lds" % (12 + j)])
    out.append(["s_add_u32 s16, s16, 128", "s_add_u32 s17, s17, %d" % (64 * 2048)])
    return out


def g2_iter(a, i, dma, nxt, vm):
    slots = {}
    if dma and "NODMA" not in FLAGS:
        d = g2_dmas(i % 4)
        slots.setdefault(0, []).append(d[0])
        for j in range(4):
            slots.setdefault(G2_DMAPOS[j], []).append(d[1 + j])
        slots.setdefault(G2_DMAPOS[3], []).append(d[5])
    if nxt:
        r = g2_reads((i + 1) & 1, (i + 1) % 4)
        pos = [p for p in range(16) if p not in G2_DMAPOS][:12]
        for p, x in zip(pos, r):
            slots.setdefault(p, []).append(x)
    place(a, g2_mfmas(i & 1), slots)
    if nxt:
        if vm is None:
            a("s_waitcnt lgkmcnt(0)")
        else:
            a("s_waitcnt vmcnt(%d) lgkmcnt(0)" % vm)
        a("s_barrier")


def gen_gemm2(a):
    L = "gemm2_kernel"
    kernel_head(a, L)
    a("s_cmp_ge_u32 s2, 256")
    a("s_cbranch_scc1 g2_done")
    stamp(a, 0)
    stamp_rt(a, 6)
    a("s_load_dwordx2 s[4:5], s[0:1], %d" % KA_WS)
    a("s_load_dwordx2 s[6:7], s[0:1], %d" % KA_W2)
    a("s_load_dwordx2 s[30:31], s[0:1], %d" % KA_WO)
    a("s_load_dwordx2 s[32:33], s[0:1], %d" % KA_X)
    a("s_load_dwordx2 s[34:35], s[0:1], %d" % KA_B2)
    a("s_load_dwordx2 s[36:37], s[0:1], %d" % KA_OUT)
    g1_common_addr(a)
    a("s_and_b32 s21, s2, 7")
    a("s_lshr_b32 s23, s2, 7")
    a("s_bfe_u32 s24, s2, 0x20003")
    a("s_and_b32 s25, s21, 3")
    a("s_lshl_b32 s25, s25, 2")
    a("s_add_u32 s24, s24, s25")
    a("s_bfe_u32 s25, s2, 0x20005")
    a("s_lshr_b32 s26, s21, 2")
    a("s_lshl_b32 s26, s26, 2")
    a("s_add_u32 s25, s25, s26")
    if "SAMETILE" in FLAGS:
        a("s_mov_b32 s24, 0")
        a("s_mov_b32 s25, 0")
        a("s_mov_b32 s23, 0")
    a("s_lshr_b32 s21, s20, 2")
    a("s_bfe_u32 s22, s20, 0x10001")
    a("s_and_b32 s26, s20, 1")
    a("s_lshl_b32 s27, s20, 11")
    a("s_waitcnt lgkmcnt(0)")
    srd(a, 8, 4, WS_HC, SZ_HC)
    srd(a, 44, 4, WS_FL, SZ_FL)
    a("s_cmp_lg_u32 s23, 0")
    a("s_cbranch_scc1 g2_noapply")
    g2_apply(a)
    a.label("g2_noapply")
    a("v_lshrrev_b32 v5, 3, v1")
    a("s_lshl_b32 s28, s24, 7")
    a("s_lshl_b32 s29, s20, 4")
    a("s_add_u32 s28, s28, s29")
    a("v_add_u32 v5, s28, v5")
    a("s_movk_i32 s28, 9216")
    a("v_mul_lo_u32 v5, v5, s28")
    a("v_and_b32 v6, 7, v1")
    for j in range(2):
        a("v_add_u32 v7, %d, v4" % (4 * j))
        a("v_and_b32 v7, 7, v7")
        a("v_xor_b32 v7, v7, v6")
        a("v_lshl_add_u32 v7, v7, 4, v5")
        a("v_add_u32 v%d, %d, v7" % (8 + j, j * 8 * 9216))
    a("s_lshl_b32 s28, s20, 3")
    a("v_add_u32 v5, s28, v4")
    a("v_lshlrev_b32 v5, 11, v5")
    a("s_lshl_b32 s28, s25, 8")
    a("v_add_u32 v5, s28, v5")
    a("s_lshl_b32 s28, s26, 2")
    a("v_or_b32 v7, s28, v4")
    a("v_lshlrev_b32 v7, 1, v7")
    a("v_xor_b32 v7, v7, v3")
    a("v_lshl_add_u32 v12, v7, 4, v5")
    a("v_add_u32 v13, %d, v12" % (4 * 2048))
    a("s_lshl_b32 s28, s21, 2")
    a("v_add_u32 v5, s28, v4")
    a("v_lshrrev_b32 v6, 1, v3")
    a("v_xor_b32 v5, v5, v6")
    a("s_lshl_b32 s28, s22, 6")
    a("v_add_u32 v6, s28, v3")
    a("v_lshlrev_b32 v6, 7, v6")
    a("v_lshl_add_u32 v%d, v5, 4, v6" % G2_VA)
    a("v_bfe_u32 v5, v1, 2, 2")
    a("v_and_b32 v6, 1, v4")
    a("v_lshl_or_b32 v6, v6, 2, v5")
    a("v_lshl_add_u32 v5, v4, 3, v5")
    a("s_lshl_b32 s28, s21, 5")
    a("v_add_u32 v5, s28, v5")
    a("v_lshlrev_b32 v5, 8, v5")
    a("v_and_b32 v7, 3, v1")
    a("v_lshl_add_u32 v5, v7, 3, v5")
    a("v_add_u32 v5, 0x10000, v5")
    for nt in range(4):
        a("s_lshl_b32 s28, s26, 2")
        a("s_add_u32 s28, s28, %d" % nt)
        a("v_xor_b32 v7, s28, v6")
        a("v_lshl_add_u32 v%d, v7, 5, v5" % G2_VB[nt])
    srd(a, 12, 6, 0, F * D * 2)
    a("s_and_b32 s31, s31, 0xffff")
    a("s_mul_i32 s16, s23, %d" % (G2_N0 * 64 * 2))
    a("s_mul_i32 s17, s23, %d" % (G2_N0 * 64 * 2048))
    a("s_mov_b32 s19, 1000")
    a("s_mov_b32 s18, %d" % ((G2_N0 - 4) // 4))
    a("s_cmp_eq_u32 s23, 1")
    a("s_cselect_b32 s19, %d, s19" % (56 - G2_N0))
    a("s_cselect_b32 s18, %d, s18" % ((72 - G2_N0 - 4) // 4))
    a("s_cselect_b32 s3, %d, 0" % ((72 - G2_N0 - 4) // 4 - (56 - G2_N0 - 4) // 4))
    a("s_lshr_b32 s28, s24, 1")
    a("s_lshl_b32 s28, s28, 8")
    a("s_add_u32 s28, s28, 32768")
    a("v_mov_b32 v27, s28")
    srd(a, 40, 4, WS_P, SZ_P)
    a("s_lshl_b32 s28, s24, 3")
    a("s_add_u32 s28, s28, s25")
    a("s_lshl_b32 s38, s28, 8")
    a("s_lshl_b32 s39, s28, 16")
    a("s_lshl_b32 s28, s20, 13")
    a("s_add_u32 s39, s39, s28")
    a("v_mov_b32 v22, s38")
    a("v_lshlrev_b32 v24, 4, v1")
    a("v_add_u32 v24, s39, v24")
    a("s_movk_i32 s39, 4096")
    srd(a, 48, 32, 0, S * D * 2)
    srd(a, 52, 34, 0, D * 2)
    srd(a, 56, 36, 0, S * D * 2)
    a("s_lshl_b32 s28, s24, 7")
    a("s_lshl_b32 s29, s20, 4")
    a("s_add_u32 s28, s28, s29")
    a("v_add_u32 v25, s28, v4")
    a("v_lshlrev_b32 v25, 11, v25")
    a("s_lshl_b32 s28, s25, 8")
    a("v_lshl_add_u32 v26, v3, 4, s28")
    a("v_add_u32 v25, v25, v26")
    for st in range(4):
        for f in g2_dmas(st):
            for x in f:
                a(x)
    for i in range(64):
        a("v_mov_b32 v%d, 0" % (G2_ACC + i))
    a("s_cmp_lg_u32 s23, 0")
    a("s_cbranch_scc1 g2_nosig")
    g2_apply_signal(a)
    a.label("g2_nosig")
    stamp(a, 1)
    a("s_waitcnt vmcnt(12)")
    a("s_barrier")
    stamp(a, 2)
    for f in g2_reads(0, 0):
        for x in f:
            a(x)
    a("s_waitcnt vmcnt(8) lgkmcnt(0)")
    a("s_barrier")
    a("v_mov_b32 v23, 0")
    a.label("g2_loop")
    a("s_cmp_eq_u32 s18, s3")
    a("s_cbranch_scc1 g2_opoll")
    a("s_add_u32 s28, s3, 1")
    a("s_cmp_lg_u32 s18, s28")
    a("s_cbranch_scc1 g2_loop2")
    a("buffer_load_dword v23, v27, s[44:47], 0 offen sc1")
    a.label("g2_loop2")
    for i in range(4):
        g2_iter(a, i, True, True, 8)
    a("s_sub_u32 s18, s18, 1")
    a("s_cmp_lg_u32 s18, 0")
    a("s_cbranch_scc1 g2_loop")
    stamp(a, 8)
    a("buffer_load_dword v23, v22, s[44:47], 0 offen sc1")
    g2_iter(a, 0, False, True, 5)
    a("s_cmp_eq_u32 s23, 0")
    a("s_cbranch_scc1 g2_pubtail")
    for j in range(4):
        a("s_mov_b32 s38, 0x%x" % (j * 4 * 2048))
        a("buffer_load_dwordx4 %s, v25, s[48:51], s38 offen" % vr(224 + j * 4, 4))
    a("buffer_load_dwordx4 v[240:243], v26, s[52:55], 0 offen")
    g2_iter(a, 1, False, True, 5)
    stamp(a, 7)
    a("s_mov_b32 s29, 0")
    a("s_branch g2_chk")
    a.label("g2_spin")
    a("buffer_load_dword v23, v22, s[44:47], 0 offen sc1")
    a("s_waitcnt vmcnt(0)")
    a.label("g2_chk")
    a("v_readfirstlane_b32 s28, v23")
    a("s_add_u32 s29, s29, 1")
    a("s_cmp_ge_u32 s28, 1")
    a("s_cbranch_scc1 g2_go")
    a("s_sleep 2")
    a("s_cmp_lt_u32 s29, 0x100000")
    a("s_cbranch_scc1 g2_spin")
    a.label("g2_go")
    stamp(a, 9)
    for t in range(8):
        a("buffer_load_dwordx4 %s, v24, s[40:43], %s offen offset:%d sc1" % (vr(192 + t * 4, 4), "s39" if t >= 4 else "0", (t % 4) * 1024))
    a("s_branch g2_tail")
    a.label("g2_pubtail")
    g2_iter(a, 1, False, True, 0)
    a.label("g2_tail")
    g2_iter(a, 2, False, True, None)
    g2_iter(a, 3, False, False, None)
    stamp(a, 3)
    a("s_nop 7")
    a("s_barrier")
    a("s_mul_i32 s28, s21, %d" % (128 * 528))
    a("s_mul_i32 s29, s22, %d" % (64 * 528))
    a("s_add_u32 s28, s28, s29")
    a("s_lshl_b32 s29, s26, 8")
    a("s_add_u32 s28, s28, s29")
    a("s_movk_i32 s29, 528")
    a("v_mul_lo_u32 v6, v3, s29")
    a("v_lshl_add_u32 v6, v4, 4, v6")
    a("v_add_u32 v6, s28, v6")
    for mt in range(4):
        for nt in range(4):
            a("ds_write_b128 v6, %s offset:%d" % (vr(G2_ACC + (mt * 4 + nt) * 4, 4), mt * 16 * 528 + nt * 64))
    a("s_lshl_b32 s28, s20, 4")
    a("v_add_u32 v7, s28, v4")
    a("v_mul_lo_u32 v7, v7, s29")
    a("v_lshl_add_u32 v7, v3, 5, v7")
    a("v_add_u32 v6, %d, v7" % (128 * 528))
    a("s_waitcnt lgkmcnt(0)")
    a("s_barrier")
    for j in range(4):
        for hf in range(2):
            a("ds_read_b128 %s, v7 offset:%d" % (vr(128 + j * 8 + hf * 4, 4), j * 4 * 528 + hf * 16))
            a("ds_read_b128 %s, v6 offset:%d" % (vr(32 + j * 8 + hf * 4, 4), j * 4 * 528 + hf * 16))
    a("s_waitcnt lgkmcnt(0)")
    for i in range(32):
        a("v_add_f32 v%d, v%d, v%d" % (128 + i, 128 + i, 32 + i))
    a("s_cmp_lg_u32 s23, 0")
    a("s_cbranch_scc1 g2_second")
    for t in range(8):
        a("buffer_store_dwordx4 %s, v24, s[40:43], %s offen offset:%d sc1" % (vr(128 + t * 4, 4), "s39" if t >= 4 else "0", (t % 4) * 1024))
    a("s_waitcnt vmcnt(0)")
    stamp(a, 8)
    a("s_barrier")
    a("s_cmp_lg_u32 s20, 0")
    a("s_cbranch_scc1 g2_fin")
    a("v_mov_b32 v23, 1")
    a("s_mov_b64 exec, 1")
    a("buffer_atomic_add v23, v22, s[44:47], 0 offen sc1")
    a("s_mov_b64 exec, -1")
    a("s_branch g2_fin")
    a.label("g2_second")
    a("s_waitcnt vmcnt(0)")
    for p in range(4):
        a("v_lshlrev_b32 v%d, 16, v%d" % (32 + 2 * p, 240 + p))
        a("v_and_b32 v%d, 0xffff0000, v%d" % (33 + 2 * p, 240 + p))
    for j in range(4):
        for p in range(4):
            c = 128 + j * 8 + 2 * p
            a("v_lshlrev_b32 v12, 16, v%d" % (224 + j * 4 + p))
            a("v_and_b32 v13, 0xffff0000, v%d" % (224 + j * 4 + p))
            a("v_add_f32 v12, v12, v%d" % (32 + 2 * p))
            a("v_add_f32 v13, v13, v%d" % (33 + 2 * p))
            a("v_add_f32 v%d, v%d, v%d" % (c, c, 192 + j * 8 + 2 * p))
            a("v_add_f32 v%d, v%d, v%d" % (c + 1, c + 1, 193 + j * 8 + 2 * p))
            a("v_add_f32 v%d, v%d, v12" % (c, c))
            a("v_add_f32 v%d, v%d, v13" % (c + 1, c + 1))
            a("v_cvt_pk_bf16_f32 v%d, v%d, v%d" % (64 + j * 4 + p, c, c + 1))
        a("s_mov_b32 s38, 0x%x" % (j * 4 * 2048))
        a("buffer_store_dwordx4 %s, v25, s[56:59], s38 offen%s" % (vr(64 + j * 4, 4), ST2))
    a.label("g2_fin")
    if "STAMP" in FLAGS:
        a("s_waitcnt vmcnt(0)")
    stamp(a, 4)
    stamp_rt(a, 5)
    stamp_flush(a, 10, 1)
    a.label("g2_done")
    a("s_endpgm")
    a.label("g2_opoll")
    a("s_mov_b32 s29, 0")
    a("s_branch g2_ochk")
    a.label("g2_ospin")
    a("buffer_load_dword v23, v27, s[44:47], 0 offen sc1")
    a("s_waitcnt vmcnt(0)")
    a.label("g2_ochk")
    a("v_readfirstlane_b32 s28, v23")
    a("s_add_u32 s29, s29, 1")
    a("s_cmp_ge_u32 s28, 16")
    a("s_cbranch_scc1 g2_loop2")
    a("s_sleep 2")
    a("s_cmp_lt_u32 s29, 0x100000")
    a("s_cbranch_scc1 g2_ospin")
    a("s_branch g2_loop2")
    return L, 248


def gen_combine(a):
    L = "combine_kernel"
    kernel_head(a, L)
    a("s_cmp_ge_u32 s2, 1024")
    a("s_cbranch_scc1 cb_done")
    a("s_load_dwordx2 s[4:5], s[0:1], %d" % KA_WS)
    a("s_load_dwordx2 s[6:7], s[0:1], %d" % KA_X)
    a("s_load_dwordx2 s[20:21], s[0:1], %d" % KA_B2)
    a("s_load_dwordx2 s[22:23], s[0:1], %d" % KA_OUT)
    a("s_lshl_b32 s3, s2, 8")
    a("v_add_u32 v1, s3, v0")
    a("v_lshlrev_b32 v2, 5, v1")
    a("v_lshlrev_b32 v3, 4, v1")
    a("v_and_b32 v4, 127, v1")
    a("v_lshlrev_b32 v4, 4, v4")
    a("s_waitcnt lgkmcnt(0)")
    srd(a, 8, 4, WS_P, SZ_P)
    srd(a, 12, 6, 0, S * D * 2)
    srd(a, 16, 20, 0, D * 2)
    srd(a, 24, 22, 0, S * D * 2)
    a("s_mov_b32 s28, 0x800000")
    a("buffer_load_dwordx4 v[8:11], v2, s[8:11], 0 offen")
    a("buffer_load_dwordx4 v[12:15], v2, s[8:11], 0 offen offset:16")
    a("buffer_load_dwordx4 v[16:19], v2, s[8:11], s28 offen")
    a("buffer_load_dwordx4 v[20:23], v2, s[8:11], s28 offen offset:16")
    a("buffer_load_dwordx4 v[24:27], v3, s[12:15], 0 offen")
    a("buffer_load_dwordx4 v[28:31], v4, s[16:19], 0 offen")
    a("s_waitcnt vmcnt(0)")
    for i in range(8):
        a("v_add_f32 v%d, v%d, v%d" % (8 + i, 8 + i, 16 + i))
    for i in range(4):
        a("v_lshlrev_b32 v32, 16, v%d" % (24 + i))
        a("v_and_b32 v33, 0xffff0000, v%d" % (24 + i))
        a("v_lshlrev_b32 v34, 16, v%d" % (28 + i))
        a("v_and_b32 v35, 0xffff0000, v%d" % (28 + i))
        a("v_add_f32 v32, v32, v34")
        a("v_add_f32 v33, v33, v35")
        a("v_add_f32 v%d, v%d, v32" % (8 + 2 * i, 8 + 2 * i))
        a("v_add_f32 v%d, v%d, v33" % (9 + 2 * i, 9 + 2 * i))
        a("v_cvt_pk_bf16_f32 v%d, v%d, v%d" % (36 + i, 8 + 2 * i, 9 + 2 * i))
    a("buffer_store_dwordx4 v[36:39], v3, s[24:27], 0 offen")
    a.label("cb_done")
    a("s_endpgm")
    return L, 40


def main():
    a = Asm()
    hdr = open("cdna_kernels/%s.s.ref" % NAME).read().split("\n")
    head = [l for l in hdr if l.startswith(";") and "@launch" not in l and "Override launch" not in l and "grid=ceil" not in l]
    launches = [
        "; @launch kernel=ln_kernel grid=(512,1,1) block=(256,1,1) lds=0",
        "; @launch kernel=gemm1_kernel grid=(256,1,1) block=(512,1,1) lds=131072",
        "; @launch kernel=gemm2_kernel grid=(256,1,1) block=(512,1,1) lds=135168",
    ]
    a.raw("\n".join(head + launches))
    a.raw('.amdgcn_target "amdgcn-amd-amdhsa--gfx950"')
    a.raw(".text")
    descs = []
    for g in (gen_ln, gen_gemm1, gen_gemm2):
        label, v = g(a)
        descs.append(kernel_desc(label, v))
    a.raw('.section .rodata,"a"')
    for d in descs:
        a.raw(".p2align 6")
        a.raw(d)
    open(OUT, "w").write(a.text())
    print("wrote", OUT, len(a.lines), "lines")


if __name__ == "__main__":
    main()
```

```python
import sys
import re
import os
FLAGS = set(os.environ.get("FLAGS", "").split(","))

NAME = "parallel_sum__linear_kernel_hedgehog__dense_activation_gelu__prompt"
OUT = os.environ.get("OUT", "cdna_kernels/%s.s" % NAME)

S, D, H, DH, F = 2048, 1024, 32, 32, 3584
KCAT = F + D
KA_X, KA_WQKV, KA_WPHI, KA_WO, KA_BX, KA_W1, KA_B1, KA_W2, KA_B2, KA_OUT, KA_DBG, KA_WS = [8 * i for i in range(12)]
WS_XN = 0x0000000
WS_HC = 0x0400000
WS_PQ = 0x1800000
WS_KV = 0x2000000
WS_P = 0x2400000
WS_FL = 0x3800000
SZ_FL = 65536
SZ_XN = S * D * 2
SZ_HC = S * KCAT * 2
SZ_PQ = H * S * 64 * 2
SZ_KV = 8 * 32 * 16384
SZ_P = S * D * 4

LOG2E = 0x3fb8aa3b
ST = os.environ.get("ST", "")
ST = (" " + ST) if ST else ""
ST2 = os.environ.get("ST2", "")
ST2 = (" " + ST2) if ST2 else ""
PF_ROWS = int(os.environ.get("PF_ROWS", "256"))
PF_LANES = int(os.environ.get("PF_LANES", "4"))


class Asm:
    def __init__(self):
        self.lines = []

    def __call__(self, s):
        m = re.search(r"offset:(\d+)", s)
        if m:
            lim = 4096 if s.startswith("buffer_") else 65536
            assert int(m.group(1)) < lim, s
        self.lines.append("    " + s)

    def label(self, s):
        self.lines.append(s + ":")

    def raw(self, s):
        self.lines.append(s)

    def text(self):
        return "\n".join(self.lines) + "\n"


def vr(b, n=1):
    return "v%d" % b if n == 1 else "v[%d:%d]" % (b, b + n - 1)


def sr(b, n=1):
    return "s%d" % b if n == 1 else "s[%d:%d]" % (b, b + n - 1)


def srd(a, d, base, off, size):
    if off:
        a("s_add_u32 s%d, s%d, 0x%x" % (d, base, off))
        a("s_addc_u32 s%d, s%d, 0" % (d + 1, base + 1))
    else:
        a("s_mov_b32 s%d, s%d" % (d, base))
        a("s_mov_b32 s%d, s%d" % (d + 1, base + 1))
    a("s_and_b32 s%d, s%d, 0xffff" % (d + 1, d + 1))
    a("s_mov_b32 s%d, 0x%x" % (d + 2, size))
    a("s_mov_b32 s%d, 0x00020000" % (d + 3))


def kernel_head(a, label):
    a.raw(".globl %s" % label)
    a.raw(".p2align 8")
    a.raw(".type %s,@function" % label)
    a.label(label)


def kernel_desc(label, vgpr, sgpr=102):
    acc = (vgpr + 3) // 4 * 4
    return """.amdhsa_kernel %s
  .amdhsa_next_free_vgpr %d
  .amdhsa_next_free_sgpr %d
  .amdhsa_accum_offset %d
  .amdhsa_group_segment_fixed_size 0
  .amdhsa_kernarg_size 96
  .amdhsa_user_sgpr_count 2
  .amdhsa_user_sgpr_kernarg_segment_ptr 1
  .amdhsa_system_sgpr_workgroup_id_x 1
.end_amdhsa_kernel
""" % (label, vgpr, sgpr, acc)


def stamp(a, i):
    if "STAMP" in FLAGS:
        a("s_memtime s[%d:%d]" % (60 + 2 * i, 61 + 2 * i))


def stamp_rt(a, i):
    if "STAMP" in FLAGS:
        a("s_memrealtime s[%d:%d]" % (60 + 2 * i, 61 + 2 * i))


def stamp_flush(a, n, kidx):
    if "STAMP" not in FLAGS:
        return
    a("s_waitcnt lgkmcnt(0)")
    srd(a, 88, 4, 0x8000000 + kidx * 0x100000, 0x100000)
    a("s_lshl_b32 s92, s2, 3")
    a("s_add_u32 s92, s92, s20")
    a("s_lshl_b32 s92, s92, 7")
    a("v_mov_b32 v2, s92")
    for i in range(n):
        a("v_mov_b32 v4, s%d" % (60 + 2 * i))
        a("v_mov_b32 v5, s%d" % (61 + 2 * i))
        a("buffer_store_dwordx2 v[4:5], v2, s[88:91], 0 offen offset:%d" % (8 * i))
        a("s_nop 1")


def allreduce64(a, op, v, t):
    for ctl in ("quad_perm:[1,0,3,2]", "quad_perm:[2,3,0,1]", "row_half_mirror", "row_mirror"):
        a("s_nop 1")
        a("%s_dpp %s, %s, %s %s row_mask:0xf bank_mask:0xf" % (op, vr(v), vr(v), vr(v), ctl))
    for sw in ("v_permlane16_swap_b32", "v_permlane32_swap_b32"):
        a("v_mov_b32 %s, %s" % (vr(t), vr(v)))
        a("s_nop 1")
        a("%s %s, %s" % (sw, vr(v), vr(t)))
        a("s_nop 1")
        a("%s %s, %s, %s" % (op, vr(v), vr(v), vr(t)))


def gen_ln(a):
    L = "ln_kernel"
    kernel_head(a, L)
    a("s_cmp_ge_u32 s2, 512")
    a("s_cbranch_scc1 ln_done")
    a("s_load_dwordx2 s[4:5], s[0:1], %d" % KA_X)
    a("s_load_dwordx2 s[6:7], s[0:1], %d" % KA_WS)
    a("s_load_dwordx2 s[20:21], s[0:1], %d" % KA_WQKV)
    a("s_load_dwordx2 s[22:23], s[0:1], %d" % KA_W1)
    a("v_lshrrev_b32 v1, 6, v0")
    a("v_and_b32 v2, 63, v0")
    a("s_lshl_b32 s3, s2, 2")
    a("v_add_u32 v1, s3, v1")
    a("v_lshlrev_b32 v3, 12, v1")
    a("v_lshl_add_u32 v3, v2, 6, v3")
    a("v_lshlrev_b32 v1, 11, v1")
    a("v_lshl_add_u32 v1, v2, 4, v1")
    a("s_waitcnt lgkmcnt(0)")
    srd(a, 8, 4, 0, SZ_XN)
    srd(a, 12, 6, WS_XN, SZ_XN)
    a("buffer_load_dwordx4 v[4:7], v1, s[8:11], 0 offen")
    a("buffer_load_dwordx4 v[8:11], v1, s[8:11], 0 offen offset:1024")
    if "NOPF" not in FLAGS:
        srd(a, 24, 20, 0, PF_ROWS * 3 * D * 2)
        srd(a, 28, 22, 0, PF_ROWS * F * 2)
        a("buffer_load_dword v39, v3, s[24:27], 0 offen")
        a("buffer_load_dword v39, v3, s[28:31], 0 offen")
    a("s_cmp_ge_u32 s2, 16")
    a("s_cbranch_scc1 ln_nz")
    srd(a, 16, 6, WS_FL, SZ_FL)
    a("s_lshl_b32 s3, s2, 12")
    a("v_lshl_add_u32 v12, v0, 4, s3")
    for i in range(4):
        a("v_mov_b32 v%d, 0" % (16 + i))
    a("buffer_store_dwordx4 v[16:19], v12, s[16:19], 0 offen")
    a("s_waitcnt vmcnt(3)")
    a.label("ln_nz")
    a("s_waitcnt vmcnt(%d)" % (0 if "NOPF" in FLAGS else 2))
    for i in range(8):
        a("v_lshlrev_b32 v%d, 16, v%d" % (16 + 2 * i, 4 + i))
        a("v_and_b32 v%d, 0xffff0000, v%d" % (17 + 2 * i, 4 + i))
    a("v_add_f32 v32, v16, v17")
    for i in range(2, 16):
        a("v_add_f32 v32, v32, v%d" % (16 + i))
    allreduce64(a, "v_add_f32", 32, 33)
    a("v_mul_f32 v32, 0x3a800000, v32")
    a("v_sub_f32 v34, v16, v32")
    a("v_mul_f32 v35, v34, v34")
    for i in range(1, 16):
        a("v_sub_f32 v34, v%d, v32" % (16 + i))
        a("v_fmac_f32 v35, v34, v34")
    allreduce64(a, "v_add_f32", 35, 33)
    a("v_mul_f32 v35, 0x3a800000, v35")
    a("v_cvt_pk_bf16_f32 v36, v32, v35")
    a("v_lshlrev_b32 v32, 16, v36")
    a("v_and_b32 v35, 0xffff0000, v36")
    a("v_add_f32 v35, 0x3727c5ac, v35")
    a("v_cvt_pk_bf16_f32 v36, v35, v35")
    a("v_lshlrev_b32 v35, 16, v36")
    a("v_sqrt_f32 v35, v35")
    a("s_nop 0")
    a("v_cvt_pk_bf16_f32 v36, v35, v35")
    a("v_lshlrev_b32 v35, 16, v36")
    a("v_rcp_f32 v35, v35")
    a("s_nop 0")
    for i in range(8):
        a("v_sub_f32 v%d, v%d, v32" % (16 + 2 * i, 16 + 2 * i))
        a("v_sub_f32 v%d, v%d, v32" % (17 + 2 * i, 17 + 2 * i))
        a("v_cvt_pk_bf16_f32 v36, v%d, v%d" % (16 + 2 * i, 17 + 2 * i))
        a("v_lshlrev_b32 v37, 16, v36")
        a("v_and_b32 v38, 0xffff0000, v36")
        a("v_mul_f32 v37, v37, v35")
        a("v_mul_f32 v38, v38, v35")
        a("v_cvt_pk_bf16_f32 v%d, v37, v38" % (4 + i))
    a("buffer_store_dwordx4 v[4:7], v1, s[12:15], 0 offen%s" % ST2)
    a("buffer_store_dwordx4 v[8:11], v1, s[12:15], 0 offen offset:1024%s" % ST2)
    a.label("ln_done")
    a("s_endpgm")
    return L, 40


def interleave(a, mfmas, fillers):
    n = len(mfmas)
    nf = len(fillers)
    fi = 0
    for i, m in enumerate(mfmas):
        a(m)
        want = ((i + 1) * nf + n - 1) // n if nf <= n else ((i + 1) * nf) // n
        want = min(nf, max(want, min(nf, i + 1)))
        while fi < want:
            for x in fillers[fi]:
                a(x)
            fi += 1
    while fi < nf:
        for x in fillers[fi]:
            a(x)
        fi += 1


def place(a, mfmas, slots):
    for i, m in enumerate(mfmas):
        a(m)
        for grp in slots.get(i, []):
            for x in grp:
                a(x)


class Gemm:
    def __init__(self, a, MT, NT, acc, fragA, fragB, vA, vB, voffA, voffB,
                 orient, sM0, sOffA, sOffB, srdA, srdB, stepA, stepB):
        self.__dict__.update(locals())

    def mfmas(self, st):
        out = []
        for mt in range(self.MT):
            for nt in range(self.NT):
                c = self.acc + (mt * self.NT + nt) * 4
                fa = self.fragA[st] + mt * 4
                fb = self.fragB[st] + nt * 4
                x, y = (fb, fa) if self.orient(nt) else (fa, fb)
                out.append("v_mfma_f32_16x16x32_bf16 %s, %s, %s, %s" % (vr(c, 4), vr(x, 4), vr(y, 4), vr(c, 4)))
        return out

    def reads(self, st, buf):
        out = []
        for mt in range(self.MT):
            out.append(["ds_read_b128 %s, %s offset:%d" % (vr(self.fragA[st] + mt * 4, 4), vr(self.vA), buf * 16384 + mt * 1024)])
        for nt in range(self.NT):
            for rd in range(2):
                out.append(["ds_read_b64_tr_b16 %s, %s offset:%d" % (vr(self.fragB[st] + nt * 4 + rd * 2, 2), vr(self.vB[nt]), buf * 16384 + rd * 2048)])
        return out

    def dmas(self, buf):
        out = []
        for j in range(2):
            out.append(["s_add_u32 m0, s%d, %d" % (self.sM0, buf * 16384 + j * 1024),
                        "s_nop 0",
                        "buffer_load_dwordx4 %s, %s, s%d offen sc1 lds" % (vr(self.voffA + j), sr(self.srdA, 4), self.sOffA)])
        for j in range(2):
            out.append(["s_add_u32 m0, s%d, %d" % (self.sM0, 65536 + buf * 16384 + j * 1024),
                        "s_nop 0",
                        "buffer_load_dwordx4 %s, %s, s%d offen lds" % (vr(self.voffB + j), sr(self.srdB, 4), self.sOffB)])
        out.append(["s_add_u32 s%d, s%d, %d" % (self.sOffA, self.sOffA, self.stepA),
                    "s_add_u32 s%d, s%d, %d" % (self.sOffB, self.sOffB, self.stepB)])
        return out

    def pf(self):
        return ["buffer_load_dword v30, v31, s[40:43], s19 offen",
                "s_add_u32 s19, s19, 0x%x" % (PF_LANES * 64 * 1024)]

    def iteration(self, i, dma, nxt, vm):
        a = self.a
        mf = self.mfmas(i & 1)
        n = len(mf)
        dpos = [1 + (j * (n - 2)) // 4 for j in range(4)]
        slots = {}
        if dma and "NODMA" not in FLAGS:
            d = self.dmas(i % 4)
            for j in range(4):
                slots.setdefault(dpos[j], []).append(d[j])
            slots.setdefault(dpos[3], []).append(d[4])
        if nxt:
            r = self.reads((i + 1) & 1, (i + 1) % 4)
            pos = [p for p in range(n) if p not in dpos][:len(r)]
            for p, x in zip(pos, r):
                slots.setdefault(p, []).append(x)
        place(a, mf, slots)
        if nxt:
            if vm is None:
                a("s_waitcnt lgkmcnt(0)")
            else:
                a("s_waitcnt vmcnt(%d) lgkmcnt(0)" % vm)
            a("s_barrier")

    def run(self, nstages, tag, sCnt, late=None, nlate=0):
        a = self.a
        for st in range(4):
            d = self.dmas(st)
            for f in d[2:4]:
                for x in f:
                    a(x)
            a("s_add_u32 s%d, s%d, %d" % (self.sOffB, self.sOffB, self.stepB))
        g1_fused_ln(a, tag)
        for st in range(4):
            d = self.dmas(st)
            for f in d[0:2]:
                for x in f:
                    a(x)
            a("s_add_u32 s%d, s%d, %d" % (self.sOffA, self.sOffA, self.stepA))
        for i in range(self.MT * self.NT * 4):
            a("v_mov_b32 v%d, 0" % (self.acc + i))
        stamp(a, 1)
        a("s_waitcnt vmcnt(0)")
        a("s_barrier")
        stamp(a, 2)
        for f in self.reads(0, 0):
            for x in f:
                a(x)
        a("s_waitcnt lgkmcnt(0)")
        a("s_barrier")
        a("s_mov_b32 s%d, %d" % (sCnt, (nstages - 4) // 4))
        a.label(tag + "_loop")
        for i in range(4):
            self.iteration(i, True, True, 8)
        a("s_sub_u32 s%d, s%d, 1" % (sCnt, sCnt))
        a("s_cmp_lg_u32 s%d, 0" % sCnt)
        a("s_cbranch_scc1 %s_loop" % tag)
        if late:
            late()
        self.iteration(0, False, True, 4 + nlate)
        self.iteration(1, False, True, nlate)
        self.iteration(2, False, True, None)
        self.iteration(3, False, False, None)
        stamp(a, 3)
        srd(a, 40, 48, 0, F * D * 2)
        a("buffer_load_dword v30, v31, s[40:43], 0 offen")
        srd(a, 40, 44, 0, D * D * 2)
        a("buffer_load_dword v30, v31, s[40:43], 0 offen")
        a("s_waitcnt vmcnt(2)")


def g1_ln_loads(a):
    X = 128
    a("s_bfe_u32 s28, s2, 0x20001")
    a("s_lshl_b32 s28, s28, 3")
    a("s_add_u32 s28, s28, s24")
    a("s_lshl_b32 s28, s28, 3")
    a("s_lshl_b32 s29, s23, 8")
    a("s_add_u32 s28, s28, s29")
    a("s_add_u32 s28, s28, s20")
    a("s_lshl_b32 s28, s28, 11")
    a("v_lshl_add_u32 v10, v1, 4, s28")
    srd(a, 56, 56, 0, SZ_XN)
    for h in range(2):
        a("buffer_load_dwordx4 %s, v10, s[56:59], 0 offen offset:%d" % (vr(X + h * 4, 4), h * 1024))
    a("s_waitcnt vmcnt(0)")
    stamp(a, 7)


def g1_ln_compute(a, tag):
    X, T = 128, 176
    srd(a, 52, 50, 0, 256)
    a("s_lshl_b32 s28, s23, 5")
    a("v_mov_b32 v11, s28")
    a("s_movk_i32 s29, 4096")
    for i in range(1):
        R = X + i * 8
        U = T
        S1, S2, TM = T + 16, T + 17, T + 18
        for j in range(8):
            a("v_lshlrev_b32 v%d, 16, v%d" % (U + 2 * j, R + j))
            a("v_and_b32 v%d, 0xffff0000, v%d" % (U + 1 + 2 * j, R + j))
        a("v_add_f32 v%d, v%d, v%d" % (S1, U, U + 1))
        for j in range(2, 16):
            a("v_add_f32 v%d, v%d, v%d" % (S1, S1, U + j))
        allreduce64(a, "v_add_f32", S1, TM)
        a("v_mul_f32 v%d, 0x3a800000, v%d" % (S1, S1))
        a("v_sub_f32 v%d, v%d, v%d" % (TM + 1, U, S1))
        a("v_mul_f32 v%d, v%d, v%d" % (S2, TM + 1, TM + 1))
        for j in range(1, 16):
            a("v_sub_f32 v%d, v%d, v%d" % (TM + 1, U + j, S1))
            a("v_fmac_f32 v%d, v%d, v%d" % (S2, TM + 1, TM + 1))
        allreduce64(a, "v_add_f32", S2, TM)
        a("v_mul_f32 v%d, 0x3a800000, v%d" % (S2, S2))
        a("v_cvt_pk_bf16_f32 v%d, v%d, v%d" % (TM, S1, S2))
        a("v_lshlrev_b32 v%d, 16, v%d" % (S1, TM))
        a("v_and_b32 v%d, 0xffff0000, v%d" % (S2, TM))
        a("v_add_f32 v%d, 0x3727c5ac, v%d" % (S2, S2))
        a("v_cvt_pk_bf16_f32 v%d, v%d, v%d" % (TM, S2, S2))
        a("v_lshlrev_b32 v%d, 16, v%d" % (S2, TM))
        a("v_sqrt_f32 v%d, v%d" % (S2, S2))
        a("s_nop 0")
        a("v_cvt_pk_bf16_f32 v%d, v%d, v%d" % (TM, S2, S2))
        a("v_lshlrev_b32 v%d, 16, v%d" % (S2, TM))
        a("v_rcp_f32 v%d, v%d" % (S2, S2))
        a("s_nop 0")
        for j in range(8):
            a("v_sub_f32 v%d, v%d, v%d" % (U + 2 * j, U + 2 * j, S1))
            a("v_sub_f32 v%d, v%d, v%d" % (U + 1 + 2 * j, U + 1 + 2 * j, S1))
            a("v_cvt_pk_bf16_f32 v%d, v%d, v%d" % (TM, U + 2 * j, U + 1 + 2 * j))
            a("v_lshlrev_b32 v%d, 16, v%d" % (TM + 1, TM))
            a("v_and_b32 v%d, 0xffff0000, v%d" % (TM + 2, TM))
            a("v_mul_f32 v%d, v%d, v%d" % (TM + 1, TM + 1, S2))
            a("v_mul_f32 v%d, v%d, v%d" % (TM + 2, TM + 2, S2))
            a("v_cvt_pk_bf16_f32 v%d, v%d, v%d" % (R + j, TM + 1, TM + 2))
        for h in range(2):
            q = i * 2 + h
            a("buffer_store_dwordx4 %s, v10, s[8:11], %s offen offset:%d sc1" % (vr(X + q * 4, 4), "s29" if q >= 4 else "0", (q % 4) * 1024))
    stamp(a, 8)
    a("s_waitcnt vmcnt(0)")
    a("s_barrier")
    stamp(a, 9)
    a("s_cmp_lg_u32 s20, 0")
    a("s_cbranch_scc1 %s_lnwait" % tag)
    a("v_mov_b32 v28, 1")
    a("s_mov_b64 exec, 1")
    a("buffer_atomic_add v28, v11, s[52:55], 0 offen sc1")
    a("s_mov_b64 exec, -1")
    a.label(tag + "_lnwait")


def g1_fused_ln(a, tag):
    a("s_cmp_lg_u32 s20, 0")
    a("s_cbranch_scc1 %s_lnbar" % tag)
    a("s_mov_b32 s29, 0")
    a.label(tag + "_lnspin")
    a("buffer_load_dword v28, v11, s[52:55], 0 offen sc1")
    a("s_waitcnt vmcnt(0)")
    a("v_readfirstlane_b32 s28, v28")
    a("s_add_u32 s29, s29, 1")
    a("s_cmp_ge_u32 s28, 32")
    a("s_cbranch_scc1 %s_lnbar" % tag)
    a("s_sleep 4")
    a("s_cmp_lt_u32 s29, 0x100000")
    a("s_cbranch_scc1 %s_lnspin" % tag)
    a.label(tag + "_lnbar")
    a("s_barrier")
    stamp(a, 10)


G1_ACC = 128
G1_FA = (32, 76)
G1_FB = (48, 92)
G1_VOA, G1_VOB = 8, 12
G1_VA = 16
G1_VB = (18, 19, 20, 21, 22, 23, 24)
G1_X = 240


def g1_common_addr(a):
    a("v_and_b32 v1, 63, v0")
    a("v_lshrrev_b32 v2, 6, v0")
    a("s_nop 0")
    a("v_readfirstlane_b32 s20, v2")
    a("v_and_b32 v3, 15, v1")
    a("v_lshrrev_b32 v4, 4, v1")


def gen_gemm1(a):
    L = "gemm1_kernel"
    kernel_head(a, L)
    a("s_cmp_ge_u32 s2, 256")
    a("s_cbranch_scc1 g1_done")
    stamp(a, 0)
    stamp_rt(a, 6)
    a("s_load_dwordx2 s[4:5], s[0:1], %d" % KA_WS)
    a("s_load_dwordx2 s[6:7], s[0:1], %d" % KA_WQKV)
    a("s_load_dwordx2 s[30:31], s[0:1], %d" % KA_W1)
    a("s_load_dwordx2 s[32:33], s[0:1], %d" % KA_WPHI)
    a("s_load_dwordx2 s[34:35], s[0:1], %d" % KA_B1)
    a("s_load_dwordx2 s[44:45], s[0:1], %d" % KA_WO)
    a("s_load_dwordx2 s[48:49], s[0:1], %d" % KA_W2)
    a("s_load_dwordx2 s[50:51], s[0:1], %d" % KA_DBG)
    a("s_load_dwordx2 s[56:57], s[0:1], %d" % KA_X)
    g1_common_addr(a)
    a("s_and_b32 s21, s2, 7")
    a("s_lshr_b32 s22, s2, 3")
    a("s_and_b32 s23, s21, 1")
    a("s_lshl_b32 s23, s23, 2")
    a("s_and_b32 s24, s22, 3")
    a("s_add_u32 s23, s23, s24")
    a("s_lshr_b32 s24, s22, 2")
    a("s_lshr_b32 s25, s21, 1")
    a("s_lshl_b32 s25, s25, 2")
    a("s_and_b32 s26, s24, 3")
    a("s_add_u32 s25, s25, s26")
    a("s_lshr_b32 s21, s20, 1")
    a("s_and_b32 s22, s20, 1")
    a("s_lshl_b32 s27, s20, 11")
    a("v_lshrrev_b32 v5, 2, v1")
    a("s_lshl_b32 s28, s23, 8")
    a("s_lshl_b32 s29, s20, 5")
    a("s_add_u32 s28, s28, s29")
    a("v_add_u32 v5, s28, v5")
    a("v_lshlrev_b32 v5, 11, v5")
    a("v_lshrrev_b32 v6, 1, v4")
    a("v_xor_b32 v7, v6, v4")
    a("v_and_b32 v7, 1, v7")
    a("v_lshl_or_b32 v6, v7, 1, v6")
    a("v_and_b32 v7, 3, v1")
    a("v_xor_b32 v7, v7, v6")
    a("v_lshl_add_u32 v%d, v7, 4, v5" % G1_VOA)
    a("v_add_u32 v%d, %d, v%d" % (G1_VOA + 1, 16 * 2048, G1_VOA))
    a("v_bfe_u32 v5, v1, 2, 2")
    a("v_lshrrev_b32 v6, 1, v5")
    a("v_xor_b32 v7, v6, v5")
    a("v_and_b32 v7, 1, v7")
    a("v_lshl_or_b32 v6, v7, 1, v6")
    a("v_xor_b32 v5, v6, v4")
    a("s_lshl_b32 s28, s21, 6")
    a("v_add_u32 v6, s28, v3")
    a("v_lshlrev_b32 v6, 6, v6")
    a("v_lshl_add_u32 v%d, v5, 4, v6" % G1_VA)
    a("v_bfe_u32 v5, v1, 2, 2")
    a("v_and_b32 v6, 1, v4")
    a("v_lshl_or_b32 v6, v6, 2, v5")
    a("v_lshl_add_u32 v5, v4, 3, v5")
    a("v_lshlrev_b32 v5, 9, v5")
    a("v_and_b32 v7, 3, v1")
    a("v_lshl_add_u32 v5, v7, 3, v5")
    a("v_add_u32 v5, 0x10000, v5")
    a("s_waitcnt lgkmcnt(0)")
    srd(a, 8, 4, WS_XN, SZ_XN)
    a("v_mov_b32 v10, 0")
    g1_ln_loads(a)
    g1_ln_compute(a, "g1")
    a("s_lshl_b32 s28, s2, 3")
    a("s_add_u32 s28, s28, s20")
    a("s_lshl_b32 s28, s28, 12")
    a("v_lshl_add_u32 v31, v1, 6, s28")
    srd(a, 40, 6, 0, D * 3 * D * 2)
    a("buffer_load_dword v30, v31, s[40:43], 0 offen")
    srd(a, 40, 30, 0, D * F * 2)
    a("buffer_load_dword v30, v31, s[40:43], 0 offen")
    a("s_cmp_ge_u32 s2, 8")
    a("s_cbranch_scc1 g1_nz")
    srd(a, 40, 4, WS_FL, SZ_FL)
    a("s_lshl_b32 s28, s2, 13")
    a("v_lshl_add_u32 v28, v0, 4, s28")
    for i in range(4):
        a("v_mov_b32 v%d, 0" % (24 + i))
    a("buffer_store_dwordx4 v[24:27], v28, s[40:43], 0 offen")
    a("s_nop 1")
    a.label("g1_nz")
    a("s_mov_b32 s16, 0")
    a("s_mov_b32 s17, 0")
    a("s_cmp_ge_u32 s24, 4")
    a("s_cbranch_scc1 g1_w1")

    def b_dma_rows(a, j):
        a("v_lshrrev_b32 v25, 5, v1")
        a("v_add_u32 v25, %d, v25" % (2 * j))
        a("s_bfe_u32 s28, s20, 0x10001")
        a("s_lshl_b32 s28, s28, 2")
        a("v_or_b32 v26, s28, v25")
        a("v_lshlrev_b32 v26, 1, v26")
        a("v_and_b32 v27, 31, v1")
        a("v_xor_b32 v26, v26, v27")
        a("s_lshl_b32 s28, s20, 2")
        a("v_add_u32 v25, s28, v25")

    NT = 6
    for tt in range(NT):
        a("s_mul_i32 s28, s22, %d" % NT)
        a("s_add_u32 s28, s28, %d" % tt)
        a("v_xor_b32 v7, s28, v6")
        a("v_lshl_add_u32 v%d, v7, 5, v5" % G1_VB[tt])
    srd(a, 12, 6, 0, D * 3 * D * 2)
    for j in range(2):
        b_dma_rows(a, j)
        a("v_lshrrev_b32 v27, 2, v26")
        a("v_cmp_le_u32 vcc, 3, v27")
        a("s_nop 1")
        a("v_cndmask_b32 v28, 0, 1, vcc")
        a("v_mul_u32_u24 v29, 3, v28")
        a("v_sub_u32 v29, v27, v29")
        a("s_lshl_b32 s28, s25, 1")
        a("v_add_u32 v28, s28, v28")
        a("v_lshlrev_b32 v28, 6, v28")
        a("v_lshl_add_u32 v28, v29, 11, v28")
        a("v_and_b32 v29, 3, v26")
        a("v_lshl_add_u32 v28, v29, 4, v28")
        a("s_movk_i32 s28, 6144")
        a("v_mul_lo_u32 v29, v25, s28")
        a("v_add_u32 v28, v28, v29")
        a("v_cmp_gt_u32 vcc, 6, v27")
        a("v_mov_b32 v29, 0x7f000000")
        a("s_nop 0")
        a("v_cndmask_b32 v%d, v29, v28, vcc" % (G1_VOB + j))
    def late_q():
        srd(a, 36, 32, 0, H * DH * DH * 2)
        a("s_lshl_b32 s28, s25, 1")
        a("s_add_u32 s28, s28, s22")
        a("s_lshl_b32 s28, s28, 11")
        a("v_lshlrev_b32 v25, 8, v4")
        a("v_lshl_add_u32 v25, v3, 1, v25")
        a("v_add_u32 v25, s28, v25")
        for ft in range(2):
            for j in range(8):
                d = (j & 3) + (16 if j >= 4 else 0)
                a("buffer_load_ushort v%d, v25, s[36:39], 0 offen offset:%d" % (224 + ft * 8 + j, d * 64 + ft * 32))
    g = Gemm(a, 4, NT, G1_ACC, G1_FA, G1_FB, G1_VA, G1_VB, G1_VOA, G1_VOB,
             lambda nt: nt < 4, 27, 16, 17, 8, 12, 64, 32 * 6144)
    g.run(32, "g1q", 18, late_q, 16)
    if "NOEPI" not in FLAGS:
        g1_qkv_epilogue(a)
    a("s_branch g1_fin")

    a.label("g1_w1")
    NT = 7
    for tt in range(NT):
        a("s_mul_i32 s28, s22, %d" % NT)
        a("s_add_u32 s28, s28, %d" % tt)
        a("v_xor_b32 v7, s28, v6")
        a("v_lshl_add_u32 v%d, v7, 5, v5" % G1_VB[tt])
    srd(a, 12, 30, 0, D * F * 2)
    for j in range(2):
        b_dma_rows(a, j)
        a("s_mul_i32 s28, s25, 448")
        a("v_lshlrev_b32 v28, 4, v26")
        a("v_add_u32 v28, s28, v28")
        a("s_movk_i32 s28, 7168")
        a("v_mul_lo_u32 v29, v25, s28")
        a("v_add_u32 v28, v28, v29")
        a("v_cmp_gt_u32 vcc, 28, v26")
        a("v_mov_b32 v29, 0x7f000000")
        a("s_nop 0")
        a("v_cndmask_b32 v%d, v29, v28, vcc" % (G1_VOB + j))
    def late_w():
        srd(a, 36, 34, 0, F * 2)
        a("s_mul_i32 s28, s25, 448")
        a("s_mul_i32 s29, s22, 224")
        a("s_add_u32 s28, s28, s29")
        a("v_lshlrev_b32 v25, 3, v4")
        a("v_add_u32 v25, s28, v25")
        for tt in range(NT):
            a("buffer_load_dwordx2 %s, v25, s[36:39], 0 offen offset:%d" % (vr(G1_X + 2 * tt, 2), tt * 32))
    g = Gemm(a, 4, NT, G1_ACC, G1_FA, G1_FB, G1_VA, G1_VB, G1_VOA, G1_VOB,
             lambda nt: True, 27, 16, 17, 8, 12, 64, 32 * 7168)
    g.run(32, "g1w", 18, late_w, 7)
    if "NOEPI" not in FLAGS:
        g1_w1_epilogue(a)
    a.label("g1_fin")
    if "STAMP" in FLAGS:
        a("s_waitcnt vmcnt(0)")
    stamp(a, 4)
    stamp_rt(a, 5)
    stamp_flush(a, 12, 0)
    a.label("g1_done")
    a("s_endpgm")
    return L, 256


def f32bits(x):
    import struct
    return struct.unpack("<I", struct.pack("<f", x))[0]


def g1_w1_epilogue(a):
    NT = 7
    RS = 240
    srd(a, 40, 4, WS_HC, SZ_HC)
    for tt in range(NT):
        for p in range(2):
            a("v_lshlrev_b32 v%d, 16, v%d" % (32 + tt * 4 + 2 * p, G1_X + 2 * tt + p))
            a("v_and_b32 v%d, 0xffff0000, v%d" % (33 + tt * 4 + 2 * p, G1_X + 2 * tt + p))
    a("s_mul_i32 s28, s20, %d" % (64 * RS))
    a("s_movk_i32 s29, %d" % RS)
    a("v_mul_lo_u32 v6, v3, s29")
    a("v_lshl_add_u32 v6, v4, 3, v6")
    a("v_add_u32 v6, s28, v6")
    a("v_subrev_u32 v7, 56, v1")
    a("v_cmp_gt_u32 vcc, 56, v1")
    a("s_nop 1")
    a("v_cndmask_b32 v7, v7, v1, vcc")
    a("v_mul_u32_u24 v8, 0x4a, v7")
    a("v_lshrrev_b32 v8, 10, v8")
    a("v_mul_u32_u24 v9, 14, v8")
    a("v_sub_u32 v9, v7, v9")
    a("v_mul_lo_u32 v7, v8, s29")
    a("v_lshl_add_u32 v7, v9, 4, v7")
    a("v_add_u32 v7, s28, v7")
    a("s_lshl_b32 s28, s23, 8")
    a("s_lshl_b32 s29, s21, 6")
    a("s_add_u32 s28, s28, s29")
    a("v_add_u32 v5, s28, v8")
    a("s_movk_i32 s28, 9216")
    a("v_mul_lo_u32 v5, v5, s28")
    a("s_mul_i32 s28, s25, 448")
    a("s_mul_i32 s29, s22, 224")
    a("s_add_u32 s28, s28, s29")
    a("v_lshl_add_u32 v9, v9, 4, s28")
    a("v_add_u32 v5, v5, v9")
    k0 = -2.0 * 0.7978845608028654 * 1.4426950408889634
    k1 = k0 * 0.044715
    a("s_mov_b32 s44, 0x%08x" % f32bits(k1))
    a("s_mov_b32 s45, 0x%08x" % f32bits(k1))
    a("s_mov_b32 s46, 1.0")
    a("s_mov_b32 s47, 1.0")
    a("v_mov_b32 v8, 0x%08x" % f32bits(k0))
    a("v_mov_b32 v9, 0x%08x" % f32bits(k0))
    a("s_barrier")

    def flush(mt):
        for j in range(4):
            a("ds_read_b128 %s, v7 offset:%d" % (vr(96 + j * 4, 4), (mt * 16 + j * 4) * RS))
        for j in range(4):
            a("s_waitcnt lgkmcnt(%d)" % (3 - j))
            a("s_mov_b32 s28, 0x%x" % ((mt * 16 + j * 4) * 9216))
            a("buffer_store_dwordx4 %s, v5, s[40:43], s28 offen%s" % (vr(96 + j * 4, 4), ST))

    for mt in range(4):
        for tt in range(NT):
            c = G1_ACC + (mt * NT + tt) * 4
            T = 64 + ((mt * NT + tt) & 1) * 16
            for p in range(2):
                a("v_pk_add_f32 %s, %s, %s" % (vr(T + 2 * p, 2), vr(c + 2 * p, 2), vr(32 + tt * 4 + 2 * p, 2)))
            for p in range(2):
                a("v_pk_mul_f32 %s, %s, %s" % (vr(T + 4 + 2 * p, 2), vr(T + 2 * p, 2), vr(T + 2 * p, 2)))
            for p in range(2):
                a("v_pk_fma_f32 %s, %s, s[44:45], v[8:9]" % (vr(T + 4 + 2 * p, 2), vr(T + 4 + 2 * p, 2)))
            for p in range(2):
                a("v_pk_mul_f32 %s, %s, %s" % (vr(T + 4 + 2 * p, 2), vr(T + 4 + 2 * p, 2), vr(T + 2 * p, 2)))
            for r in range(4):
                a("v_exp_f32 v%d, v%d" % (T + 4 + r, T + 4 + r))
            a("s_nop 0")
            for p in range(2):
                a("v_pk_add_f32 %s, %s, s[46:47]" % (vr(T + 4 + 2 * p, 2), vr(T + 4 + 2 * p, 2)))
            for r in range(4):
                a("v_rcp_f32 v%d, v%d" % (T + 4 + r, T + 4 + r))
            a("s_nop 0")
            for p in range(2):
                a("v_pk_mul_f32 %s, %s, %s" % (vr(T + 4 + 2 * p, 2), vr(T + 4 + 2 * p, 2), vr(T + 2 * p, 2)))
            a("v_cvt_pk_bf16_f32 v%d, v%d, v%d" % (T + 8, T + 4, T + 5))
            a("v_cvt_pk_bf16_f32 v%d, v%d, v%d" % (T + 9, T + 6, T + 7))
            a("ds_write_b64 v6, %s offset:%d" % (vr(T + 8, 2), mt * 16 * RS + tt * 32))
            if tt == 2 and mt > 0:
                flush(mt - 1)
        a("s_waitcnt lgkmcnt(0)")
    flush(3)


def bf16_round_pair(a, x0, x1, t):
    a("v_cvt_pk_bf16_f32 v%d, v%d, v%d" % (t, x0, x1))
    a("v_lshlrev_b32 v%d, 16, v%d" % (x0, t))
    a("v_and_b32 v%d, 0xffff0000, v%d" % (x1, t))


def xlane_g(a, op, regs, temps):
    for sw in ("v_permlane16_swap_b32", "v_permlane32_swap_b32"):
        for v, t in zip(regs, temps):
            a("v_mov_b32 v%d, v%d" % (t, v))
        a("s_nop 1")
        for v, t in zip(regs, temps):
            a("%s v%d, v%d" % (sw, v, t))
        a("s_nop 1")
        for (v, t), o in zip(zip(regs, temps), op):
            a("%s v%d, v%d, v%d" % (o, v, v, t))


def dpp16(a, ops, regs):
    for ctl in ("quad_perm:[1,0,3,2]", "quad_perm:[2,3,0,1]", "row_half_mirror", "row_mirror"):
        if len(regs) < 3:
            a("s_nop 1")
        for v, o in zip(regs, ops):
            a("%s_dpp v%d, v%d, v%d %s row_mask:0xf bank_mask:0xf" % (o, v, v, v, ctl))


def g1_softmax_batch(a, acc, WP, tt0):
    E = lambda mt: 32 + mt * 16
    FR = lambda mt: 96 + mt * 4
    MX = lambda mt: 112 + 2 * mt
    MN = lambda mt: 120 + 2 * mt
    P = lambda mt: acc(mt, tt0)
    R = range(4)
    for mt in R:
        for i in range(4):
            a("v_cvt_pk_bf16_f32 v%d, v%d, v%d" % (FR(mt) + i, P(mt) + 2 * i, P(mt) + 2 * i + 1))
    a("s_nop 1")
    for mt in R:
        for ft in range(2):
            a("v_mfma_f32_16x16x32_bf16 %s, %s, %s, 0" % (vr(P(mt) + ft * 4, 4), vr(WP[ft], 4), vr(FR(mt), 4)))
    a("s_nop 7")
    for mt in R:
        for i in range(4):
            a("v_cvt_pk_bf16_f32 v%d, v%d, v%d" % (E(mt) + i, P(mt) + 2 * i, P(mt) + 2 * i + 1))
    for mt in R:
        for i in range(4):
            a("v_lshlrev_b32 v%d, 16, v%d" % (P(mt) + 2 * i, E(mt) + i))
            a("v_and_b32 v%d, 0xffff0000, v%d" % (P(mt) + 2 * i + 1, E(mt) + i))
    for op3, op2, M in (("v_max3_f32", "v_max_f32", MX), ("v_min3_f32", "v_min_f32", MN)):
        for mt in R:
            a("%s v%d, v%d, v%d, v%d" % (op3, M(mt), P(mt), P(mt) + 1, P(mt) + 2))
        for mt in R:
            a("%s v%d, v%d, v%d, v%d" % (op3, M(mt), M(mt), P(mt) + 3, P(mt) + 4))
        for mt in R:
            a("%s v%d, v%d, v%d, v%d" % (op3, M(mt), M(mt), P(mt) + 5, P(mt) + 6))
        for mt in R:
            a("%s v%d, v%d, v%d" % (op2, M(mt), M(mt), P(mt) + 7))

    def xl(opx, opn):
        regs = [(MX(mt), opx) for mt in R] + [(MN(mt), opn) for mt in R]
        for sw in ("v_permlane16_swap_b32", "v_permlane32_swap_b32"):
            for v, o in regs:
                a("v_mov_b32 v%d, v%d" % (v + 1, v))
            a("s_nop 0")
            for v, o in regs:
                a("%s v%d, v%d" % (sw, v, v + 1))
            a("s_nop 0")
            for v, o in regs:
                a("%s v%d, v%d, v%d" % (o, v, v, v + 1))
    xl("v_max_f32", "v_min_f32")
    for mt in R:
        a("v_mul_f32 v%d, s48, v%d" % (MX(mt), MX(mt)))
        a("v_mul_f32 v%d, s48, v%d" % (MN(mt), MN(mt)))
    for mt in R:
        for i in range(4):
            a("v_pk_fma_f32 %s, %s, s[48:49], %s op_sel_hi:[1,1,0] neg_lo:[0,0,1] neg_hi:[0,0,1]" % (
                vr(E(mt) + 2 * i, 2), vr(P(mt) + 2 * i, 2), vr(MX(mt), 2)))
            a("v_pk_fma_f32 %s, %s, s[48:49], %s op_sel_hi:[1,1,0] neg_lo:[1,0,0] neg_hi:[1,0,0]" % (
                vr(E(mt) + 8 + 2 * i, 2), vr(P(mt) + 2 * i, 2), vr(MN(mt), 2)))
    for mt in R:
        for i in range(16):
            a("v_exp_f32 v%d, v%d" % (E(mt) + i, E(mt) + i))
    a("s_nop 0")
    for M, o in ((MX, 0), (MN, 8)):
        for mt in R:
            a("v_pk_add_f32 %s, %s, %s" % (vr(M(mt), 2), vr(E(mt) + o, 2), vr(E(mt) + o + 2, 2)))
        for mt in R:
            a("v_pk_add_f32 %s, %s, %s" % (vr(M(mt), 2), vr(M(mt), 2), vr(E(mt) + o + 4, 2)))
        for mt in R:
            a("v_pk_add_f32 %s, %s, %s" % (vr(M(mt), 2), vr(M(mt), 2), vr(E(mt) + o + 6, 2)))
        for mt in R:
            a("v_add_f32 v%d, v%d, v%d" % (M(mt), M(mt), M(mt) + 1))
    xl("v_add_f32", "v_add_f32")
    for mt in R:
        a("v_rcp_f32 v%d, v%d" % (MX(mt), MX(mt)))
        a("v_rcp_f32 v%d, v%d" % (MN(mt), MN(mt)))
    a("s_nop 0")
    for mt in R:
        for i in range(4):
            a("v_pk_mul_f32 %s, %s, %s op_sel_hi:[1,0]" % (vr(E(mt) + 2 * i, 2), vr(E(mt) + 2 * i, 2), vr(MX(mt), 2)))
            a("v_pk_mul_f32 %s, %s, %s op_sel_hi:[1,0]" % (vr(E(mt) + 8 + 2 * i, 2), vr(E(mt) + 8 + 2 * i, 2), vr(MN(mt), 2)))
    for mt in R:
        for i in range(8):
            a("v_cvt_pk_bf16_f32 v%d, v%d, v%d" % (P(mt) + i, E(mt) + 2 * i, E(mt) + 2 * i + 1))


def g1_qkv_epilogue(a):
    NT = 6
    WP = (G1_X, G1_X + 4)
    KS = 160
    SH = 98304

    def acc(mt, tt):
        return G1_ACC + (mt * NT + tt) * 4

    srd(a, 40, 4, WS_PQ, SZ_PQ)
    srd(a, 44, 4, WS_KV, SZ_KV)
    a("s_mov_b32 s48, 0x%08x" % LOG2E)
    a("s_mov_b32 s49, 0x%08x" % LOG2E)
    a("s_mul_i32 s50, s20, 12288")
    for i in range(8):
        a("v_lshl_or_b32 v%d, v%d, 16, v%d" % (G1_X + i, 224 + 2 * i + 1, 224 + 2 * i))
    a("s_movk_i32 s28, %d" % KS)
    a("v_mul_lo_u32 v5, v3, s28")
    a("v_lshl_add_u32 v5, v4, 3, v5")
    a("v_add_u32 v5, s50, v5")
    a("v_bfe_u32 v6, v1, 2, 2")
    a("v_lshl_add_u32 v6, v4, 2, v6")
    a("v_mul_lo_u32 v6, v6, s28")
    a("v_and_b32 v7, 3, v1")
    a("v_lshl_add_u32 v6, v7, 3, v6")
    a("v_add_u32 v6, s50, v6")
    a("v_lshlrev_b32 v7, 4, v1")
    a("s_barrier")
    g1_softmax_batch(a, acc, WP, 2)
    for mt in range(4):
        for q in range(4):
            a("ds_write_b64 v5, %s offset:%d" % (vr(acc(mt, 2) + 2 * q, 2), mt * 16 * KS + q * 32))
    KV, AF, BF, ONE = 64, 32, 112, 16
    for u in range(2):
        for dt in range(2):
            for hf in range(2):
                for p in range(2):
                    c = acc(2 * u + hf, 4 + dt) + 2 * p
                    a("v_cvt_pk_bf16_f32 v%d, v%d, v%d" % (BF + (u * 2 + dt) * 4 + hf * 2 + p, c, c + 1))
    for i in range(4):
        a("v_mov_b32 v%d, 0x3f803f80" % (ONE + i))
    a("s_waitcnt lgkmcnt(0)")
    for u in range(2):
        for fq in range(4):
            for hf in range(2):
                a("ds_read_b64_tr_b16 %s, v6 offset:%d" % (vr(AF + (u * 4 + fq) * 4 + hf * 2, 2), (2 * u + hf) * 16 * KS + fq * 32))
    a("s_waitcnt lgkmcnt(8)")
    for u in range(2):
        if u == 1:
            a("s_waitcnt lgkmcnt(0)")
        for fq in range(4):
            for t in range(3):
                c = KV + (fq * 2 + t) * 4 if t < 2 else KV + (8 + fq) * 4
                b = BF + (u * 2 + t) * 4 if t < 2 else ONE
                a("v_mfma_f32_16x16x32_bf16 %s, %s, %s, %s" % (vr(c, 4), vr(AF + (u * 4 + fq) * 4, 4), vr(b, 4), vr(c, 4) if u else "0"))
    a("v_add_u32 v8, s50, v7")
    a("s_nop 7")
    for t in range(12):
        a("ds_write_b128 v8, %s offset:%d" % (vr(KV + t * 4, 4), t * 1024))
    a("s_lshr_b32 s28, s20, 2")
    a("s_mul_i32 s28, s28, 12288")
    a("s_and_b32 s29, s20, 3")
    a("s_mul_i32 s29, s29, 3072")
    a("s_add_u32 s28, s28, s29")
    a("v_add_u32 v8, s28, v7")
    a("v_add_u32 v9, 0xc000, v8")
    a("s_lshl_b32 s28, s25, 3")
    a("s_add_u32 s28, s28, s23")
    a("s_mul_i32 s28, s28, 24")
    a("s_mul_i32 s29, s20, 3")
    a("s_add_u32 s28, s28, s29")
    a("s_lshl_b32 s28, s28, 10")
    a("v_add_u32 v10, s28, v7")
    a("s_waitcnt lgkmcnt(0)")
    a("s_barrier")
    for wm in range(4):
        for i in range(3):
            a("ds_read_b128 %s, %s offset:%d" % (vr(32 + (wm * 3 + i) * 4, 4), "v9" if wm >= 2 else "v8", (wm & 1) * 24576 + i * 1024))
    a("s_waitcnt lgkmcnt(0)")
    for wm in range(1, 4):
        for i in range(6):
            a("v_pk_add_f32 %s, %s, %s" % (vr(32 + 2 * i, 2), vr(32 + 2 * i, 2), vr(32 + wm * 12 + 2 * i, 2)))
    for i in range(3):
        a("buffer_store_dwordx4 %s, v10, s[44:47], 0 offen offset:%d%s" % (vr(32 + i * 4, 4), i * 1024, ST))
    a("s_nop 1")
    g1_softmax_batch(a, acc, WP, 0)
    a("s_lshl_b32 s28, s25, 3")
    a("s_add_u32 s28, s28, s23")
    a("s_lshl_b32 s28, s28, 3")
    a("s_add_u32 s28, s28, s20")
    a("s_lshl_b32 s28, s28, 13")
    a("v_add_u32 v10, s28, v7")
    a("s_movk_i32 s29, 4096")
    for mt in range(4):
        for kk in range(2):
            q = mt * 2 + kk
            a("buffer_store_dwordx4 %s, v10, s[40:43], %s offen offset:%d%s" % (vr(acc(mt, 0) + kk * 4, 4), "s29" if q >= 4 else "0", (q % 4) * 1024, ST))


def g2_apply(a):
    SH = 98304

    def acc(mt, tt):
        return 128 + mt * 8

    a("s_and_b32 s57, s2, 15")
    a("s_lshr_b32 s58, s2, 4")
    a("s_lshr_b32 s59, s20, 1")
    a("s_and_b32 s38, s20, 1")
    srd(a, 48, 4, WS_PQ, SZ_PQ)
    srd(a, 52, 4, WS_KV, SZ_KV)
    a("s_mul_i32 s56, s20, 12288")
    a("v_lshlrev_b32 v7, 4, v1")
    a("s_lshl_b32 s28, s57, 3")
    a("s_add_u32 s28, s28, s58")
    a("s_lshl_b32 s28, s28, 3")
    a("s_add_u32 s28, s28, s20")
    a("s_lshl_b32 s28, s28, 13")
    a("v_add_u32 v10, s28, v7")
    a("s_movk_i32 s29, 4096")
    for q in range(8):
        a("buffer_load_dwordx4 %s, v10, s[48:51], %s offen offset:%d" % (vr(128 + q * 4, 4), "s29" if q >= 4 else "0", (q % 4) * 1024))
    a("s_mul_i32 s28, s57, %d" % (8 * 24))
    a("s_mul_i32 s29, s20, 3")
    a("s_add_u32 s28, s28, s29")
    a("s_lshl_b32 s28, s28, 10")
    a("v_add_u32 v10, s28, v7")
    for rb in range(8):
        a("s_mov_b32 s28, 0x%x" % (rb * 24576))
        for i in range(3):
            a("buffer_load_dwordx4 %s, v10, s[52:55], s28 offen offset:%d" % (vr(32 + (rb * 3 + i) * 4, 4), i * 1024))
    a("s_mul_i32 s28, s20, 1536")
    a("s_add_u32 s28, s28, %d" % SH)
    a("v_lshl_add_u32 v8, v1, 3, s28")
    a("s_mul_i32 s28, s38, 6144")
    a("s_add_u32 s28, s28, %d" % SH)
    a("v_lshl_add_u32 v9, v1, 3, s28")
    for rb in range(1, 8):
        a("s_waitcnt vmcnt(%d)" % ((7 - rb) * 3))
        for i in range(6):
            a("v_pk_add_f32 %s, %s, %s" % (vr(32 + 2 * i, 2), vr(32 + 2 * i, 2), vr(32 + rb * 12 + 2 * i, 2)))
    for i in range(6):
        a("v_cvt_pk_bf16_f32 v%d, v%d, v%d" % (16 + i, 32 + 2 * i, 33 + 2 * i))
    for i in range(3):
        a("ds_write_b64 v8, %s offset:%d" % (vr(16 + 2 * i, 2), i * 512))
    a("s_waitcnt lgkmcnt(0)")
    a("s_barrier")
    for t in range(3):
        for kk in range(2):
            for hf in range(2):
                fq = 2 * kk + hf
                tile = fq * 2 + t if t < 2 else 8 + fq
                a("ds_read_b64 %s, v9 offset:%d" % (vr(32 + (t * 2 + kk) * 4 + hf * 2, 2), tile * 512))
    a("s_movk_i32 s28, 80")
    a("v_mul_lo_u32 v5, v3, s28")
    a("v_lshl_add_u32 v5, v4, 3, v5")
    a("v_add_u32 v5, s56, v5")
    a("v_lshrrev_b32 v12, 2, v1")
    a("v_mul_lo_u32 v6, v12, s28")
    a("v_and_b32 v13, 3, v1")
    a("v_lshl_add_u32 v6, v13, 4, v6")
    a("v_add_u32 v6, s56, v6")
    a("s_lshl_b32 s28, s58, 8")
    a("s_lshl_b32 s29, s59, 6")
    a("s_add_u32 s28, s28, s29")
    a("v_add_u32 v12, s28, v12")
    a("s_movk_i32 s28, 9216")
    a("v_mul_lo_u32 v12, v12, s28")
    a("s_lshl_b32 s28, s57, 1")
    a("s_add_u32 s28, s28, s38")
    a("s_lshl_b32 s28, s28, 6")
    a("s_add_u32 s28, s28, 7168")
    a("v_lshl_add_u32 v13, v13, 4, s28")
    a("v_add_u32 v12, v12, v13")
    a("s_waitcnt lgkmcnt(0)")
    for kk in range(2):
        for mt in range(4):
            for t in range(3):
                c = 64 + (mt * 3 + t) * 4
                a("v_mfma_f32_16x16x32_bf16 %s, %s, %s, %s" % (vr(c, 4), vr(32 + (t * 2 + kk) * 4, 4), vr(acc(mt, 0) + kk * 4, 4), vr(c, 4) if kk else "0"))
    a("s_nop 7")
    R = range(4)
    for mt in R:
        a("v_cvt_pk_bf16_f32 v%d, v%d, v%d" % (112 + 2 * mt, 72 + mt * 12, 72 + mt * 12))
    for mt in R:
        a("v_lshlrev_b32 v%d, 16, v%d" % (112 + 2 * mt, 112 + 2 * mt))
    for mt in R:
        a("v_add_f32 v%d, 0x358637bd, v%d" % (112 + 2 * mt, 112 + 2 * mt))
    for mt in R:
        a("v_cvt_pk_bf16_f32 v%d, v%d, v%d" % (112 + 2 * mt, 112 + 2 * mt, 112 + 2 * mt))
    for mt in R:
        a("v_lshlrev_b32 v%d, 16, v%d" % (112 + 2 * mt, 112 + 2 * mt))
    for mt in R:
        a("v_rcp_f32 v%d, v%d" % (112 + 2 * mt, 112 + 2 * mt))
    for mt in R:
        for i in range(4):
            a("v_cvt_pk_bf16_f32 v%d, v%d, v%d" % (16 + i, 64 + mt * 12 + 2 * i, 65 + mt * 12 + 2 * i))
        for i in range(4):
            a("v_lshlrev_b32 v%d, 16, v%d" % (64 + mt * 12 + 2 * i, 16 + i))
            a("v_and_b32 v%d, 0xffff0000, v%d" % (65 + mt * 12 + 2 * i, 16 + i))
        for i in range(4):
            a("v_pk_mul_f32 %s, %s, %s op_sel_hi:[1,0]" % (vr(64 + mt * 12 + 2 * i, 2), vr(64 + mt * 12 + 2 * i, 2), vr(112 + 2 * mt, 2)))
        for i in range(4):
            a("v_cvt_pk_bf16_f32 v%d, v%d, v%d" % (20 + (mt & 1) * 4 + i, 64 + mt * 12 + 2 * i, 65 + mt * 12 + 2 * i))
        for dt in range(2):
            a("ds_write_b64 v5, %s offset:%d" % (vr(20 + (mt & 1) * 4 + 2 * dt, 2), mt * 16 * 80 + dt * 32))
    a("s_waitcnt lgkmcnt(0)")
    for j in range(4):
        a("ds_read_b128 %s, v6 offset:%d" % (vr(32 + j * 4, 4), j * 16 * 80))
    for j in range(4):
        a("s_waitcnt lgkmcnt(%d)" % (3 - j))
        a("s_mov_b32 s28, 0x%x" % (j * 16 * 9216))
        a("buffer_store_dwordx4 %s, v12, s[8:11], s28 offen sc1" % vr(32 + j * 4, 4))
    a("s_barrier")


def g2_apply_signal(a):
    a("s_lshr_b32 s28, s2, 4")
    a("s_lshl_b32 s28, s28, 8")
    a("s_add_u32 s28, s28, 32768")
    a("v_mov_b32 v28, s28")
    a("s_waitcnt vmcnt(16)")
    a("s_barrier")
    a("s_cmp_lg_u32 s20, 0")
    a("s_cbranch_scc1 g2_ap_sig")
    a("v_mov_b32 v29, 1")
    a("s_mov_b64 exec, 1")
    a("buffer_atomic_add v29, v28, s[44:47], 0 offen sc1")
    a("s_mov_b64 exec, -1")
    a.label("g2_ap_sig")


def gen_apply(a):
    L = "apply_kernel"
    kernel_head(a, L)
    a("s_cmp_ge_u32 s2, 256")
    a("s_cbranch_scc1 ap_done")
    a("s_load_dwordx2 s[4:5], s[0:1], %d" % KA_WS)
    a("v_and_b32 v1, 63, v0")
    a("v_lshrrev_b32 v2, 6, v0")
    a("v_and_b32 v3, 15, v1")
    a("v_lshrrev_b32 v4, 4, v1")
    a("s_and_b32 s20, s2, 31")
    a("s_lshr_b32 s21, s2, 5")
    a("s_waitcnt lgkmcnt(0)")
    srd(a, 8, 4, WS_KV, SZ_KV)
    srd(a, 12, 4, WS_PQ, SZ_PQ)
    srd(a, 16, 4, WS_HC, SZ_HC)
    a("s_lshl_b32 s22, s20, 11")
    a("s_lshl_b32 s23, s21, 8")
    a("s_add_u32 s22, s22, s23")
    a("v_lshl_add_u32 v5, v2, 6, v3")
    a("v_add_u32 v5, s22, v5")
    a("v_lshlrev_b32 v5, 7, v5")
    a("v_lshl_add_u32 v5, v4, 4, v5")
    for st in range(4):
        for kk in range(2):
            if st < 2:
                a("buffer_load_dwordx4 %s, v5, s[12:15], 0 offen offset:%d" % (vr(64 + (st * 2 + kk) * 4, 4), st * 2048 + kk * 64))
            else:
                a("s_movk_i32 s24, 4096")
                a("buffer_load_dwordx4 %s, v5, s[12:15], s24 offen offset:%d" % (vr(64 + (st * 2 + kk) * 4, 4), (st - 2) * 2048 + kk * 64))
    a("s_lshl_b32 s22, s20, 14")
    a("v_lshlrev_b32 v6, 5, v0")
    a("v_add_u32 v6, s22, v6")
    for rb in range(8):
        a("s_mov_b32 s24, 0x%x" % (rb << 19))
        a("buffer_load_dwordx4 %s, v6, s[8:11], s24 offen" % vr(96 + rb * 8, 4))
        a("buffer_load_dwordx4 %s, v6, s[8:11], s24 offen offset:16" % vr(100 + rb * 8, 4))
    a("v_and_b32 v7, 7, v0")
    a("v_lshlrev_b32 v7, 5, v7")
    a("v_add_u32 v7, s22, v7")
    for rb in range(8):
        a("s_mov_b32 s24, 0x%x" % ((rb << 19) + 8192))
        a("buffer_load_dwordx4 %s, v7, s[8:11], s24 offen" % vr(160 + rb * 8, 4))
        a("buffer_load_dwordx4 %s, v7, s[8:11], s24 offen offset:16" % vr(164 + rb * 8, 4))
    a("s_waitcnt vmcnt(0)")
    for base in (96, 160):
        for rb in range(1, 8):
            for i in range(8):
                a("v_add_f32 v%d, v%d, v%d" % (base + i, base + i, base + rb * 8 + i))
    for i in range(4):
        a("v_cvt_pk_bf16_f32 v%d, v%d, v%d" % (8 + i, 96 + 2 * i, 97 + 2 * i))
        a("v_cvt_pk_bf16_f32 v%d, v%d, v%d" % (12 + i, 160 + 2 * i, 161 + 2 * i))
    a("v_lshlrev_b32 v6, 4, v0")
    a("ds_write_b128 v6, v[8:11]")
    a("v_and_b32 v7, 7, v0")
    a("v_lshlrev_b32 v7, 4, v7")
    a("ds_write_b128 v7, v[12:15] offset:4096")
    a("s_waitcnt lgkmcnt(0)")
    a("s_barrier")
    a("v_lshlrev_b32 v6, 7, v3")
    a("v_lshl_add_u32 v6, v4, 4, v6")
    a("v_lshlrev_b32 v7, 4, v4")
    for dt in range(2):
        for kk in range(2):
            a("ds_read_b128 %s, v6 offset:%d" % (vr(8 + (dt * 2 + kk) * 4, 4), dt * 2048 + kk * 64))
    for kk in range(2):
        a("ds_read_b128 %s, v7 offset:%d" % (vr(24 + kk * 4, 4), 4096 + kk * 64))
    a("s_lshl_b32 s23, s21, 8")
    a("v_lshl_add_u32 v5, v2, 6, v3")
    a("v_add_u32 v5, s23, v5")
    a("s_movk_i32 s24, 9216")
    a("v_mul_lo_u32 v5, v5, s24")
    a("s_lshl_b32 s23, s20, 6")
    a("s_add_u32 s23, s23, 7168")
    a("v_lshl_add_u32 v6, v4, 3, s23")
    a("v_add_u32 v5, v5, v6")
    a("s_waitcnt lgkmcnt(0)")
    for st in range(4):
        C = 96 + st * 12
        for t in range(3):
            a("v_mfma_f32_16x16x32_bf16 %s, %s, %s, 0" % (vr(C + t * 4, 4), vr(8 + t * 8, 4), vr(64 + st * 8, 4)))
        for t in range(3):
            a("v_mfma_f32_16x16x32_bf16 %s, %s, %s, %s" % (vr(C + t * 4, 4), vr(12 + t * 8, 4), vr(68 + st * 8, 4), vr(C + t * 4, 4)))
    a("s_nop 7")
    a("s_nop 7")
    for st in range(4):
        C = 96 + st * 12
        a("v_cvt_pk_bf16_f32 v32, v%d, v%d" % (C + 8, C + 8))
        a("v_lshlrev_b32 v32, 16, v32")
        a("v_add_f32 v32, 0x358637bd, v32")
        a("v_cvt_pk_bf16_f32 v32, v32, v32")
        a("v_lshlrev_b32 v32, 16, v32")
        a("v_rcp_f32 v32, v32")
        for i in range(4):
            bf16_round_pair(a, C + 2 * i, C + 2 * i + 1, 33)
        for i in range(8):
            a("v_mul_f32 v%d, v%d, v32" % (C + i, C + i))
        for i in range(4):
            a("v_cvt_pk_bf16_f32 v%d, v%d, v%d" % (40 + st * 4 + i, C + 2 * i, C + 2 * i + 1))
        a("buffer_store_dwordx2 %s, v5, s[16:19], 0 offen" % vr(40 + st * 4, 2))
        a("buffer_store_dwordx2 %s, v5, s[16:19], 0 offen offset:32" % vr(42 + st * 4, 2))
        if st < 3:
            a("v_add_u32 v5, %d, v5" % (16 * 9216))
    a.label("ap_done")
    a("s_endpgm")
    return L, 224


G2_ACC = 128
G2_FA = (32, 64)
G2_FB = (48, 80)
G2_VA = 16
G2_VB = (18, 19, 20, 21)
G2_N0 = int(os.environ.get("G2_N0", "24"))
G2_DMAPOS = (1, 5, 9, 13)


def g2_mfmas(st):
    out = []
    for mt in range(4):
        for nt in range(4):
            c = G2_ACC + (mt * 4 + nt) * 4
            out.append("v_mfma_f32_16x16x32_bf16 %s, %s, %s, %s" % (
                vr(c, 4), vr(G2_FB[st] + nt * 4, 4), vr(G2_FA[st] + mt * 4, 4), vr(c, 4)))
    return out


def g2_reads(st, buf):
    out = []
    for mt in range(4):
        out.append(["ds_read_b128 %s, %s offset:%d" % (vr(G2_FA[st] + mt * 4, 4), vr(G2_VA), buf * 16384 + mt * 2048)])
    for nt in range(4):
        for rd in range(2):
            out.append(["ds_read_b64_tr_b16 %s, %s offset:%d" % (vr(G2_FB[st] + nt * 4 + rd * 2, 2), vr(G2_VB[nt]), buf * 16384 + rd * 1024)])
    return out


def g2_dmas(buf):
    out = [["s_cmp_eq_u32 s19, 0",
            "s_cselect_b32 s12, s30, s12",
            "s_cselect_b32 s13, s31, s13",
            "s_cselect_b32 s14, 0x%x, s14" % (D * D * 2),
            "s_cselect_b32 s17, 0, s17",
            "s_sub_u32 s19, s19, 1"]]
    for j in range(2):
        out.append(["s_add_u32 m0, s27, %d" % (buf * 16384 + j * 1024),
                    "s_nop 0",
                    "buffer_load_dwordx4 v%d, s[8:11], s16 offen%s lds" % (8 + j, "" if "NOSC1A" in FLAGS else " sc1")])
    for j in range(2):
        out.append(["s_add_u32 m0, s27, %d" % (65536 + buf * 16384 + j * 1024),
                    "s_nop 0",
                    "buffer_load_dwordx4 v%d, s[12:15], s17 offen lds" % (12 + j)])
    out.append(["s_add_u32 s16, s16, 128", "s_add_u32 s17, s17, %d" % (64 * 2048)])
    return out


def g2_iter(a, i, dma, nxt, vm):
    slots = {}
    if dma and "NODMA" not in FLAGS:
        d = g2_dmas(i % 4)
        slots.setdefault(0, []).append(d[0])
        for j in range(4):
            slots.setdefault(G2_DMAPOS[j], []).append(d[1 + j])
        slots.setdefault(G2_DMAPOS[3], []).append(d[5])
    if nxt:
        r = g2_reads((i + 1) & 1, (i + 1) % 4)
        pos = [p for p in range(16) if p not in G2_DMAPOS][:12]
        for p, x in zip(pos, r):
            slots.setdefault(p, []).append(x)
    place(a, g2_mfmas(i & 1), slots)
    if nxt:
        if vm is None:
            a("s_waitcnt lgkmcnt(0)")
        else:
            a("s_waitcnt vmcnt(%d) lgkmcnt(0)" % vm)
        a("s_barrier")


def gen_gemm2(a):
    L = "gemm2_kernel"
    kernel_head(a, L)
    a("s_cmp_ge_u32 s2, 256")
    a("s_cbranch_scc1 g2_done")
    stamp(a, 0)
    stamp_rt(a, 6)
    a("s_load_dwordx2 s[4:5], s[0:1], %d" % KA_WS)
    a("s_load_dwordx2 s[6:7], s[0:1], %d" % KA_W2)
    a("s_load_dwordx2 s[30:31], s[0:1], %d" % KA_WO)
    a("s_load_dwordx2 s[32:33], s[0:1], %d" % KA_X)
    a("s_load_dwordx2 s[34:35], s[0:1], %d" % KA_B2)
    a("s_load_dwordx2 s[36:37], s[0:1], %d" % KA_OUT)
    g1_common_addr(a)
    a("s_and_b32 s21, s2, 7")
    a("s_lshr_b32 s23, s2, 7")
    a("s_bfe_u32 s24, s2, 0x20003")
    a("s_and_b32 s25, s21, 3")
    a("s_lshl_b32 s25, s25, 2")
    a("s_add_u32 s24, s24, s25")
    a("s_bfe_u32 s25, s2, 0x20005")
    a("s_lshr_b32 s26, s21, 2")
    a("s_lshl_b32 s26, s26, 2")
    a("s_add_u32 s25, s25, s26")
    if "SAMETILE" in FLAGS:
        a("s_mov_b32 s24, 0")
        a("s_mov_b32 s25, 0")
        a("s_mov_b32 s23, 0")
    a("s_lshr_b32 s21, s20, 2")
    a("s_bfe_u32 s22, s20, 0x10001")
    a("s_and_b32 s26, s20, 1")
    a("s_lshl_b32 s27, s20, 11")
    a("s_waitcnt lgkmcnt(0)")
    srd(a, 8, 4, WS_HC, SZ_HC)
    srd(a, 44, 4, WS_FL, SZ_FL)
    a("s_cmp_lg_u32 s23, 0")
    a("s_cbranch_scc1 g2_noapply")
    g2_apply(a)
    a.label("g2_noapply")
    a("v_lshrrev_b32 v5, 3, v1")
    a("s_lshl_b32 s28, s24, 7")
    a("s_lshl_b32 s29, s20, 4")
    a("s_add_u32 s28, s28, s29")
    a("v_add_u32 v5, s28, v5")
    a("s_movk_i32 s28, 9216")
    a("v_mul_lo_u32 v5, v5, s28")
    a("v_and_b32 v6, 7, v1")
    for j in range(2):
        a("v_add_u32 v7, %d, v4" % (4 * j))
        a("v_and_b32 v7, 7, v7")
        a("v_xor_b32 v7, v7, v6")
        a("v_lshl_add_u32 v7, v7, 4, v5")
        a("v_add_u32 v%d, %d, v7" % (8 + j, j * 8 * 9216))
    a("s_lshl_b32 s28, s20, 3")
    a("v_add_u32 v5, s28, v4")
    a("v_lshlrev_b32 v5, 11, v5")
    a("s_lshl_b32 s28, s25, 8")
    a("v_add_u32 v5, s28, v5")
    a("s_lshl_b32 s28, s26, 2")
    a("v_or_b32 v7, s28, v4")
    a("v_lshlrev_b32 v7, 1, v7")
    a("v_xor_b32 v7, v7, v3")
    a("v_lshl_add_u32 v12, v7, 4, v5")
    a("v_add_u32 v13, %d, v12" % (4 * 2048))
    a("s_lshl_b32 s28, s21, 2")
    a("v_add_u32 v5, s28, v4")
    a("v_lshrrev_b32 v6, 1, v3")
    a("v_xor_b32 v5, v5, v6")
    a("s_lshl_b32 s28, s22, 6")
    a("v_add_u32 v6, s28, v3")
    a("v_lshlrev_b32 v6, 7, v6")
    a("v_lshl_add_u32 v%d, v5, 4, v6" % G2_VA)
    a("v_bfe_u32 v5, v1, 2, 2")
    a("v_and_b32 v6, 1, v4")
    a("v_lshl_or_b32 v6, v6, 2, v5")
    a("v_lshl_add_u32 v5, v4, 3, v5")
    a("s_lshl_b32 s28, s21, 5")
    a("v_add_u32 v5, s28, v5")
    a("v_lshlrev_b32 v5, 8, v5")
    a("v_and_b32 v7, 3, v1")
    a("v_lshl_add_u32 v5, v7, 3, v5")
    a("v_add_u32 v5, 0x10000, v5")
    for nt in range(4):
        a("s_lshl_b32 s28, s26, 2")
        a("s_add_u32 s28, s28, %d" % nt)
        a("v_xor_b32 v7, s28, v6")
        a("v_lshl_add_u32 v%d, v7, 5, v5" % G2_VB[nt])
    srd(a, 12, 6, 0, F * D * 2)
    a("s_and_b32 s31, s31, 0xffff")
    a("s_mul_i32 s16, s23, %d" % (G2_N0 * 64 * 2))
    a("s_mul_i32 s17, s23, %d" % (G2_N0 * 64 * 2048))
    a("s_mov_b32 s19, 1000")
    a("s_mov_b32 s18, %d" % ((G2_N0 - 4) // 4))
    a("s_cmp_eq_u32 s23, 1")
    a("s_cselect_b32 s19, %d, s19" % (56 - G2_N0))
    a("s_cselect_b32 s18, %d, s18" % ((72 - G2_N0 - 4) // 4))
    a("s_cselect_b32 s3, %d, 0" % ((72 - G2_N0 - 4) // 4 - (56 - G2_N0 - 4) // 4))
    a("s_lshr_b32 s28, s24, 1")
    a("s_lshl_b32 s28, s28, 8")
    a("s_add_u32 s28, s28, 32768")
    a("v_mov_b32 v27, s28")
    srd(a, 40, 4, WS_P, SZ_P)
    a("s_lshl_b32 s28, s24, 3")
    a("s_add_u32 s28, s28, s25")
    a("s_lshl_b32 s38, s28, 8")
    a("s_lshl_b32 s39, s28, 16")
    a("s_lshl_b32 s28, s20, 13")
    a("s_add_u32 s39, s39, s28")
    a("v_mov_b32 v22, s38")
    a("v_lshlrev_b32 v24, 4, v1")
    a("v_add_u32 v24, s39, v24")
    a("s_movk_i32 s39, 4096")
    srd(a, 48, 32, 0, S * D * 2)
    srd(a, 52, 34, 0, D * 2)
    srd(a, 56, 36, 0, S * D * 2)
    a("s_lshl_b32 s28, s24, 7")
    a("s_lshl_b32 s29, s20, 4")
    a("s_add_u32 s28, s28, s29")
    a("v_add_u32 v25, s28, v4")
    a("v_lshlrev_b32 v25, 11, v25")
    a("s_lshl_b32 s28, s25, 8")
    a("v_lshl_add_u32 v26, v3, 4, s28")
    a("v_add_u32 v25, v25, v26")
    for st in range(4):
        for f in g2_dmas(st):
            for x in f:
                a(x)
    for i in range(64):
        a("v_mov_b32 v%d, 0" % (G2_ACC + i))
    a("s_cmp_lg_u32 s23, 0")
    a("s_cbranch_scc1 g2_nosig")
    g2_apply_signal(a)
    a.label("g2_nosig")
    stamp(a, 1)
    a("s_waitcnt vmcnt(12)")
    a("s_barrier")
    stamp(a, 2)
    for f in g2_reads(0, 0):
        for x in f:
            a(x)
    a("s_waitcnt vmcnt(8) lgkmcnt(0)")
    a("s_barrier")
    a("v_mov_b32 v23, 0")
    a.label("g2_loop")
    a("s_cmp_eq_u32 s18, s3")
    a("s_cbranch_scc1 g2_opoll")
    a("s_add_u32 s28, s3, 1")
    a("s_cmp_lg_u32 s18, s28")
    a("s_cbranch_scc1 g2_loop2")
    a("buffer_load_dword v23, v27, s[44:47], 0 offen sc1")
    a.label("g2_loop2")
    for i in range(4):
        g2_iter(a, i, True, True, 8)
    a("s_sub_u32 s18, s18, 1")
    a("s_cmp_lg_u32 s18, 0")
    a("s_cbranch_scc1 g2_loop")
    stamp(a, 8)
    a("buffer_load_dword v23, v22, s[44:47], 0 offen sc1")
    g2_iter(a, 0, False, True, 5)
    a("s_cmp_eq_u32 s23, 0")
    a("s_cbranch_scc1 g2_pubtail")
    for j in range(4):
        a("s_mov_b32 s38, 0x%x" % (j * 4 * 2048))
        a("buffer_load_dwordx4 %s, v25, s[48:51], s38 offen" % vr(224 + j * 4, 4))
    a("buffer_load_dwordx4 v[240:243], v26, s[52:55], 0 offen")
    g2_iter(a, 1, False, True, 5)
    stamp(a, 7)
    a("s_mov_b32 s29, 0")
    a("s_branch g2_chk")
    a.label("g2_spin")
    a("buffer_load_dword v23, v22, s[44:47], 0 offen sc1")
    a("s_waitcnt vmcnt(0)")
    a.label("g2_chk")
    a("v_readfirstlane_b32 s28, v23")
    a("s_add_u32 s29, s29, 1")
    a("s_cmp_ge_u32 s28, 1")
    a("s_cbranch_scc1 g2_go")
    a("s_sleep 2")
    a("s_cmp_lt_u32 s29, 0x100000")
    a("s_cbranch_scc1 g2_spin")
    a.label("g2_go")
    stamp(a, 9)
    for t in range(8):
        a("buffer_load_dwordx4 %s, v24, s[40:43], %s offen offset:%d sc1" % (vr(192 + t * 4, 4), "s39" if t >= 4 else "0", (t % 4) * 1024))
    a("s_branch g2_tail")
    a.label("g2_pubtail")
    g2_iter(a, 1, False, True, 0)
    a.label("g2_tail")
    g2_iter(a, 2, False, True, None)
    g2_iter(a, 3, False, False, None)
    stamp(a, 3)
    a("s_nop 7")
    a("s_barrier")
    a("s_mul_i32 s28, s21, %d" % (128 * 528))
    a("s_mul_i32 s29, s22, %d" % (64 * 528))
    a("s_add_u32 s28, s28, s29")
    a("s_lshl_b32 s29, s26, 8")
    a("s_add_u32 s28, s28, s29")
    a("s_movk_i32 s29, 528")
    a("v_mul_lo_u32 v6, v3, s29")
    a("v_lshl_add_u32 v6, v4, 4, v6")
    a("v_add_u32 v6, s28, v6")
    for mt in range(4):
        for nt in range(4):
            a("ds_write_b128 v6, %s offset:%d" % (vr(G2_ACC + (mt * 4 + nt) * 4, 4), mt * 16 * 528 + nt * 64))
    a("s_lshl_b32 s28, s20, 4")
    a("v_add_u32 v7, s28, v4")
    a("v_mul_lo_u32 v7, v7, s29")
    a("v_lshl_add_u32 v7, v3, 5, v7")
    a("v_add_u32 v6, %d, v7" % (128 * 528))
    a("s_waitcnt lgkmcnt(0)")
    a("s_barrier")
    for j in range(4):
        for hf in range(2):
            a("ds_read_b128 %s, v7 offset:%d" % (vr(128 + j * 8 + hf * 4, 4), j * 4 * 528 + hf * 16))
            a("ds_read_b128 %s, v6 offset:%d" % (vr(32 + j * 8 + hf * 4, 4), j * 4 * 528 + hf * 16))
    a("s_waitcnt lgkmcnt(0)")
    for i in range(32):
        a("v_add_f32 v%d, v%d, v%d" % (128 + i, 128 + i, 32 + i))
    a("s_cmp_lg_u32 s23, 0")
    a("s_cbranch_scc1 g2_second")
    for t in range(8):
        a("buffer_store_dwordx4 %s, v24, s[40:43], %s offen offset:%d sc1" % (vr(128 + t * 4, 4), "s39" if t >= 4 else "0", (t % 4) * 1024))
    a("s_waitcnt vmcnt(0)")
    stamp(a, 8)
    a("s_barrier")
    a("s_cmp_lg_u32 s20, 0")
    a("s_cbranch_scc1 g2_fin")
    a("v_mov_b32 v23, 1")
    a("s_mov_b64 exec, 1")
    a("buffer_atomic_add v23, v22, s[44:47], 0 offen sc1")
    a("s_mov_b64 exec, -1")
    a("s_branch g2_fin")
    a.label("g2_second")
    a("s_waitcnt vmcnt(0)")
    for p in range(4):
        a("v_lshlrev_b32 v%d, 16, v%d" % (32 + 2 * p, 240 + p))
        a("v_and_b32 v%d, 0xffff0000, v%d" % (33 + 2 * p, 240 + p))
    for j in range(4):
        for p in range(4):
            c = 128 + j * 8 + 2 * p
            a("v_lshlrev_b32 v12, 16, v%d" % (224 + j * 4 + p))
            a("v_and_b32 v13, 0xffff0000, v%d" % (224 + j * 4 + p))
            a("v_add_f32 v12, v12, v%d" % (32 + 2 * p))
            a("v_add_f32 v13, v13, v%d" % (33 + 2 * p))
            a("v_add_f32 v%d, v%d, v%d" % (c, c, 192 + j * 8 + 2 * p))
            a("v_add_f32 v%d, v%d, v%d" % (c + 1, c + 1, 193 + j * 8 + 2 * p))
            a("v_add_f32 v%d, v%d, v12" % (c, c))
            a("v_add_f32 v%d, v%d, v13" % (c + 1, c + 1))
            a("v_cvt_pk_bf16_f32 v%d, v%d, v%d" % (64 + j * 4 + p, c, c + 1))
        a("s_mov_b32 s38, 0x%x" % (j * 4 * 2048))
        a("buffer_store_dwordx4 %s, v25, s[56:59], s38 offen%s" % (vr(64 + j * 4, 4), ST2))
    a.label("g2_fin")
    if "STAMP" in FLAGS:
        a("s_waitcnt vmcnt(0)")
    stamp(a, 4)
    stamp_rt(a, 5)
    stamp_flush(a, 10, 1)
    a.label("g2_done")
    a("s_endpgm")
    a.label("g2_opoll")
    a("s_mov_b32 s29, 0")
    a("s_branch g2_ochk")
    a.label("g2_ospin")
    a("buffer_load_dword v23, v27, s[44:47], 0 offen sc1")
    a("s_waitcnt vmcnt(0)")
    a.label("g2_ochk")
    a("v_readfirstlane_b32 s28, v23")
    a("s_add_u32 s29, s29, 1")
    a("s_cmp_ge_u32 s28, 16")
    a("s_cbranch_scc1 g2_loop2")
    a("s_sleep 2")
    a("s_cmp_lt_u32 s29, 0x100000")
    a("s_cbranch_scc1 g2_ospin")
    a("s_branch g2_loop2")
    return L, 248


def gen_combine(a):
    L = "combine_kernel"
    kernel_head(a, L)
    a("s_cmp_ge_u32 s2, 1024")
    a("s_cbranch_scc1 cb_done")
    a("s_load_dwordx2 s[4:5], s[0:1], %d" % KA_WS)
    a("s_load_dwordx2 s[6:7], s[0:1], %d" % KA_X)
    a("s_load_dwordx2 s[20:21], s[0:1], %d" % KA_B2)
    a("s_load_dwordx2 s[22:23], s[0:1], %d" % KA_OUT)
    a("s_lshl_b32 s3, s2, 8")
    a("v_add_u32 v1, s3, v0")
    a("v_lshlrev_b32 v2, 5, v1")
    a("v_lshlrev_b32 v3, 4, v1")
    a("v_and_b32 v4, 127, v1")
    a("v_lshlrev_b32 v4, 4, v4")
    a("s_waitcnt lgkmcnt(0)")
    srd(a, 8, 4, WS_P, SZ_P)
    srd(a, 12, 6, 0, S * D * 2)
    srd(a, 16, 20, 0, D * 2)
    srd(a, 24, 22, 0, S * D * 2)
    a("s_mov_b32 s28, 0x800000")
    a("buffer_load_dwordx4 v[8:11], v2, s[8:11], 0 offen")
    a("buffer_load_dwordx4 v[12:15], v2, s[8:11], 0 offen offset:16")
    a("buffer_load_dwordx4 v[16:19], v2, s[8:11], s28 offen")
    a("buffer_load_dwordx4 v[20:23], v2, s[8:11], s28 offen offset:16")
    a("buffer_load_dwordx4 v[24:27], v3, s[12:15], 0 offen")
    a("buffer_load_dwordx4 v[28:31], v4, s[16:19], 0 offen")
    a("s_waitcnt vmcnt(0)")
    for i in range(8):
        a("v_add_f32 v%d, v%d, v%d" % (8 + i, 8 + i, 16 + i))
    for i in range(4):
        a("v_lshlrev_b32 v32, 16, v%d" % (24 + i))
        a("v_and_b32 v33, 0xffff0000, v%d" % (24 + i))
        a("v_lshlrev_b32 v34, 16, v%d" % (28 + i))
        a("v_and_b32 v35, 0xffff0000, v%d" % (28 + i))
        a("v_add_f32 v32, v32, v34")
        a("v_add_f32 v33, v33, v35")
        a("v_add_f32 v%d, v%d, v32" % (8 + 2 * i, 8 + 2 * i))
        a("v_add_f32 v%d, v%d, v33" % (9 + 2 * i, 9 + 2 * i))
        a("v_cvt_pk_bf16_f32 v%d, v%d, v%d" % (36 + i, 8 + 2 * i, 9 + 2 * i))
    a("buffer_store_dwordx4 v[36:39], v3, s[24:27], 0 offen")
    a.label("cb_done")
    a("s_endpgm")
    return L, 40


def main():
    a = Asm()
    hdr = open("cdna_kernels/%s.s.ref" % NAME).read().split("\n")
    head = [l for l in hdr if l.startswith(";") and "@launch" not in l and "Override launch" not in l and "grid=ceil" not in l]
    launches = [
        "; @launch kernel=gemm1_kernel grid=(256,1,1) block=(512,1,1) lds=131072",
        "; @launch kernel=gemm2_kernel grid=(256,1,1) block=(512,1,1) lds=135168",
    ]
    a.raw("\n".join(head + launches))
    a.raw('.amdgcn_target "amdgcn-amd-amdhsa--gfx950"')
    a.raw(".text")
    descs = []
    for g in (gen_gemm1, gen_gemm2):
        label, v = g(a)
        descs.append(kernel_desc(label, v))
    a.raw('.section .rodata,"a"')
    for d in descs:
        a.raw(".p2align 6")
        a.raw(d)
    open(OUT, "w").write(a.text())
    print("wrote", OUT, len(a.lines), "lines")


if __name__ == "__main__":
    main()
```

```python
import sys
import re
import os
FLAGS = set(os.environ.get("FLAGS", "").split(","))

NAME = "parallel_sum__linear_kernel_hedgehog__dense_activation_gelu__prompt"
OUT = os.environ.get("OUT", "cdna_kernels/%s.s" % NAME)

S, D, H, DH, F = 2048, 1024, 32, 32, 3584
KCAT = F + D
KA_X, KA_WQKV, KA_WPHI, KA_WO, KA_BX, KA_W1, KA_B1, KA_W2, KA_B2, KA_OUT, KA_DBG, KA_WS = [8 * i for i in range(12)]
WS_XN = 0x0000000
WS_HC = 0x0400000
WS_PQ = 0x1800000
WS_KV = 0x2000000
WS_P = 0x2400000
WS_FL = 0x3800000
SZ_FL = 65536
SZ_XN = S * D * 2
SZ_HC = S * KCAT * 2
SZ_PQ = H * S * 64 * 2
SZ_KV = 8 * 32 * 16384
SZ_P = S * D * 4

LOG2E = 0x3fb8aa3b
ST = os.environ.get("ST", "")
ST = (" " + ST) if ST else ""
ST2 = os.environ.get("ST2", "")
ST2 = (" " + ST2) if ST2 else ""
PF_ROWS = int(os.environ.get("PF_ROWS", "256"))
PF_LANES = int(os.environ.get("PF_LANES", "4"))


class Asm:
    def __init__(self):
        self.lines = []

    def __call__(self, s):
        m = re.search(r"offset:(\d+)", s)
        if m:
            lim = 4096 if s.startswith("buffer_") else 65536
            assert int(m.group(1)) < lim, s
        self.lines.append("    " + s)

    def label(self, s):
        self.lines.append(s + ":")

    def raw(self, s):
        self.lines.append(s)

    def text(self):
        return "\n".join(self.lines) + "\n"


def vr(b, n=1):
    return "v%d" % b if n == 1 else "v[%d:%d]" % (b, b + n - 1)


def sr(b, n=1):
    return "s%d" % b if n == 1 else "s[%d:%d]" % (b, b + n - 1)


def srd(a, d, base, off, size):
    if off:
        a("s_add_u32 s%d, s%d, 0x%x" % (d, base, off))
        a("s_addc_u32 s%d, s%d, 0" % (d + 1, base + 1))
    else:
        a("s_mov_b32 s%d, s%d" % (d, base))
        a("s_mov_b32 s%d, s%d" % (d + 1, base + 1))
    a("s_and_b32 s%d, s%d, 0xffff" % (d + 1, d + 1))
    a("s_mov_b32 s%d, 0x%x" % (d + 2, size))
    a("s_mov_b32 s%d, 0x00020000" % (d + 3))


def kernel_head(a, label):
    a.raw(".globl %s" % label)
    a.raw(".p2align 8")
    a.raw(".type %s,@function" % label)
    a.label(label)


def kernel_desc(label, vgpr, sgpr=102):
    acc = (vgpr + 3) // 4 * 4
    return """.amdhsa_kernel %s
  .amdhsa_next_free_vgpr %d
  .amdhsa_next_free_sgpr %d
  .amdhsa_accum_offset %d
  .amdhsa_group_segment_fixed_size 0
  .amdhsa_kernarg_size 96
  .amdhsa_user_sgpr_count 2
  .amdhsa_user_sgpr_kernarg_segment_ptr 1
  .amdhsa_system_sgpr_workgroup_id_x 1
.end_amdhsa_kernel
""" % (label, vgpr, sgpr, acc)


def stamp(a, i):
    if "STAMP" in FLAGS:
        a("s_memtime s[%d:%d]" % (60 + 2 * i, 61 + 2 * i))


def stamp_rt(a, i):
    if "STAMP" in FLAGS:
        a("s_memrealtime s[%d:%d]" % (60 + 2 * i, 61 + 2 * i))


def stamp_flush(a, n, kidx):
    if "STAMP" not in FLAGS:
        return
    a("s_waitcnt lgkmcnt(0)")
    srd(a, 88, 4, 0x8000000 + kidx * 0x100000, 0x100000)
    a("s_lshl_b32 s92, s2, 3")
    a("s_add_u32 s92, s92, s20")
    a("s_lshl_b32 s92, s92, 7")
    a("v_mov_b32 v2, s92")
    for i in range(n):
        a("v_mov_b32 v4, s%d" % (60 + 2 * i))
        a("v_mov_b32 v5, s%d" % (61 + 2 * i))
        a("buffer_store_dwordx2 v[4:5], v2, s[88:91], 0 offen offset:%d" % (8 * i))
        a("s_nop 1")


def allreduce64(a, op, v, t):
    for ctl in ("quad_perm:[1,0,3,2]", "quad_perm:[2,3,0,1]", "row_half_mirror", "row_mirror"):
        a("s_nop 1")
        a("%s_dpp %s, %s, %s %s row_mask:0xf bank_mask:0xf" % (op, vr(v), vr(v), vr(v), ctl))
    for sw in ("v_permlane16_swap_b32", "v_permlane32_swap_b32"):
        a("v_mov_b32 %s, %s" % (vr(t), vr(v)))
        a("s_nop 1")
        a("%s %s, %s" % (sw, vr(v), vr(t)))
        a("s_nop 1")
        a("%s %s, %s, %s" % (op, vr(v), vr(v), vr(t)))


def gen_ln(a):
    L = "ln_kernel"
    kernel_head(a, L)
    a("s_cmp_ge_u32 s2, 512")
    a("s_cbranch_scc1 ln_done")
    a("s_load_dwordx2 s[4:5], s[0:1], %d" % KA_X)
    a("s_load_dwordx2 s[6:7], s[0:1], %d" % KA_WS)
    a("s_load_dwordx2 s[20:21], s[0:1], %d" % KA_WQKV)
    a("s_load_dwordx2 s[22:23], s[0:1], %d" % KA_W1)
    a("v_lshrrev_b32 v1, 6, v0")
    a("v_and_b32 v2, 63, v0")
    a("s_lshl_b32 s3, s2, 2")
    a("v_add_u32 v1, s3, v1")
    a("v_lshlrev_b32 v3, 12, v1")
    a("v_lshl_add_u32 v3, v2, 6, v3")
    a("v_lshlrev_b32 v1, 11, v1")
    a("v_lshl_add_u32 v1, v2, 4, v1")
    a("s_waitcnt lgkmcnt(0)")
    srd(a, 8, 4, 0, SZ_XN)
    srd(a, 12, 6, WS_XN, SZ_XN)
    a("buffer_load_dwordx4 v[4:7], v1, s[8:11], 0 offen")
    a("buffer_load_dwordx4 v[8:11], v1, s[8:11], 0 offen offset:1024")
    if "NOPF" not in FLAGS:
        srd(a, 24, 20, 0, PF_ROWS * 3 * D * 2)
        srd(a, 28, 22, 0, PF_ROWS * F * 2)
        a("buffer_load_dword v39, v3, s[24:27], 0 offen")
        a("buffer_load_dword v39, v3, s[28:31], 0 offen")
    a("s_cmp_ge_u32 s2, 16")
    a("s_cbranch_scc1 ln_nz")
    srd(a, 16, 6, WS_FL, SZ_FL)
    a("s_lshl_b32 s3, s2, 12")
    a("v_lshl_add_u32 v12, v0, 4, s3")
    for i in range(4):
        a("v_mov_b32 v%d, 0" % (16 + i))
    a("buffer_store_dwordx4 v[16:19], v12, s[16:19], 0 offen")
    a("s_waitcnt vmcnt(3)")
    a.label("ln_nz")
    a("s_waitcnt vmcnt(%d)" % (0 if "NOPF" in FLAGS else 2))
    for i in range(8):
        a("v_lshlrev_b32 v%d, 16, v%d" % (16 + 2 * i, 4 + i))
        a("v_and_b32 v%d, 0xffff0000, v%d" % (17 + 2 * i, 4 + i))
    a("v_add_f32 v32, v16, v17")
    for i in range(2, 16):
        a("v_add_f32 v32, v32, v%d" % (16 + i))
    allreduce64(a, "v_add_f32", 32, 33)
    a("v_mul_f32 v32, 0x3a800000, v32")
    a("v_sub_f32 v34, v16, v32")
    a("v_mul_f32 v35, v34, v34")
    for i in range(1, 16):
        a("v_sub_f32 v34, v%d, v32" % (16 + i))
        a("v_fmac_f32 v35, v34, v34")
    allreduce64(a, "v_add_f32", 35, 33)
    a("v_mul_f32 v35, 0x3a800000, v35")
    a("v_cvt_pk_bf16_f32 v36, v32, v35")
    a("v_lshlrev_b32 v32, 16, v36")
    a("v_and_b32 v35, 0xffff0000, v36")
    a("v_add_f32 v35, 0x3727c5ac, v35")
    a("v_cvt_pk_bf16_f32 v36, v35, v35")
    a("v_lshlrev_b32 v35, 16, v36")
    a("v_sqrt_f32 v35, v35")
    a("s_nop 0")
    a("v_cvt_pk_bf16_f32 v36, v35, v35")
    a("v_lshlrev_b32 v35, 16, v36")
    a("v_rcp_f32 v35, v35")
    a("s_nop 0")
    for i in range(8):
        a("v_sub_f32 v%d, v%d, v32" % (16 + 2 * i, 16 + 2 * i))
        a("v_sub_f32 v%d, v%d, v32" % (17 + 2 * i, 17 + 2 * i))
        a("v_cvt_pk_bf16_f32 v36, v%d, v%d" % (16 + 2 * i, 17 + 2 * i))
        a("v_lshlrev_b32 v37, 16, v36")
        a("v_and_b32 v38, 0xffff0000, v36")
        a("v_mul_f32 v37, v37, v35")
        a("v_mul_f32 v38, v38, v35")
        a("v_cvt_pk_bf16_f32 v%d, v37, v38" % (4 + i))
    a("buffer_store_dwordx4 v[4:7], v1, s[12:15], 0 offen%s" % ST2)
    a("buffer_store_dwordx4 v[8:11], v1, s[12:15], 0 offen offset:1024%s" % ST2)
    a.label("ln_done")
    a("s_endpgm")
    return L, 40


def interleave(a, mfmas, fillers):
    n = len(mfmas)
    nf = len(fillers)
    fi = 0
    for i, m in enumerate(mfmas):
        a(m)
        want = ((i + 1) * nf + n - 1) // n if nf <= n else ((i + 1) * nf) // n
        want = min(nf, max(want, min(nf, i + 1)))
        while fi < want:
            for x in fillers[fi]:
                a(x)
            fi += 1
    while fi < nf:
        for x in fillers[fi]:
            a(x)
        fi += 1


def place(a, mfmas, slots):
    for i, m in enumerate(mfmas):
        a(m)
        for grp in slots.get(i, []):
            for x in grp:
                a(x)


class Gemm:
    def __init__(self, a, MT, NT, acc, fragA, fragB, vA, vB, voffA, voffB,
                 orient, sM0, sOffA, sOffB, srdA, srdB, stepA, stepB):
        self.__dict__.update(locals())

    def mfmas(self, st):
        out = []
        for mt in range(self.MT):
            for nt in range(self.NT):
                c = self.acc + (mt * self.NT + nt) * 4
                fa = self.fragA[st] + mt * 4
                fb = self.fragB[st] + nt * 4
                x, y = (fb, fa) if self.orient(nt) else (fa, fb)
                out.append("v_mfma_f32_16x16x32_bf16 %s, %s, %s, %s" % (vr(c, 4), vr(x, 4), vr(y, 4), vr(c, 4)))
        return out

    def reads(self, st, buf):
        out = []
        for mt in range(self.MT):
            out.append(["ds_read_b128 %s, %s offset:%d" % (vr(self.fragA[st] + mt * 4, 4), vr(self.vA), buf * 16384 + mt * 1024)])
        for nt in range(self.NT):
            for rd in range(2):
                out.append(["ds_read_b64_tr_b16 %s, %s offset:%d" % (vr(self.fragB[st] + nt * 4 + rd * 2, 2), vr(self.vB[nt]), buf * 16384 + rd * 2048)])
        return out

    def dmas(self, buf):
        out = []
        for j in range(2):
            out.append(["s_add_u32 m0, s%d, %d" % (self.sM0, buf * 16384 + j * 1024),
                        "s_nop 0",
                        "buffer_load_dwordx4 %s, %s, s%d offen sc1 lds" % (vr(self.voffA + j), sr(self.srdA, 4), self.sOffA)])
        for j in range(2):
            out.append(["s_add_u32 m0, s%d, %d" % (self.sM0, 65536 + buf * 16384 + j * 1024),
                        "s_nop 0",
                        "buffer_load_dwordx4 %s, %s, s%d offen lds" % (vr(self.voffB + j), sr(self.srdB, 4), self.sOffB)])
        out.append(["s_add_u32 s%d, s%d, %d" % (self.sOffA, self.sOffA, self.stepA),
                    "s_add_u32 s%d, s%d, %d" % (self.sOffB, self.sOffB, self.stepB)])
        return out

    def pf(self):
        return ["buffer_load_dword v30, v31, s[40:43], s19 offen",
                "s_add_u32 s19, s19, 0x%x" % (PF_LANES * 64 * 1024)]

    def iteration(self, i, dma, nxt, vm):
        a = self.a
        mf = self.mfmas(i & 1)
        n = len(mf)
        dpos = [1 + (j * (n - 2)) // 4 for j in range(4)]
        slots = {}
        if dma and "NODMA" not in FLAGS:
            d = self.dmas(i % 4)
            for j in range(4):
                slots.setdefault(dpos[j], []).append(d[j])
            slots.setdefault(dpos[3], []).append(d[4])
        if nxt:
            r = self.reads((i + 1) & 1, (i + 1) % 4)
            pos = [p for p in range(n) if p not in dpos][:len(r)]
            for p, x in zip(pos, r):
                slots.setdefault(p, []).append(x)
        place(a, mf, slots)
        if nxt:
            if vm is None:
                a("s_waitcnt lgkmcnt(0)")
            else:
                a("s_waitcnt vmcnt(%d) lgkmcnt(0)" % vm)
            a("s_barrier")

    def run(self, nstages, tag, sCnt, late=None, nlate=0):
        a = self.a
        for st in range(4):
            d = self.dmas(st)
            for f in d[2:4]:
                for x in f:
                    a(x)
            a("s_add_u32 s%d, s%d, %d" % (self.sOffB, self.sOffB, self.stepB))
        g1_fused_ln(a, tag)
        for st in range(4):
            d = self.dmas(st)
            for f in d[0:2]:
                for x in f:
                    a(x)
            a("s_add_u32 s%d, s%d, %d" % (self.sOffA, self.sOffA, self.stepA))
        for i in range(self.MT * self.NT * 4):
            a("v_mov_b32 v%d, 0" % (self.acc + i))
        stamp(a, 1)
        a("s_waitcnt vmcnt(0)")
        a("s_barrier")
        stamp(a, 2)
        for f in self.reads(0, 0):
            for x in f:
                a(x)
        a("s_waitcnt lgkmcnt(0)")
        a("s_barrier")
        a("s_mov_b32 s%d, %d" % (sCnt, (nstages - 4) // 4))
        a.label(tag + "_loop")
        for i in range(4):
            self.iteration(i, True, True, 8)
        a("s_sub_u32 s%d, s%d, 1" % (sCnt, sCnt))
        a("s_cmp_lg_u32 s%d, 0" % sCnt)
        a("s_cbranch_scc1 %s_loop" % tag)
        if late:
            late()
        self.iteration(0, False, True, 4 + nlate)
        self.iteration(1, False, True, nlate)
        self.iteration(2, False, True, None)
        self.iteration(3, False, False, None)
        stamp(a, 3)
        srd(a, 40, 48, 0, F * D * 2)
        a("buffer_load_dword v30, v31, s[40:43], 0 offen")
        srd(a, 40, 44, 0, D * D * 2)
        a("buffer_load_dword v30, v31, s[40:43], 0 offen")
        a("s_waitcnt vmcnt(2)")


def g1_prefetch(a):
    a("s_lshl_b32 s28, s2, 3")
    a("s_add_u32 s28, s28, s20")
    a("s_lshl_b32 s28, s28, 12")
    a("v_lshl_add_u32 v31, v1, 6, s28")
    srd(a, 40, 6, 0, D * 3 * D * 2)
    a("buffer_load_dword v30, v31, s[40:43], 0 offen")
    srd(a, 40, 30, 0, D * F * 2)
    a("buffer_load_dword v30, v31, s[40:43], 0 offen")


def g1_ln_loads(a):
    X = 128
    a("s_bfe_u32 s28, s2, 0x20001")
    a("s_lshl_b32 s28, s28, 3")
    a("s_add_u32 s28, s28, s24")
    a("s_lshl_b32 s28, s28, 3")
    a("s_lshl_b32 s29, s23, 8")
    a("s_add_u32 s28, s28, s29")
    a("s_add_u32 s28, s28, s20")
    a("s_lshl_b32 s28, s28, 11")
    a("v_lshl_add_u32 v10, v1, 4, s28")
    srd(a, 56, 56, 0, SZ_XN)
    for h in range(2):
        a("buffer_load_dwordx4 %s, v10, s[56:59], 0 offen offset:%d" % (vr(X + h * 4, 4), h * 1024))
    a("s_waitcnt vmcnt(0)")
    stamp(a, 7)


def g1_ln_compute(a, tag):
    X, T = 128, 176
    srd(a, 52, 50, 0, 256)
    a("s_lshl_b32 s28, s23, 5")
    a("v_mov_b32 v11, s28")
    a("s_movk_i32 s29, 4096")
    for i in range(1):
        R = X + i * 8
        U = T
        S1, S2, TM = T + 16, T + 17, T + 18
        for j in range(8):
            a("v_lshlrev_b32 v%d, 16, v%d" % (U + 2 * j, R + j))
            a("v_and_b32 v%d, 0xffff0000, v%d" % (U + 1 + 2 * j, R + j))
        a("v_add_f32 v%d, v%d, v%d" % (S1, U, U + 1))
        for j in range(2, 16):
            a("v_add_f32 v%d, v%d, v%d" % (S1, S1, U + j))
        allreduce64(a, "v_add_f32", S1, TM)
        a("v_mul_f32 v%d, 0x3a800000, v%d" % (S1, S1))
        a("v_sub_f32 v%d, v%d, v%d" % (TM + 1, U, S1))
        a("v_mul_f32 v%d, v%d, v%d" % (S2, TM + 1, TM + 1))
        for j in range(1, 16):
            a("v_sub_f32 v%d, v%d, v%d" % (TM + 1, U + j, S1))
            a("v_fmac_f32 v%d, v%d, v%d" % (S2, TM + 1, TM + 1))
        allreduce64(a, "v_add_f32", S2, TM)
        a("v_mul_f32 v%d, 0x3a800000, v%d" % (S2, S2))
        a("v_cvt_pk_bf16_f32 v%d, v%d, v%d" % (TM, S1, S2))
        a("v_lshlrev_b32 v%d, 16, v%d" % (S1, TM))
        a("v_and_b32 v%d, 0xffff0000, v%d" % (S2, TM))
        a("v_add_f32 v%d, 0x3727c5ac, v%d" % (S2, S2))
        a("v_cvt_pk_bf16_f32 v%d, v%d, v%d" % (TM, S2, S2))
        a("v_lshlrev_b32 v%d, 16, v%d" % (S2, TM))
        a("v_sqrt_f32 v%d, v%d" % (S2, S2))
        a("s_nop 0")
        a("v_cvt_pk_bf16_f32 v%d, v%d, v%d" % (TM, S2, S2))
        a("v_lshlrev_b32 v%d, 16, v%d" % (S2, TM))
        a("v_rcp_f32 v%d, v%d" % (S2, S2))
        a("s_nop 0")
        for j in range(8):
            a("v_sub_f32 v%d, v%d, v%d" % (U + 2 * j, U + 2 * j, S1))
            a("v_sub_f32 v%d, v%d, v%d" % (U + 1 + 2 * j, U + 1 + 2 * j, S1))
            a("v_cvt_pk_bf16_f32 v%d, v%d, v%d" % (TM, U + 2 * j, U + 1 + 2 * j))
            a("v_lshlrev_b32 v%d, 16, v%d" % (TM + 1, TM))
            a("v_and_b32 v%d, 0xffff0000, v%d" % (TM + 2, TM))
            a("v_mul_f32 v%d, v%d, v%d" % (TM + 1, TM + 1, S2))
            a("v_mul_f32 v%d, v%d, v%d" % (TM + 2, TM + 2, S2))
            a("v_cvt_pk_bf16_f32 v%d, v%d, v%d" % (R + j, TM + 1, TM + 2))
        for h in range(2):
            q = i * 2 + h
            a("buffer_store_dwordx4 %s, v10, s[8:11], %s offen offset:%d sc1" % (vr(X + q * 4, 4), "s29" if q >= 4 else "0", (q % 4) * 1024))
    stamp(a, 8)
    if "EARLYPF" in FLAGS:
        g1_prefetch(a)
        a("s_waitcnt vmcnt(2)")
    else:
        a("s_waitcnt vmcnt(0)")
    a("s_barrier")
    stamp(a, 9)
    a("s_cmp_lg_u32 s20, 0")
    a("s_cbranch_scc1 %s_lnwait" % tag)
    a("v_mov_b32 v28, 1")
    a("s_mov_b64 exec, 1")
    a("buffer_atomic_add v28, v11, s[52:55], 0 offen sc1")
    a("s_mov_b64 exec, -1")
    a.label(tag + "_lnwait")


def g1_fused_ln(a, tag):
    a("s_cmp_lg_u32 s20, 0")
    a("s_cbranch_scc1 %s_lnbar" % tag)
    a("s_mov_b32 s29, 0")
    a.label(tag + "_lnspin")
    a("buffer_load_dword v28, v11, s[52:55], 0 offen sc1")
    a("s_waitcnt vmcnt(0)")
    a("v_readfirstlane_b32 s28, v28")
    a("s_add_u32 s29, s29, 1")
    a("s_cmp_ge_u32 s28, 32")
    a("s_cbranch_scc1 %s_lnbar" % tag)
    a("s_sleep 4")
    a("s_cmp_lt_u32 s29, 0x100000")
    a("s_cbranch_scc1 %s_lnspin" % tag)
    a.label(tag + "_lnbar")
    a("s_barrier")
    stamp(a, 10)


G1_ACC = 128
G1_FA = (32, 76)
G1_FB = (48, 92)
G1_VOA, G1_VOB = 8, 12
G1_VA = 16
G1_VB = (18, 19, 20, 21, 22, 23, 24)
G1_X = 240


def g1_common_addr(a):
    a("v_and_b32 v1, 63, v0")
    a("v_lshrrev_b32 v2, 6, v0")
    a("s_nop 0")
    a("v_readfirstlane_b32 s20, v2")
    a("v_and_b32 v3, 15, v1")
    a("v_lshrrev_b32 v4, 4, v1")


def gen_gemm1(a):
    L = "gemm1_kernel"
    kernel_head(a, L)
    a("s_cmp_ge_u32 s2, 256")
    a("s_cbranch_scc1 g1_done")
    stamp(a, 0)
    stamp_rt(a, 6)
    a("s_load_dwordx2 s[4:5], s[0:1], %d" % KA_WS)
    a("s_load_dwordx2 s[6:7], s[0:1], %d" % KA_WQKV)
    a("s_load_dwordx2 s[30:31], s[0:1], %d" % KA_W1)
    a("s_load_dwordx2 s[32:33], s[0:1], %d" % KA_WPHI)
    a("s_load_dwordx2 s[34:35], s[0:1], %d" % KA_B1)
    a("s_load_dwordx2 s[44:45], s[0:1], %d" % KA_WO)
    a("s_load_dwordx2 s[48:49], s[0:1], %d" % KA_W2)
    a("s_load_dwordx2 s[50:51], s[0:1], %d" % KA_DBG)
    a("s_load_dwordx2 s[56:57], s[0:1], %d" % KA_X)
    g1_common_addr(a)
    a("s_and_b32 s21, s2, 7")
    a("s_lshr_b32 s22, s2, 3")
    a("s_and_b32 s23, s21, 1")
    a("s_lshl_b32 s23, s23, 2")
    a("s_and_b32 s24, s22, 3")
    a("s_add_u32 s23, s23, s24")
    a("s_lshr_b32 s24, s22, 2")
    a("s_lshr_b32 s25, s21, 1")
    a("s_lshl_b32 s25, s25, 2")
    a("s_and_b32 s26, s24, 3")
    a("s_add_u32 s25, s25, s26")
    a("s_lshr_b32 s21, s20, 1")
    a("s_and_b32 s22, s20, 1")
    a("s_lshl_b32 s27, s20, 11")
    a("v_lshrrev_b32 v5, 2, v1")
    a("s_lshl_b32 s28, s23, 8")
    a("s_lshl_b32 s29, s20, 5")
    a("s_add_u32 s28, s28, s29")
    a("v_add_u32 v5, s28, v5")
    a("v_lshlrev_b32 v5, 11, v5")
    a("v_lshrrev_b32 v6, 1, v4")
    a("v_xor_b32 v7, v6, v4")
    a("v_and_b32 v7, 1, v7")
    a("v_lshl_or_b32 v6, v7, 1, v6")
    a("v_and_b32 v7, 3, v1")
    a("v_xor_b32 v7, v7, v6")
    a("v_lshl_add_u32 v%d, v7, 4, v5" % G1_VOA)
    a("v_add_u32 v%d, %d, v%d" % (G1_VOA + 1, 16 * 2048, G1_VOA))
    a("v_bfe_u32 v5, v1, 2, 2")
    a("v_lshrrev_b32 v6, 1, v5")
    a("v_xor_b32 v7, v6, v5")
    a("v_and_b32 v7, 1, v7")
    a("v_lshl_or_b32 v6, v7, 1, v6")
    a("v_xor_b32 v5, v6, v4")
    a("s_lshl_b32 s28, s21, 6")
    a("v_add_u32 v6, s28, v3")
    a("v_lshlrev_b32 v6, 6, v6")
    a("v_lshl_add_u32 v%d, v5, 4, v6" % G1_VA)
    a("v_bfe_u32 v5, v1, 2, 2")
    a("v_and_b32 v6, 1, v4")
    a("v_lshl_or_b32 v6, v6, 2, v5")
    a("v_lshl_add_u32 v5, v4, 3, v5")
    a("v_lshlrev_b32 v5, 9, v5")
    a("v_and_b32 v7, 3, v1")
    a("v_lshl_add_u32 v5, v7, 3, v5")
    a("v_add_u32 v5, 0x10000, v5")
    a("s_waitcnt lgkmcnt(0)")
    srd(a, 8, 4, WS_XN, SZ_XN)
    a("v_mov_b32 v10, 0")
    g1_ln_loads(a)
    g1_ln_compute(a, "g1")
    if "EARLYPF" not in FLAGS:
        g1_prefetch(a)
    a("s_cmp_ge_u32 s2, 8")
    a("s_cbranch_scc1 g1_nz")
    srd(a, 40, 4, WS_FL, SZ_FL)
    a("s_lshl_b32 s28, s2, 13")
    a("v_lshl_add_u32 v28, v0, 4, s28")
    for i in range(4):
        a("v_mov_b32 v%d, 0" % (24 + i))
    a("buffer_store_dwordx4 v[24:27], v28, s[40:43], 0 offen")
    a("s_nop 1")
    a.label("g1_nz")
    a("s_mov_b32 s16, 0")
    a("s_mov_b32 s17, 0")
    a("s_cmp_ge_u32 s24, 4")
    a("s_cbranch_scc1 g1_w1")

    def b_dma_rows(a, j):
        a("v_lshrrev_b32 v25, 5, v1")
        a("v_add_u32 v25, %d, v25" % (2 * j))
        a("s_bfe_u32 s28, s20, 0x10001")
        a("s_lshl_b32 s28, s28, 2")
        a("v_or_b32 v26, s28, v25")
        a("v_lshlrev_b32 v26, 1, v26")
        a("v_and_b32 v27, 31, v1")
        a("v_xor_b32 v26, v26, v27")
        a("s_lshl_b32 s28, s20, 2")
        a("v_add_u32 v25, s28, v25")

    NT = 6
    for tt in range(NT):
        a("s_mul_i32 s28, s22, %d" % NT)
        a("s_add_u32 s28, s28, %d" % tt)
        a("v_xor_b32 v7, s28, v6")
        a("v_lshl_add_u32 v%d, v7, 5, v5" % G1_VB[tt])
    srd(a, 12, 6, 0, D * 3 * D * 2)
    for j in range(2):
        b_dma_rows(a, j)
        a("v_lshrrev_b32 v27, 2, v26")
        a("v_cmp_le_u32 vcc, 3, v27")
        a("s_nop 1")
        a("v_cndmask_b32 v28, 0, 1, vcc")
        a("v_mul_u32_u24 v29, 3, v28")
        a("v_sub_u32 v29, v27, v29")
        a("s_lshl_b32 s28, s25, 1")
        a("v_add_u32 v28, s28, v28")
        a("v_lshlrev_b32 v28, 6, v28")
        a("v_lshl_add_u32 v28, v29, 11, v28")
        a("v_and_b32 v29, 3, v26")
        a("v_lshl_add_u32 v28, v29, 4, v28")
        a("s_movk_i32 s28, 6144")
        a("v_mul_lo_u32 v29, v25, s28")
        a("v_add_u32 v28, v28, v29")
        a("v_cmp_gt_u32 vcc, 6, v27")
        a("v_mov_b32 v29, 0x7f000000")
        a("s_nop 0")
        a("v_cndmask_b32 v%d, v29, v28, vcc" % (G1_VOB + j))
    def late_q():
        srd(a, 36, 32, 0, H * DH * DH * 2)
        a("s_lshl_b32 s28, s25, 1")
        a("s_add_u32 s28, s28, s22")
        a("s_lshl_b32 s28, s28, 11")
        a("v_lshlrev_b32 v25, 8, v4")
        a("v_lshl_add_u32 v25, v3, 1, v25")
        a("v_add_u32 v25, s28, v25")
        for ft in range(2):
            for j in range(8):
                d = (j & 3) + (16 if j >= 4 else 0)
                a("buffer_load_ushort v%d, v25, s[36:39], 0 offen offset:%d" % (224 + ft * 8 + j, d * 64 + ft * 32))
    g = Gemm(a, 4, NT, G1_ACC, G1_FA, G1_FB, G1_VA, G1_VB, G1_VOA, G1_VOB,
             lambda nt: nt < 4, 27, 16, 17, 8, 12, 64, 32 * 6144)
    g.run(32, "g1q", 18, late_q, 16)
    if "NOEPI" not in FLAGS:
        g1_qkv_epilogue(a)
    a("s_branch g1_fin")

    a.label("g1_w1")
    NT = 7
    for tt in range(NT):
        a("s_mul_i32 s28, s22, %d" % NT)
        a("s_add_u32 s28, s28, %d" % tt)
        a("v_xor_b32 v7, s28, v6")
        a("v_lshl_add_u32 v%d, v7, 5, v5" % G1_VB[tt])
    srd(a, 12, 30, 0, D * F * 2)
    for j in range(2):
        b_dma_rows(a, j)
        a("s_mul_i32 s28, s25, 448")
        a("v_lshlrev_b32 v28, 4, v26")
        a("v_add_u32 v28, s28, v28")
        a("s_movk_i32 s28, 7168")
        a("v_mul_lo_u32 v29, v25, s28")
        a("v_add_u32 v28, v28, v29")
        a("v_cmp_gt_u32 vcc, 28, v26")
        a("v_mov_b32 v29, 0x7f000000")
        a("s_nop 0")
        a("v_cndmask_b32 v%d, v29, v28, vcc" % (G1_VOB + j))
    def late_w():
        srd(a, 36, 34, 0, F * 2)
        a("s_mul_i32 s28, s25, 448")
        a("s_mul_i32 s29, s22, 224")
        a("s_add_u32 s28, s28, s29")
        a("v_lshlrev_b32 v25, 3, v4")
        a("v_add_u32 v25, s28, v25")
        for tt in range(NT):
            a("buffer_load_dwordx2 %s, v25, s[36:39], 0 offen offset:%d" % (vr(G1_X + 2 * tt, 2), tt * 32))
    g = Gemm(a, 4, NT, G1_ACC, G1_FA, G1_FB, G1_VA, G1_VB, G1_VOA, G1_VOB,
             lambda nt: True, 27, 16, 17, 8, 12, 64, 32 * 7168)
    g.run(32, "g1w", 18, late_w, 7)
    if "NOEPI" not in FLAGS:
        g1_w1_epilogue(a)
    a.label("g1_fin")
    if "STAMP" in FLAGS:
        a("s_waitcnt vmcnt(0)")
    stamp(a, 4)
    stamp_rt(a, 5)
    stamp_flush(a, 12, 0)
    a.label("g1_done")
    a("s_endpgm")
    return L, 256


def f32bits(x):
    import struct
    return struct.unpack("<I", struct.pack("<f", x))[0]


def g1_w1_epilogue(a):
    NT = 7
    RS = 240
    srd(a, 40, 4, WS_HC, SZ_HC)
    for tt in range(NT):
        for p in range(2):
            a("v_lshlrev_b32 v%d, 16, v%d" % (32 + tt * 4 + 2 * p, G1_X + 2 * tt + p))
            a("v_and_b32 v%d, 0xffff0000, v%d" % (33 + tt * 4 + 2 * p, G1_X + 2 * tt + p))
    a("s_mul_i32 s28, s20, %d" % (64 * RS))
    a("s_movk_i32 s29, %d" % RS)
    a("v_mul_lo_u32 v6, v3, s29")
    a("v_lshl_add_u32 v6, v4, 3, v6")
    a("v_add_u32 v6, s28, v6")
    a("v_subrev_u32 v7, 56, v1")
    a("v_cmp_gt_u32 vcc, 56, v1")
    a("s_nop 1")
    a("v_cndmask_b32 v7, v7, v1, vcc")
    a("v_mul_u32_u24 v8, 0x4a, v7")
    a("v_lshrrev_b32 v8, 10, v8")
    a("v_mul_u32_u24 v9, 14, v8")
    a("v_sub_u32 v9, v7, v9")
    a("v_mul_lo_u32 v7, v8, s29")
    a("v_lshl_add_u32 v7, v9, 4, v7")
    a("v_add_u32 v7, s28, v7")
    a("s_lshl_b32 s28, s23, 8")
    a("s_lshl_b32 s29, s21, 6")
    a("s_add_u32 s28, s28, s29")
    a("v_add_u32 v5, s28, v8")
    a("s_movk_i32 s28, 9216")
    a("v_mul_lo_u32 v5, v5, s28")
    a("s_mul_i32 s28, s25, 448")
    a("s_mul_i32 s29, s22, 224")
    a("s_add_u32 s28, s28, s29")
    a("v_lshl_add_u32 v9, v9, 4, s28")
    a("v_add_u32 v5, v5, v9")
    k0 = -2.0 * 0.7978845608028654 * 1.4426950408889634
    k1 = k0 * 0.044715
    a("s_mov_b32 s44, 0x%08x" % f32bits(k1))
    a("s_mov_b32 s45, 0x%08x" % f32bits(k1))
    a("s_mov_b32 s46, 1.0")
    a("s_mov_b32 s47, 1.0")
    a("v_mov_b32 v8, 0x%08x" % f32bits(k0))
    a("v_mov_b32 v9, 0x%08x" % f32bits(k0))
    a("s_barrier")

    def flush(mt):
        for j in range(4):
            a("ds_read_b128 %s, v7 offset:%d" % (vr(96 + j * 4, 4), (mt * 16 + j * 4) * RS))
        for j in range(4):
            a("s_waitcnt lgkmcnt(%d)" % (3 - j))
            a("s_mov_b32 s28, 0x%x" % ((mt * 16 + j * 4) * 9216))
            a("buffer_store_dwordx4 %s, v5, s[40:43], s28 offen%s" % (vr(96 + j * 4, 4), ST))

    for mt in range(4):
        for tt in range(NT):
            c = G1_ACC + (mt * NT + tt) * 4
            T = 64 + ((mt * NT + tt) & 1) * 16
            for p in range(2):
                a("v_pk_add_f32 %s, %s, %s" % (vr(T + 2 * p, 2), vr(c + 2 * p, 2), vr(32 + tt * 4 + 2 * p, 2)))
            for p in range(2):
                a("v_pk_mul_f32 %s, %s, %s" % (vr(T + 4 + 2 * p, 2), vr(T + 2 * p, 2), vr(T + 2 * p, 2)))
            for p in range(2):
                a("v_pk_fma_f32 %s, %s, s[44:45], v[8:9]" % (vr(T + 4 + 2 * p, 2), vr(T + 4 + 2 * p, 2)))
            for p in range(2):
                a("v_pk_mul_f32 %s, %s, %s" % (vr(T + 4 + 2 * p, 2), vr(T + 4 + 2 * p, 2), vr(T + 2 * p, 2)))
            for r in range(4):
                a("v_exp_f32 v%d, v%d" % (T + 4 + r, T + 4 + r))
            a("s_nop 0")
            for p in range(2):
                a("v_pk_add_f32 %s, %s, s[46:47]" % (vr(T + 4 + 2 * p, 2), vr(T + 4 + 2 * p, 2)))
            for r in range(4):
                a("v_rcp_f32 v%d, v%d" % (T + 4 + r, T + 4 + r))
            a("s_nop 0")
            for p in range(2):
                a("v_pk_mul_f32 %s, %s, %s" % (vr(T + 4 + 2 * p, 2), vr(T + 4 + 2 * p, 2), vr(T + 2 * p, 2)))
            a("v_cvt_pk_bf16_f32 v%d, v%d, v%d" % (T + 8, T + 4, T + 5))
            a("v_cvt_pk_bf16_f32 v%d, v%d, v%d" % (T + 9, T + 6, T + 7))
            a("ds_write_b64 v6, %s offset:%d" % (vr(T + 8, 2), mt * 16 * RS + tt * 32))
            if tt == 2 and mt > 0:
                flush(mt - 1)
        a("s_waitcnt lgkmcnt(0)")
    flush(3)


def bf16_round_pair(a, x0, x1, t):
    a("v_cvt_pk_bf16_f32 v%d, v%d, v%d" % (t, x0, x1))
    a("v_lshlrev_b32 v%d, 16, v%d" % (x0, t))
    a("v_and_b32 v%d, 0xffff0000, v%d" % (x1, t))


def xlane_g(a, op, regs, temps):
    for sw in ("v_permlane16_swap_b32", "v_permlane32_swap_b32"):
        for v, t in zip(regs, temps):
            a("v_mov_b32 v%d, v%d" % (t, v))
        a("s_nop 1")
        for v, t in zip(regs, temps):
            a("%s v%d, v%d" % (sw, v, t))
        a("s_nop 1")
        for (v, t), o in zip(zip(regs, temps), op):
            a("%s v%d, v%d, v%d" % (o, v, v, t))


def dpp16(a, ops, regs):
    for ctl in ("quad_perm:[1,0,3,2]", "quad_perm:[2,3,0,1]", "row_half_mirror", "row_mirror"):
        if len(regs) < 3:
            a("s_nop 1")
        for v, o in zip(regs, ops):
            a("%s_dpp v%d, v%d, v%d %s row_mask:0xf bank_mask:0xf" % (o, v, v, v, ctl))


def g1_softmax_batch(a, acc, WP, tt0):
    E = lambda mt: 32 + mt * 16
    FR = lambda mt: 96 + mt * 4
    MX = lambda mt: 112 + 2 * mt
    MN = lambda mt: 120 + 2 * mt
    P = lambda mt: acc(mt, tt0)
    R = range(4)
    for mt in R:
        for i in range(4):
            a("v_cvt_pk_bf16_f32 v%d, v%d, v%d" % (FR(mt) + i, P(mt) + 2 * i, P(mt) + 2 * i + 1))
    a("s_nop 1")
    for mt in R:
        for ft in range(2):
            a("v_mfma_f32_16x16x32_bf16 %s, %s, %s, 0" % (vr(P(mt) + ft * 4, 4), vr(WP[ft], 4), vr(FR(mt), 4)))
    a("s_nop 7")
    for mt in R:
        for i in range(4):
            a("v_cvt_pk_bf16_f32 v%d, v%d, v%d" % (E(mt) + i, P(mt) + 2 * i, P(mt) + 2 * i + 1))
    for mt in R:
        for i in range(4):
            a("v_lshlrev_b32 v%d, 16, v%d" % (P(mt) + 2 * i, E(mt) + i))
            a("v_and_b32 v%d, 0xffff0000, v%d" % (P(mt) + 2 * i + 1, E(mt) + i))
    for op3, op2, M in (("v_max3_f32", "v_max_f32", MX), ("v_min3_f32", "v_min_f32", MN)):
        for mt in R:
            a("%s v%d, v%d, v%d, v%d" % (op3, M(mt), P(mt), P(mt) + 1, P(mt) + 2))
        for mt in R:
            a("%s v%d, v%d, v%d, v%d" % (op3, M(mt), M(mt), P(mt) + 3, P(mt) + 4))
        for mt in R:
            a("%s v%d, v%d, v%d, v%d" % (op3, M(mt), M(mt), P(mt) + 5, P(mt) + 6))
        for mt in R:
            a("%s v%d, v%d, v%d" % (op2, M(mt), M(mt), P(mt) + 7))

    def xl(opx, opn):
        regs = [(MX(mt), opx) for mt in R] + [(MN(mt), opn) for mt in R]
        for sw in ("v_permlane16_swap_b32", "v_permlane32_swap_b32"):
            for v, o in regs:
                a("v_mov_b32 v%d, v%d" % (v + 1, v))
            a("s_nop 0")
            for v, o in regs:
                a("%s v%d, v%d" % (sw, v, v + 1))
            a("s_nop 0")
            for v, o in regs:
                a("%s v%d, v%d, v%d" % (o, v, v, v + 1))
    xl("v_max_f32", "v_min_f32")
    for mt in R:
        a("v_mul_f32 v%d, s48, v%d" % (MX(mt), MX(mt)))
        a("v_mul_f32 v%d, s48, v%d" % (MN(mt), MN(mt)))
    for mt in R:
        for i in range(4):
            a("v_pk_fma_f32 %s, %s, s[48:49], %s op_sel_hi:[1,1,0] neg_lo:[0,0,1] neg_hi:[0,0,1]" % (
                vr(E(mt) + 2 * i, 2), vr(P(mt) + 2 * i, 2), vr(MX(mt), 2)))
            a("v_pk_fma_f32 %s, %s, s[48:49], %s op_sel_hi:[1,1,0] neg_lo:[1,0,0] neg_hi:[1,0,0]" % (
                vr(E(mt) + 8 + 2 * i, 2), vr(P(mt) + 2 * i, 2), vr(MN(mt), 2)))
    for mt in R:
        for i in range(16):
            a("v_exp_f32 v%d, v%d" % (E(mt) + i, E(mt) + i))
    a("s_nop 0")
    for M, o in ((MX, 0), (MN, 8)):
        for mt in R:
            a("v_pk_add_f32 %s, %s, %s" % (vr(M(mt), 2), vr(E(mt) + o, 2), vr(E(mt) + o + 2, 2)))
        for mt in R:
            a("v_pk_add_f32 %s, %s, %s" % (vr(M(mt), 2), vr(M(mt), 2), vr(E(mt) + o + 4, 2)))
        for mt in R:
            a("v_pk_add_f32 %s, %s, %s" % (vr(M(mt), 2), vr(M(mt), 2), vr(E(mt) + o + 6, 2)))
        for mt in R:
            a("v_add_f32 v%d, v%d, v%d" % (M(mt), M(mt), M(mt) + 1))
    xl("v_add_f32", "v_add_f32")
    for mt in R:
        a("v_rcp_f32 v%d, v%d" % (MX(mt), MX(mt)))
        a("v_rcp_f32 v%d, v%d" % (MN(mt), MN(mt)))
    a("s_nop 0")
    for mt in R:
        for i in range(4):
            a("v_pk_mul_f32 %s, %s, %s op_sel_hi:[1,0]" % (vr(E(mt) + 2 * i, 2), vr(E(mt) + 2 * i, 2), vr(MX(mt), 2)))
            a("v_pk_mul_f32 %s, %s, %s op_sel_hi:[1,0]" % (vr(E(mt) + 8 + 2 * i, 2), vr(E(mt) + 8 + 2 * i, 2), vr(MN(mt), 2)))
    for mt in R:
        for i in range(8):
            a("v_cvt_pk_bf16_f32 v%d, v%d, v%d" % (P(mt) + i, E(mt) + 2 * i, E(mt) + 2 * i + 1))


def g1_qkv_epilogue(a):
    NT = 6
    WP = (G1_X, G1_X + 4)
    KS = 160
    SH = 98304

    def acc(mt, tt):
        return G1_ACC + (mt * NT + tt) * 4

    srd(a, 40, 4, WS_PQ, SZ_PQ)
    srd(a, 44, 4, WS_KV, SZ_KV)
    a("s_mov_b32 s48, 0x%08x" % LOG2E)
    a("s_mov_b32 s49, 0x%08x" % LOG2E)
    a("s_mul_i32 s50, s20, 12288")
    for i in range(8):
        a("v_lshl_or_b32 v%d, v%d, 16, v%d" % (G1_X + i, 224 + 2 * i + 1, 224 + 2 * i))
    a("s_movk_i32 s28, %d" % KS)
    a("v_mul_lo_u32 v5, v3, s28")
    a("v_lshl_add_u32 v5, v4, 3, v5")
    a("v_add_u32 v5, s50, v5")
    a("v_bfe_u32 v6, v1, 2, 2")
    a("v_lshl_add_u32 v6, v4, 2, v6")
    a("v_mul_lo_u32 v6, v6, s28")
    a("v_and_b32 v7, 3, v1")
    a("v_lshl_add_u32 v6, v7, 3, v6")
    a("v_add_u32 v6, s50, v6")
    a("v_lshlrev_b32 v7, 4, v1")
    a("s_barrier")
    g1_softmax_batch(a, acc, WP, 2)
    for mt in range(4):
        for q in range(4):
            a("ds_write_b64 v5, %s offset:%d" % (vr(acc(mt, 2) + 2 * q, 2), mt * 16 * KS + q * 32))
    KV, AF, BF, ONE = 64, 32, 112, 16
    for u in range(2):
        for dt in range(2):
            for hf in range(2):
                for p in range(2):
                    c = acc(2 * u + hf, 4 + dt) + 2 * p
                    a("v_cvt_pk_bf16_f32 v%d, v%d, v%d" % (BF + (u * 2 + dt) * 4 + hf * 2 + p, c, c + 1))
    for i in range(4):
        a("v_mov_b32 v%d, 0x3f803f80" % (ONE + i))
    a("s_waitcnt lgkmcnt(0)")
    for u in range(2):
        for fq in range(4):
            for hf in range(2):
                a("ds_read_b64_tr_b16 %s, v6 offset:%d" % (vr(AF + (u * 4 + fq) * 4 + hf * 2, 2), (2 * u + hf) * 16 * KS + fq * 32))
    a("s_waitcnt lgkmcnt(8)")
    for u in range(2):
        if u == 1:
            a("s_waitcnt lgkmcnt(0)")
        for fq in range(4):
            for t in range(3):
                c = KV + (fq * 2 + t) * 4 if t < 2 else KV + (8 + fq) * 4
                b = BF + (u * 2 + t) * 4 if t < 2 else ONE
                a("v_mfma_f32_16x16x32_bf16 %s, %s, %s, %s" % (vr(c, 4), vr(AF + (u * 4 + fq) * 4, 4), vr(b, 4), vr(c, 4) if u else "0"))
    a("v_add_u32 v8, s50, v7")
    a("s_nop 7")
    for t in range(12):
        a("ds_write_b128 v8, %s offset:%d" % (vr(KV + t * 4, 4), t * 1024))
    a("s_lshr_b32 s28, s20, 2")
    a("s_mul_i32 s28, s28, 12288")
    a("s_and_b32 s29, s20, 3")
    a("s_mul_i32 s29, s29, 3072")
    a("s_add_u32 s28, s28, s29")
    a("v_add_u32 v8, s28, v7")
    a("v_add_u32 v9, 0xc000, v8")
    a("s_lshl_b32 s28, s25, 3")
    a("s_add_u32 s28, s28, s23")
    a("s_mul_i32 s28, s28, 24")
    a("s_mul_i32 s29, s20, 3")
    a("s_add_u32 s28, s28, s29")
    a("s_lshl_b32 s28, s28, 10")
    a("v_add_u32 v10, s28, v7")
    a("s_waitcnt lgkmcnt(0)")
    a("s_barrier")
    for wm in range(4):
        for i in range(3):
            a("ds_read_b128 %s, %s offset:%d" % (vr(32 + (wm * 3 + i) * 4, 4), "v9" if wm >= 2 else "v8", (wm & 1) * 24576 + i * 1024))
    a("s_waitcnt lgkmcnt(0)")
    for wm in range(1, 4):
        for i in range(6):
            a("v_pk_add_f32 %s, %s, %s" % (vr(32 + 2 * i, 2), vr(32 + 2 * i, 2), vr(32 + wm * 12 + 2 * i, 2)))
    for i in range(3):
        a("buffer_store_dwordx4 %s, v10, s[44:47], 0 offen offset:%d%s" % (vr(32 + i * 4, 4), i * 1024, ST))
    a("s_nop 1")
    g1_softmax_batch(a, acc, WP, 0)
    a("s_lshl_b32 s28, s25, 3")
    a("s_add_u32 s28, s28, s23")
    a("s_lshl_b32 s28, s28, 3")
    a("s_add_u32 s28, s28, s20")
    a("s_lshl_b32 s28, s28, 13")
    a("v_add_u32 v10, s28, v7")
    a("s_movk_i32 s29, 4096")
    for mt in range(4):
        for kk in range(2):
            q = mt * 2 + kk
            a("buffer_store_dwordx4 %s, v10, s[40:43], %s offen offset:%d%s" % (vr(acc(mt, 0) + kk * 4, 4), "s29" if q >= 4 else "0", (q % 4) * 1024, ST))


def g2_apply(a):
    SH = 98304

    def acc(mt, tt):
        return 128 + mt * 8

    a("s_and_b32 s57, s2, 15")
    a("s_lshr_b32 s58, s2, 4")
    a("s_lshr_b32 s59, s20, 1")
    a("s_and_b32 s38, s20, 1")
    srd(a, 48, 4, WS_PQ, SZ_PQ)
    srd(a, 52, 4, WS_KV, SZ_KV)
    a("s_mul_i32 s56, s20, 12288")
    a("v_lshlrev_b32 v7, 4, v1")
    a("s_lshl_b32 s28, s57, 3")
    a("s_add_u32 s28, s28, s58")
    a("s_lshl_b32 s28, s28, 3")
    a("s_add_u32 s28, s28, s20")
    a("s_lshl_b32 s28, s28, 13")
    a("v_add_u32 v10, s28, v7")
    a("s_movk_i32 s29, 4096")
    for q in range(8):
        a("buffer_load_dwordx4 %s, v10, s[48:51], %s offen offset:%d" % (vr(128 + q * 4, 4), "s29" if q >= 4 else "0", (q % 4) * 1024))
    a("s_mul_i32 s28, s57, %d" % (8 * 24))
    a("s_mul_i32 s29, s20, 3")
    a("s_add_u32 s28, s28, s29")
    a("s_lshl_b32 s28, s28, 10")
    a("v_add_u32 v10, s28, v7")
    for rb in range(8):
        a("s_mov_b32 s28, 0x%x" % (rb * 24576))
        for i in range(3):
            a("buffer_load_dwordx4 %s, v10, s[52:55], s28 offen offset:%d" % (vr(32 + (rb * 3 + i) * 4, 4), i * 1024))
    a("s_mul_i32 s28, s20, 1536")
    a("s_add_u32 s28, s28, %d" % SH)
    a("v_lshl_add_u32 v8, v1, 3, s28")
    a("s_mul_i32 s28, s38, 6144")
    a("s_add_u32 s28, s28, %d" % SH)
    a("v_lshl_add_u32 v9, v1, 3, s28")
    for rb in range(1, 8):
        a("s_waitcnt vmcnt(%d)" % ((7 - rb) * 3))
        for i in range(6):
            a("v_pk_add_f32 %s, %s, %s" % (vr(32 + 2 * i, 2), vr(32 + 2 * i, 2), vr(32 + rb * 12 + 2 * i, 2)))
    for i in range(6):
        a("v_cvt_pk_bf16_f32 v%d, v%d, v%d" % (16 + i, 32 + 2 * i, 33 + 2 * i))
    for i in range(3):
        a("ds_write_b64 v8, %s offset:%d" % (vr(16 + 2 * i, 2), i * 512))
    a("s_waitcnt lgkmcnt(0)")
    a("s_barrier")
    for t in range(3):
        for kk in range(2):
            for hf in range(2):
                fq = 2 * kk + hf
                tile = fq * 2 + t if t < 2 else 8 + fq
                a("ds_read_b64 %s, v9 offset:%d" % (vr(32 + (t * 2 + kk) * 4 + hf * 2, 2), tile * 512))
    a("s_movk_i32 s28, 80")
    a("v_mul_lo_u32 v5, v3, s28")
    a("v_lshl_add_u32 v5, v4, 3, v5")
    a("v_add_u32 v5, s56, v5")
    a("v_lshrrev_b32 v12, 2, v1")
    a("v_mul_lo_u32 v6, v12, s28")
    a("v_and_b32 v13, 3, v1")
    a("v_lshl_add_u32 v6, v13, 4, v6")
    a("v_add_u32 v6, s56, v6")
    a("s_lshl_b32 s28, s58, 8")
    a("s_lshl_b32 s29, s59, 6")
    a("s_add_u32 s28, s28, s29")
    a("v_add_u32 v12, s28, v12")
    a("s_movk_i32 s28, 9216")
    a("v_mul_lo_u32 v12, v12, s28")
    a("s_lshl_b32 s28, s57, 1")
    a("s_add_u32 s28, s28, s38")
    a("s_lshl_b32 s28, s28, 6")
    a("s_add_u32 s28, s28, 7168")
    a("v_lshl_add_u32 v13, v13, 4, s28")
    a("v_add_u32 v12, v12, v13")
    a("s_waitcnt lgkmcnt(0)")
    for kk in range(2):
        for mt in range(4):
            for t in range(3):
                c = 64 + (mt * 3 + t) * 4
                a("v_mfma_f32_16x16x32_bf16 %s, %s, %s, %s" % (vr(c, 4), vr(32 + (t * 2 + kk) * 4, 4), vr(acc(mt, 0) + kk * 4, 4), vr(c, 4) if kk else "0"))
    a("s_nop 7")
    R = range(4)
    for mt in R:
        a("v_cvt_pk_bf16_f32 v%d, v%d, v%d" % (112 + 2 * mt, 72 + mt * 12, 72 + mt * 12))
    for mt in R:
        a("v_lshlrev_b32 v%d, 16, v%d" % (112 + 2 * mt, 112 + 2 * mt))
    for mt in R:
        a("v_add_f32 v%d, 0x358637bd, v%d" % (112 + 2 * mt, 112 + 2 * mt))
    for mt in R:
        a("v_cvt_pk_bf16_f32 v%d, v%d, v%d" % (112 + 2 * mt, 112 + 2 * mt, 112 + 2 * mt))
    for mt in R:
        a("v_lshlrev_b32 v%d, 16, v%d" % (112 + 2 * mt, 112 + 2 * mt))
    for mt in R:
        a("v_rcp_f32 v%d, v%d" % (112 + 2 * mt, 112 + 2 * mt))
    for mt in R:
        for i in range(4):
            a("v_cvt_pk_bf16_f32 v%d, v%d, v%d" % (16 + i, 64 + mt * 12 + 2 * i, 65 + mt * 12 + 2 * i))
        for i in range(4):
            a("v_lshlrev_b32 v%d, 16, v%d" % (64 + mt * 12 + 2 * i, 16 + i))
            a("v_and_b32 v%d, 0xffff0000, v%d" % (65 + mt * 12 + 2 * i, 16 + i))
        for i in range(4):
            a("v_pk_mul_f32 %s, %s, %s op_sel_hi:[1,0]" % (vr(64 + mt * 12 + 2 * i, 2), vr(64 + mt * 12 + 2 * i, 2), vr(112 + 2 * mt, 2)))
        for i in range(4):
            a("v_cvt_pk_bf16_f32 v%d, v%d, v%d" % (20 + (mt & 1) * 4 + i, 64 + mt * 12 + 2 * i, 65 + mt * 12 + 2 * i))
        for dt in range(2):
            a("ds_write_b64 v5, %s offset:%d" % (vr(20 + (mt & 1) * 4 + 2 * dt, 2), mt * 16 * 80 + dt * 32))
    a("s_waitcnt lgkmcnt(0)")
    for j in range(4):
        a("ds_read_b128 %s, v6 offset:%d" % (vr(32 + j * 4, 4), j * 16 * 80))
    for j in range(4):
        a("s_waitcnt lgkmcnt(%d)" % (3 - j))
        a("s_mov_b32 s28, 0x%x" % (j * 16 * 9216))
        a("buffer_store_dwordx4 %s, v12, s[8:11], s28 offen sc1" % vr(32 + j * 4, 4))
    a("s_barrier")


def g2_apply_signal(a):
    a("s_lshr_b32 s28, s2, 4")
    a("s_lshl_b32 s28, s28, 8")
    a("s_add_u32 s28, s28, 32768")
    a("v_mov_b32 v28, s28")
    a("s_waitcnt vmcnt(16)")
    a("s_barrier")
    a("s_cmp_lg_u32 s20, 0")
    a("s_cbranch_scc1 g2_ap_sig")
    a("v_mov_b32 v29, 1")
    a("s_mov_b64 exec, 1")
    a("buffer_atomic_add v29, v28, s[44:47], 0 offen sc1")
    a("s_mov_b64 exec, -1")
    a.label("g2_ap_sig")


def gen_apply(a):
    L = "apply_kernel"
    kernel_head(a, L)
    a("s_cmp_ge_u32 s2, 256")
    a("s_cbranch_scc1 ap_done")
    a("s_load_dwordx2 s[4:5], s[0:1], %d" % KA_WS)
    a("v_and_b32 v1, 63, v0")
    a("v_lshrrev_b32 v2, 6, v0")
    a("v_and_b32 v3, 15, v1")
    a("v_lshrrev_b32 v4, 4, v1")
    a("s_and_b32 s20, s2, 31")
    a("s_lshr_b32 s21, s2, 5")
    a("s_waitcnt lgkmcnt(0)")
    srd(a, 8, 4, WS_KV, SZ_KV)
    srd(a, 12, 4, WS_PQ, SZ_PQ)
    srd(a, 16, 4, WS_HC, SZ_HC)
    a("s_lshl_b32 s22, s20, 11")
    a("s_lshl_b32 s23, s21, 8")
    a("s_add_u32 s22, s22, s23")
    a("v_lshl_add_u32 v5, v2, 6, v3")
    a("v_add_u32 v5, s22, v5")
    a("v_lshlrev_b32 v5, 7, v5")
    a("v_lshl_add_u32 v5, v4, 4, v5")
    for st in range(4):
        for kk in range(2):
            if st < 2:
                a("buffer_load_dwordx4 %s, v5, s[12:15], 0 offen offset:%d" % (vr(64 + (st * 2 + kk) * 4, 4), st * 2048 + kk * 64))
            else:
                a("s_movk_i32 s24, 4096")
                a("buffer_load_dwordx4 %s, v5, s[12:15], s24 offen offset:%d" % (vr(64 + (st * 2 + kk) * 4, 4), (st - 2) * 2048 + kk * 64))
    a("s_lshl_b32 s22, s20, 14")
    a("v_lshlrev_b32 v6, 5, v0")
    a("v_add_u32 v6, s22, v6")
    for rb in range(8):
        a("s_mov_b32 s24, 0x%x" % (rb << 19))
        a("buffer_load_dwordx4 %s, v6, s[8:11], s24 offen" % vr(96 + rb * 8, 4))
        a("buffer_load_dwordx4 %s, v6, s[8:11], s24 offen offset:16" % vr(100 + rb * 8, 4))
    a("v_and_b32 v7, 7, v0")
    a("v_lshlrev_b32 v7, 5, v7")
    a("v_add_u32 v7, s22, v7")
    for rb in range(8):
        a("s_mov_b32 s24, 0x%x" % ((rb << 19) + 8192))
        a("buffer_load_dwordx4 %s, v7, s[8:11], s24 offen" % vr(160 + rb * 8, 4))
        a("buffer_load_dwordx4 %s, v7, s[8:11], s24 offen offset:16" % vr(164 + rb * 8, 4))
    a("s_waitcnt vmcnt(0)")
    for base in (96, 160):
        for rb in range(1, 8):
            for i in range(8):
                a("v_add_f32 v%d, v%d, v%d" % (base + i, base + i, base + rb * 8 + i))
    for i in range(4):
        a("v_cvt_pk_bf16_f32 v%d, v%d, v%d" % (8 + i, 96 + 2 * i, 97 + 2 * i))
        a("v_cvt_pk_bf16_f32 v%d, v%d, v%d" % (12 + i, 160 + 2 * i, 161 + 2 * i))
    a("v_lshlrev_b32 v6, 4, v0")
    a("ds_write_b128 v6, v[8:11]")
    a("v_and_b32 v7, 7, v0")
    a("v_lshlrev_b32 v7, 4, v7")
    a("ds_write_b128 v7, v[12:15] offset:4096")
    a("s_waitcnt lgkmcnt(0)")
    a("s_barrier")
    a("v_lshlrev_b32 v6, 7, v3")
    a("v_lshl_add_u32 v6, v4, 4, v6")
    a("v_lshlrev_b32 v7, 4, v4")
    for dt in range(2):
        for kk in range(2):
            a("ds_read_b128 %s, v6 offset:%d" % (vr(8 + (dt * 2 + kk) * 4, 4), dt * 2048 + kk * 64))
    for kk in range(2):
        a("ds_read_b128 %s, v7 offset:%d" % (vr(24 + kk * 4, 4), 4096 + kk * 64))
    a("s_lshl_b32 s23, s21, 8")
    a("v_lshl_add_u32 v5, v2, 6, v3")
    a("v_add_u32 v5, s23, v5")
    a("s_movk_i32 s24, 9216")
    a("v_mul_lo_u32 v5, v5, s24")
    a("s_lshl_b32 s23, s20, 6")
    a("s_add_u32 s23, s23, 7168")
    a("v_lshl_add_u32 v6, v4, 3, s23")
    a("v_add_u32 v5, v5, v6")
    a("s_waitcnt lgkmcnt(0)")
    for st in range(4):
        C = 96 + st * 12
        for t in range(3):
            a("v_mfma_f32_16x16x32_bf16 %s, %s, %s, 0" % (vr(C + t * 4, 4), vr(8 + t * 8, 4), vr(64 + st * 8, 4)))
        for t in range(3):
            a("v_mfma_f32_16x16x32_bf16 %s, %s, %s, %s" % (vr(C + t * 4, 4), vr(12 + t * 8, 4), vr(68 + st * 8, 4), vr(C + t * 4, 4)))
    a("s_nop 7")
    a("s_nop 7")
    for st in range(4):
        C = 96 + st * 12
        a("v_cvt_pk_bf16_f32 v32, v%d, v%d" % (C + 8, C + 8))
        a("v_lshlrev_b32 v32, 16, v32")
        a("v_add_f32 v32, 0x358637bd, v32")
        a("v_cvt_pk_bf16_f32 v32, v32, v32")
        a("v_lshlrev_b32 v32, 16, v32")
        a("v_rcp_f32 v32, v32")
        for i in range(4):
            bf16_round_pair(a, C + 2 * i, C + 2 * i + 1, 33)
        for i in range(8):
            a("v_mul_f32 v%d, v%d, v32" % (C + i, C + i))
        for i in range(4):
            a("v_cvt_pk_bf16_f32 v%d, v%d, v%d" % (40 + st * 4 + i, C + 2 * i, C + 2 * i + 1))
        a("buffer_store_dwordx2 %s, v5, s[16:19], 0 offen" % vr(40 + st * 4, 2))
        a("buffer_store_dwordx2 %s, v5, s[16:19], 0 offen offset:32" % vr(42 + st * 4, 2))
        if st < 3:
            a("v_add_u32 v5, %d, v5" % (16 * 9216))
    a.label("ap_done")
    a("s_endpgm")
    return L, 224


G2_ACC = 128
G2_FA = (32, 64)
G2_FB = (48, 80)
G2_VA = 16
G2_VB = (18, 19, 20, 21)
G2_N0 = int(os.environ.get("G2_N0", "24"))
G2_DMAPOS = (1, 5, 9, 13)


def g2_mfmas(st):
    out = []
    for mt in range(4):
        for nt in range(4):
            c = G2_ACC + (mt * 4 + nt) * 4
            out.append("v_mfma_f32_16x16x32_bf16 %s, %s, %s, %s" % (
                vr(c, 4), vr(G2_FB[st] + nt * 4, 4), vr(G2_FA[st] + mt * 4, 4), vr(c, 4)))
    return out


def g2_reads(st, buf):
    out = []
    for mt in range(4):
        out.append(["ds_read_b128 %s, %s offset:%d" % (vr(G2_FA[st] + mt * 4, 4), vr(G2_VA), buf * 16384 + mt * 2048)])
    for nt in range(4):
        for rd in range(2):
            out.append(["ds_read_b64_tr_b16 %s, %s offset:%d" % (vr(G2_FB[st] + nt * 4 + rd * 2, 2), vr(G2_VB[nt]), buf * 16384 + rd * 1024)])
    return out


def g2_dmas(buf):
    out = [["s_cmp_eq_u32 s19, 0",
            "s_cselect_b32 s12, s30, s12",
            "s_cselect_b32 s13, s31, s13",
            "s_cselect_b32 s14, 0x%x, s14" % (D * D * 2),
            "s_cselect_b32 s17, 0, s17",
            "s_sub_u32 s19, s19, 1"]]
    for j in range(2):
        out.append(["s_add_u32 m0, s27, %d" % (buf * 16384 + j * 1024),
                    "s_nop 0",
                    "buffer_load_dwordx4 v%d, s[8:11], s16 offen%s lds" % (8 + j, "" if "NOSC1A" in FLAGS else " sc1")])
    for j in range(2):
        out.append(["s_add_u32 m0, s27, %d" % (65536 + buf * 16384 + j * 1024),
                    "s_nop 0",
                    "buffer_load_dwordx4 v%d, s[12:15], s17 offen lds" % (12 + j)])
    out.append(["s_add_u32 s16, s16, 128", "s_add_u32 s17, s17, %d" % (64 * 2048)])
    return out


def g2_iter(a, i, dma, nxt, vm):
    slots = {}
    if dma and "NODMA" not in FLAGS:
        d = g2_dmas(i % 4)
        slots.setdefault(0, []).append(d[0])
        for j in range(4):
            slots.setdefault(G2_DMAPOS[j], []).append(d[1 + j])
        slots.setdefault(G2_DMAPOS[3], []).append(d[5])
    if nxt:
        r = g2_reads((i + 1) & 1, (i + 1) % 4)
        pos = [p for p in range(16) if p not in G2_DMAPOS][:12]
        for p, x in zip(pos, r):
            slots.setdefault(p, []).append(x)
    place(a, g2_mfmas(i & 1), slots)
    if nxt:
        if vm is None:
            a("s_waitcnt lgkmcnt(0)")
        else:
            a("s_waitcnt vmcnt(%d) lgkmcnt(0)" % vm)
        a("s_barrier")


def gen_gemm2(a):
    L = "gemm2_kernel"
    kernel_head(a, L)
    a("s_cmp_ge_u32 s2, 256")
    a("s_cbranch_scc1 g2_done")
    stamp(a, 0)
    stamp_rt(a, 6)
    a("s_load_dwordx2 s[4:5], s[0:1], %d" % KA_WS)
    a("s_load_dwordx2 s[6:7], s[0:1], %d" % KA_W2)
    a("s_load_dwordx2 s[30:31], s[0:1], %d" % KA_WO)
    a("s_load_dwordx2 s[32:33], s[0:1], %d" % KA_X)
    a("s_load_dwordx2 s[34:35], s[0:1], %d" % KA_B2)
    a("s_load_dwordx2 s[36:37], s[0:1], %d" % KA_OUT)
    g1_common_addr(a)
    a("s_and_b32 s21, s2, 7")
    a("s_lshr_b32 s23, s2, 7")
    a("s_bfe_u32 s24, s2, 0x20003")
    a("s_and_b32 s25, s21, 3")
    a("s_lshl_b32 s25, s25, 2")
    a("s_add_u32 s24, s24, s25")
    a("s_bfe_u32 s25, s2, 0x20005")
    a("s_lshr_b32 s26, s21, 2")
    a("s_lshl_b32 s26, s26, 2")
    a("s_add_u32 s25, s25, s26")
    if "SAMETILE" in FLAGS:
        a("s_mov_b32 s24, 0")
        a("s_mov_b32 s25, 0")
        a("s_mov_b32 s23, 0")
    a("s_lshr_b32 s21, s20, 2")
    a("s_bfe_u32 s22, s20, 0x10001")
    a("s_and_b32 s26, s20, 1")
    a("s_lshl_b32 s27, s20, 11")
    a("s_waitcnt lgkmcnt(0)")
    srd(a, 8, 4, WS_HC, SZ_HC)
    srd(a, 44, 4, WS_FL, SZ_FL)
    a("s_cmp_lg_u32 s23, 0")
    a("s_cbranch_scc1 g2_noapply")
    g2_apply(a)
    a.label("g2_noapply")
    a("v_lshrrev_b32 v5, 3, v1")
    a("s_lshl_b32 s28, s24, 7")
    a("s_lshl_b32 s29, s20, 4")
    a("s_add_u32 s28, s28, s29")
    a("v_add_u32 v5, s28, v5")
    a("s_movk_i32 s28, 9216")
    a("v_mul_lo_u32 v5, v5, s28")
    a("v_and_b32 v6, 7, v1")
    for j in range(2):
        a("v_add_u32 v7, %d, v4" % (4 * j))
        a("v_and_b32 v7, 7, v7")
        a("v_xor_b32 v7, v7, v6")
        a("v_lshl_add_u32 v7, v7, 4, v5")
        a("v_add_u32 v%d, %d, v7" % (8 + j, j * 8 * 9216))
    a("s_lshl_b32 s28, s20, 3")
    a("v_add_u32 v5, s28, v4")
    a("v_lshlrev_b32 v5, 11, v5")
    a("s_lshl_b32 s28, s25, 8")
    a("v_add_u32 v5, s28, v5")
    a("s_lshl_b32 s28, s26, 2")
    a("v_or_b32 v7, s28, v4")
    a("v_lshlrev_b32 v7, 1, v7")
    a("v_xor_b32 v7, v7, v3")
    a("v_lshl_add_u32 v12, v7, 4, v5")
    a("v_add_u32 v13, %d, v12" % (4 * 2048))
    a("s_lshl_b32 s28, s21, 2")
    a("v_add_u32 v5, s28, v4")
    a("v_lshrrev_b32 v6, 1, v3")
    a("v_xor_b32 v5, v5, v6")
    a("s_lshl_b32 s28, s22, 6")
    a("v_add_u32 v6, s28, v3")
    a("v_lshlrev_b32 v6, 7, v6")
    a("v_lshl_add_u32 v%d, v5, 4, v6" % G2_VA)
    a("v_bfe_u32 v5, v1, 2, 2")
    a("v_and_b32 v6, 1, v4")
    a("v_lshl_or_b32 v6, v6, 2, v5")
    a("v_lshl_add_u32 v5, v4, 3, v5")
    a("s_lshl_b32 s28, s21, 5")
    a("v_add_u32 v5, s28, v5")
    a("v_lshlrev_b32 v5, 8, v5")
    a("v_and_b32 v7, 3, v1")
    a("v_lshl_add_u32 v5, v7, 3, v5")
    a("v_add_u32 v5, 0x10000, v5")
    for nt in range(4):
        a("s_lshl_b32 s28, s26, 2")
        a("s_add_u32 s28, s28, %d" % nt)
        a("v_xor_b32 v7, s28, v6")
        a("v_lshl_add_u32 v%d, v7, 5, v5" % G2_VB[nt])
    srd(a, 12, 6, 0, F * D * 2)
    a("s_and_b32 s31, s31, 0xffff")
    a("s_mul_i32 s16, s23, %d" % (G2_N0 * 64 * 2))
    a("s_mul_i32 s17, s23, %d" % (G2_N0 * 64 * 2048))
    a("s_mov_b32 s19, 1000")
    a("s_mov_b32 s18, %d" % ((G2_N0 - 4) // 4))
    a("s_cmp_eq_u32 s23, 1")
    a("s_cselect_b32 s19, %d, s19" % (56 - G2_N0))
    a("s_cselect_b32 s18, %d, s18" % ((72 - G2_N0 - 4) // 4))
    a("s_cselect_b32 s3, %d, 0" % ((72 - G2_N0 - 4) // 4 - (56 - G2_N0 - 4) // 4))
    a("s_lshr_b32 s28, s24, 1")
    a("s_lshl_b32 s28, s28, 8")
    a("s_add_u32 s28, s28, 32768")
    a("v_mov_b32 v27, s28")
    srd(a, 40, 4, WS_P, SZ_P)
    a("s_lshl_b32 s28, s24, 3")
    a("s_add_u32 s28, s28, s25")
    a("s_lshl_b32 s38, s28, 8")
    a("s_lshl_b32 s39, s28, 16")
    a("s_lshl_b32 s28, s20, 13")
    a("s_add_u32 s39, s39, s28")
    a("v_mov_b32 v22, s38")
    a("v_lshlrev_b32 v24, 4, v1")
    a("v_add_u32 v24, s39, v24")
    a("s_movk_i32 s39, 4096")
    srd(a, 48, 32, 0, S * D * 2)
    srd(a, 52, 34, 0, D * 2)
    srd(a, 56, 36, 0, S * D * 2)
    a("s_lshl_b32 s28, s24, 7")
    a("s_lshl_b32 s29, s20, 4")
    a("s_add_u32 s28, s28, s29")
    a("v_add_u32 v25, s28, v4")
    a("v_lshlrev_b32 v25, 11, v25")
    a("s_lshl_b32 s28, s25, 8")
    a("v_lshl_add_u32 v26, v3, 4, s28")
    a("v_add_u32 v25, v25, v26")
    for st in range(4):
        for f in g2_dmas(st):
            for x in f:
                a(x)
    for i in range(64):
        a("v_mov_b32 v%d, 0" % (G2_ACC + i))
    a("s_cmp_lg_u32 s23, 0")
    a("s_cbranch_scc1 g2_nosig")
    g2_apply_signal(a)
    a.label("g2_nosig")
    stamp(a, 1)
    a("s_waitcnt vmcnt(12)")
    a("s_barrier")
    stamp(a, 2)
    for f in g2_reads(0, 0):
        for x in f:
            a(x)
    a("s_waitcnt vmcnt(8) lgkmcnt(0)")
    a("s_barrier")
    a("v_mov_b32 v23, 0")
    a.label("g2_loop")
    a("s_cmp_eq_u32 s18, s3")
    a("s_cbranch_scc1 g2_opoll")
    a("s_add_u32 s28, s3, 1")
    a("s_cmp_lg_u32 s18, s28")
    a("s_cbranch_scc1 g2_loop2")
    a("buffer_load_dword v23, v27, s[44:47], 0 offen sc1")
    a.label("g2_loop2")
    for i in range(4):
        g2_iter(a, i, True, True, 8)
    a("s_sub_u32 s18, s18, 1")
    a("s_cmp_lg_u32 s18, 0")
    a("s_cbranch_scc1 g2_loop")
    stamp(a, 8)
    a("buffer_load_dword v23, v22, s[44:47], 0 offen sc1")
    g2_iter(a, 0, False, True, 5)
    a("s_cmp_eq_u32 s23, 0")
    a("s_cbranch_scc1 g2_pubtail")
    for j in range(4):
        a("s_mov_b32 s38, 0x%x" % (j * 4 * 2048))
        a("buffer_load_dwordx4 %s, v25, s[48:51], s38 offen" % vr(224 + j * 4, 4))
    a("buffer_load_dwordx4 v[240:243], v26, s[52:55], 0 offen")
    g2_iter(a, 1, False, True, 5)
    stamp(a, 7)
    a("s_mov_b32 s29, 0")
    a("s_branch g2_chk")
    a.label("g2_spin")
    a("buffer_load_dword v23, v22, s[44:47], 0 offen sc1")
    a("s_waitcnt vmcnt(0)")
    a.label("g2_chk")
    a("v_readfirstlane_b32 s28, v23")
    a("s_add_u32 s29, s29, 1")
    a("s_cmp_ge_u32 s28, 1")
    a("s_cbranch_scc1 g2_go")
    a("s_sleep 2")
    a("s_cmp_lt_u32 s29, 0x100000")
    a("s_cbranch_scc1 g2_spin")
    a.label("g2_go")
    stamp(a, 9)
    for t in range(8):
        a("buffer_load_dwordx4 %s, v24, s[40:43], %s offen offset:%d sc1" % (vr(192 + t * 4, 4), "s39" if t >= 4 else "0", (t % 4) * 1024))
    a("s_branch g2_tail")
    a.label("g2_pubtail")
    g2_iter(a, 1, False, True, 0)
    a.label("g2_tail")
    g2_iter(a, 2, False, True, None)
    g2_iter(a, 3, False, False, None)
    stamp(a, 3)
    a("s_nop 7")
    a("s_barrier")
    a("s_mul_i32 s28, s21, %d" % (128 * 528))
    a("s_mul_i32 s29, s22, %d" % (64 * 528))
    a("s_add_u32 s28, s28, s29")
    a("s_lshl_b32 s29, s26, 8")
    a("s_add_u32 s28, s28, s29")
    a("s_movk_i32 s29, 528")
    a("v_mul_lo_u32 v6, v3, s29")
    a("v_lshl_add_u32 v6, v4, 4, v6")
    a("v_add_u32 v6, s28, v6")
    for mt in range(4):
        for nt in range(4):
            a("ds_write_b128 v6, %s offset:%d" % (vr(G2_ACC + (mt * 4 + nt) * 4, 4), mt * 16 * 528 + nt * 64))
    a("s_lshl_b32 s28, s20, 4")
    a("v_add_u32 v7, s28, v4")
    a("v_mul_lo_u32 v7, v7, s29")
    a("v_lshl_add_u32 v7, v3, 5, v7")
    a("v_add_u32 v6, %d, v7" % (128 * 528))
    a("s_waitcnt lgkmcnt(0)")
    a("s_barrier")
    for j in range(4):
        for hf in range(2):
            a("ds_read_b128 %s, v7 offset:%d" % (vr(128 + j * 8 + hf * 4, 4), j * 4 * 528 + hf * 16))
            a("ds_read_b128 %s, v6 offset:%d" % (vr(32 + j * 8 + hf * 4, 4), j * 4 * 528 + hf * 16))
    a("s_waitcnt lgkmcnt(0)")
    for i in range(32):
        a("v_add_f32 v%d, v%d, v%d" % (128 + i, 128 + i, 32 + i))
    a("s_cmp_lg_u32 s23, 0")
    a("s_cbranch_scc1 g2_second")
    for t in range(8):
        a("buffer_store_dwordx4 %s, v24, s[40:43], %s offen offset:%d sc1" % (vr(128 + t * 4, 4), "s39" if t >= 4 else "0", (t % 4) * 1024))
    a("s_waitcnt vmcnt(0)")
    stamp(a, 8)
    a("s_barrier")
    a("s_cmp_lg_u32 s20, 0")
    a("s_cbranch_scc1 g2_fin")
    a("v_mov_b32 v23, 1")
    a("s_mov_b64 exec, 1")
    a("buffer_atomic_add v23, v22, s[44:47], 0 offen sc1")
    a("s_mov_b64 exec, -1")
    a("s_branch g2_fin")
    a.label("g2_second")
    a("s_waitcnt vmcnt(0)")
    for p in range(4):
        a("v_lshlrev_b32 v%d, 16, v%d" % (32 + 2 * p, 240 + p))
        a("v_and_b32 v%d, 0xffff0000, v%d" % (33 + 2 * p, 240 + p))
    for j in range(4):
        for p in range(4):
            c = 128 + j * 8 + 2 * p
            a("v_lshlrev_b32 v12, 16, v%d" % (224 + j * 4 + p))
            a("v_and_b32 v13, 0xffff0000, v%d" % (224 + j * 4 + p))
            a("v_add_f32 v12, v12, v%d" % (32 + 2 * p))
            a("v_add_f32 v13, v13, v%d" % (33 + 2 * p))
            a("v_add_f32 v%d, v%d, v%d" % (c, c, 192 + j * 8 + 2 * p))
            a("v_add_f32 v%d, v%d, v%d" % (c + 1, c + 1, 193 + j * 8 + 2 * p))
            a("v_add_f32 v%d, v%d, v12" % (c, c))
            a("v_add_f32 v%d, v%d, v13" % (c + 1, c + 1))
            a("v_cvt_pk_bf16_f32 v%d, v%d, v%d" % (64 + j * 4 + p, c, c + 1))
        a("s_mov_b32 s38, 0x%x" % (j * 4 * 2048))
        a("buffer_store_dwordx4 %s, v25, s[56:59], s38 offen%s" % (vr(64 + j * 4, 4), ST2))
    a.label("g2_fin")
    if "STAMP" in FLAGS:
        a("s_waitcnt vmcnt(0)")
    stamp(a, 4)
    stamp_rt(a, 5)
    stamp_flush(a, 10, 1)
    a.label("g2_done")
    a("s_endpgm")
    a.label("g2_opoll")
    a("s_mov_b32 s29, 0")
    a("s_branch g2_ochk")
    a.label("g2_ospin")
    a("buffer_load_dword v23, v27, s[44:47], 0 offen sc1")
    a("s_waitcnt vmcnt(0)")
    a.label("g2_ochk")
    a("v_readfirstlane_b32 s28, v23")
    a("s_add_u32 s29, s29, 1")
    a("s_cmp_ge_u32 s28, 16")
    a("s_cbranch_scc1 g2_loop2")
    a("s_sleep 2")
    a("s_cmp_lt_u32 s29, 0x100000")
    a("s_cbranch_scc1 g2_ospin")
    a("s_branch g2_loop2")
    return L, 248


def gen_combine(a):
    L = "combine_kernel"
    kernel_head(a, L)
    a("s_cmp_ge_u32 s2, 1024")
    a("s_cbranch_scc1 cb_done")
    a("s_load_dwordx2 s[4:5], s[0:1], %d" % KA_WS)
    a("s_load_dwordx2 s[6:7], s[0:1], %d" % KA_X)
    a("s_load_dwordx2 s[20:21], s[0:1], %d" % KA_B2)
    a("s_load_dwordx2 s[22:23], s[0:1], %d" % KA_OUT)
    a("s_lshl_b32 s3, s2, 8")
    a("v_add_u32 v1, s3, v0")
    a("v_lshlrev_b32 v2, 5, v1")
    a("v_lshlrev_b32 v3, 4, v1")
    a("v_and_b32 v4, 127, v1")
    a("v_lshlrev_b32 v4, 4, v4")
    a("s_waitcnt lgkmcnt(0)")
    srd(a, 8, 4, WS_P, SZ_P)
    srd(a, 12, 6, 0, S * D * 2)
    srd(a, 16, 20, 0, D * 2)
    srd(a, 24, 22, 0, S * D * 2)
    a("s_mov_b32 s28, 0x800000")
    a("buffer_load_dwordx4 v[8:11], v2, s[8:11], 0 offen")
    a("buffer_load_dwordx4 v[12:15], v2, s[8:11], 0 offen offset:16")
    a("buffer_load_dwordx4 v[16:19], v2, s[8:11], s28 offen")
    a("buffer_load_dwordx4 v[20:23], v2, s[8:11], s28 offen offset:16")
    a("buffer_load_dwordx4 v[24:27], v3, s[12:15], 0 offen")
    a("buffer_load_dwordx4 v[28:31], v4, s[16:19], 0 offen")
    a("s_waitcnt vmcnt(0)")
    for i in range(8):
        a("v_add_f32 v%d, v%d, v%d" % (8 + i, 8 + i, 16 + i))
    for i in range(4):
        a("v_lshlrev_b32 v32, 16, v%d" % (24 + i))
        a("v_and_b32 v33, 0xffff0000, v%d" % (24 + i))
        a("v_lshlrev_b32 v34, 16, v%d" % (28 + i))
        a("v_and_b32 v35, 0xffff0000, v%d" % (28 + i))
        a("v_add_f32 v32, v32, v34")
        a("v_add_f32 v33, v33, v35")
        a("v_add_f32 v%d, v%d, v32" % (8 + 2 * i, 8 + 2 * i))
        a("v_add_f32 v%d, v%d, v33" % (9 + 2 * i, 9 + 2 * i))
        a("v_cvt_pk_bf16_f32 v%d, v%d, v%d" % (36 + i, 8 + 2 * i, 9 + 2 * i))
    a("buffer_store_dwordx4 v[36:39], v3, s[24:27], 0 offen")
    a.label("cb_done")
    a("s_endpgm")
    return L, 40


def main():
    a = Asm()
    hdr = open("cdna_kernels/%s.s.ref" % NAME).read().split("\n")
    head = [l for l in hdr if l.startswith(";") and "@launch" not in l and "Override launch" not in l and "grid=ceil" not in l]
    launches = [
        "; @launch kernel=gemm1_kernel grid=(256,1,1) block=(512,1,1) lds=131072",
        "; @launch kernel=gemm2_kernel grid=(256,1,1) block=(512,1,1) lds=135168",
    ]
    a.raw("\n".join(head + launches))
    a.raw('.amdgcn_target "amdgcn-amd-amdhsa--gfx950"')
    a.raw(".text")
    descs = []
    for g in (gen_gemm1, gen_gemm2):
        label, v = g(a)
        descs.append(kernel_desc(label, v))
    a.raw('.section .rodata,"a"')
    for d in descs:
        a.raw(".p2align 6")
        a.raw(d)
    open(OUT, "w").write(a.text())
    print("wrote", OUT, len(a.lines), "lines")


if __name__ == "__main__":
    main()
```

```python
import sys
import re
import os
FLAGS = set(os.environ.get("FLAGS", "").split(","))

NAME = "parallel_sum__linear_kernel_hedgehog__dense_activation_gelu__prompt"
OUT = os.environ.get("OUT", "cdna_kernels/%s.s" % NAME)

S, D, H, DH, F = 2048, 1024, 32, 32, 3584
KCAT = F + D
KA_X, KA_WQKV, KA_WPHI, KA_WO, KA_BX, KA_W1, KA_B1, KA_W2, KA_B2, KA_OUT, KA_DBG, KA_WS = [8 * i for i in range(12)]
WS_XN = 0x0000000
WS_HC = 0x0400000
WS_PQ = 0x1800000
WS_KV = 0x2000000
WS_P = 0x2400000
WS_FL = 0x3800000
SZ_FL = 65536
SZ_XN = S * D * 2
SZ_HC = S * KCAT * 2
SZ_PQ = H * S * 64 * 2
SZ_KV = 8 * 32 * 16384
SZ_P = S * D * 4

LOG2E = 0x3fb8aa3b
ST = os.environ.get("ST", "")
ST = (" " + ST) if ST else ""
ST2 = os.environ.get("ST2", "")
ST2 = (" " + ST2) if ST2 else ""
PF_ROWS = int(os.environ.get("PF_ROWS", "256"))
PF_LANES = int(os.environ.get("PF_LANES", "4"))


class Asm:
    def __init__(self):
        self.lines = []

    def __call__(self, s):
        m = re.search(r"offset:(\d+)", s)
        if m:
            lim = 4096 if s.startswith("buffer_") else 65536
            assert int(m.group(1)) < lim, s
        self.lines.append("    " + s)

    def label(self, s):
        self.lines.append(s + ":")

    def raw(self, s):
        self.lines.append(s)

    def text(self):
        return "\n".join(self.lines) + "\n"


def vr(b, n=1):
    return "v%d" % b if n == 1 else "v[%d:%d]" % (b, b + n - 1)


def sr(b, n=1):
    return "s%d" % b if n == 1 else "s[%d:%d]" % (b, b + n - 1)


def srd(a, d, base, off, size):
    if off:
        a("s_add_u32 s%d, s%d, 0x%x" % (d, base, off))
        a("s_addc_u32 s%d, s%d, 0" % (d + 1, base + 1))
    else:
        a("s_mov_b32 s%d, s%d" % (d, base))
        a("s_mov_b32 s%d, s%d" % (d + 1, base + 1))
    a("s_and_b32 s%d, s%d, 0xffff" % (d + 1, d + 1))
    a("s_mov_b32 s%d, 0x%x" % (d + 2, size))
    a("s_mov_b32 s%d, 0x00020000" % (d + 3))


def kernel_head(a, label):
    a.raw(".globl %s" % label)
    a.raw(".p2align 8")
    a.raw(".type %s,@function" % label)
    a.label(label)


def kernel_desc(label, vgpr, sgpr=102):
    acc = (vgpr + 3) // 4 * 4
    return """.amdhsa_kernel %s
  .amdhsa_next_free_vgpr %d
  .amdhsa_next_free_sgpr %d
  .amdhsa_accum_offset %d
  .amdhsa_group_segment_fixed_size 0
  .amdhsa_kernarg_size 96
  .amdhsa_user_sgpr_count 2
  .amdhsa_user_sgpr_kernarg_segment_ptr 1
  .amdhsa_system_sgpr_workgroup_id_x 1
.end_amdhsa_kernel
""" % (label, vgpr, sgpr, acc)


def stamp(a, i):
    if "STAMP" in FLAGS:
        a("s_memtime s[%d:%d]" % (60 + 2 * i, 61 + 2 * i))


def stamp_rt(a, i):
    if "STAMP" in FLAGS:
        a("s_memrealtime s[%d:%d]" % (60 + 2 * i, 61 + 2 * i))


def stamp_flush(a, n, kidx):
    if "STAMP" not in FLAGS:
        return
    a("s_waitcnt lgkmcnt(0)")
    srd(a, 88, 4, 0x8000000 + kidx * 0x100000, 0x100000)
    a("s_lshl_b32 s92, s2, 3")
    a("s_add_u32 s92, s92, s20")
    a("s_lshl_b32 s92, s92, 7")
    a("v_mov_b32 v2, s92")
    for i in range(n):
        a("v_mov_b32 v4, s%d" % (60 + 2 * i))
        a("v_mov_b32 v5, s%d" % (61 + 2 * i))
        a("buffer_store_dwordx2 v[4:5], v2, s[88:91], 0 offen offset:%d" % (8 * i))
        a("s_nop 1")


def allreduce64(a, op, v, t):
    for ctl in ("quad_perm:[1,0,3,2]", "quad_perm:[2,3,0,1]", "row_half_mirror", "row_mirror"):
        a("s_nop 1")
        a("%s_dpp %s, %s, %s %s row_mask:0xf bank_mask:0xf" % (op, vr(v), vr(v), vr(v), ctl))
    for sw in ("v_permlane16_swap_b32", "v_permlane32_swap_b32"):
        a("v_mov_b32 %s, %s" % (vr(t), vr(v)))
        a("s_nop 1")
        a("%s %s, %s" % (sw, vr(v), vr(t)))
        a("s_nop 1")
        a("%s %s, %s, %s" % (op, vr(v), vr(v), vr(t)))


def gen_ln(a):
    L = "ln_kernel"
    kernel_head(a, L)
    a("s_cmp_ge_u32 s2, 512")
    a("s_cbranch_scc1 ln_done")
    a("s_load_dwordx2 s[4:5], s[0:1], %d" % KA_X)
    a("s_load_dwordx2 s[6:7], s[0:1], %d" % KA_WS)
    a("s_load_dwordx2 s[20:21], s[0:1], %d" % KA_WQKV)
    a("s_load_dwordx2 s[22:23], s[0:1], %d" % KA_W1)
    a("v_lshrrev_b32 v1, 6, v0")
    a("v_and_b32 v2, 63, v0")
    a("s_lshl_b32 s3, s2, 2")
    a("v_add_u32 v1, s3, v1")
    a("v_lshlrev_b32 v3, 12, v1")
    a("v_lshl_add_u32 v3, v2, 6, v3")
    a("v_lshlrev_b32 v1, 11, v1")
    a("v_lshl_add_u32 v1, v2, 4, v1")
    a("s_waitcnt lgkmcnt(0)")
    srd(a, 8, 4, 0, SZ_XN)
    srd(a, 12, 6, WS_XN, SZ_XN)
    a("buffer_load_dwordx4 v[4:7], v1, s[8:11], 0 offen")
    a("buffer_load_dwordx4 v[8:11], v1, s[8:11], 0 offen offset:1024")
    if "NOPF" not in FLAGS:
        srd(a, 24, 20, 0, PF_ROWS * 3 * D * 2)
        srd(a, 28, 22, 0, PF_ROWS * F * 2)
        a("buffer_load_dword v39, v3, s[24:27], 0 offen")
        a("buffer_load_dword v39, v3, s[28:31], 0 offen")
    a("s_cmp_ge_u32 s2, 16")
    a("s_cbranch_scc1 ln_nz")
    srd(a, 16, 6, WS_FL, SZ_FL)
    a("s_lshl_b32 s3, s2, 12")
    a("v_lshl_add_u32 v12, v0, 4, s3")
    for i in range(4):
        a("v_mov_b32 v%d, 0" % (16 + i))
    a("buffer_store_dwordx4 v[16:19], v12, s[16:19], 0 offen")
    a("s_waitcnt vmcnt(3)")
    a.label("ln_nz")
    a("s_waitcnt vmcnt(%d)" % (0 if "NOPF" in FLAGS else 2))
    for i in range(8):
        a("v_lshlrev_b32 v%d, 16, v%d" % (16 + 2 * i, 4 + i))
        a("v_and_b32 v%d, 0xffff0000, v%d" % (17 + 2 * i, 4 + i))
    a("v_add_f32 v32, v16, v17")
    for i in range(2, 16):
        a("v_add_f32 v32, v32, v%d" % (16 + i))
    allreduce64(a, "v_add_f32", 32, 33)
    a("v_mul_f32 v32, 0x3a800000, v32")
    a("v_sub_f32 v34, v16, v32")
    a("v_mul_f32 v35, v34, v34")
    for i in range(1, 16):
        a("v_sub_f32 v34, v%d, v32" % (16 + i))
        a("v_fmac_f32 v35, v34, v34")
    allreduce64(a, "v_add_f32", 35, 33)
    a("v_mul_f32 v35, 0x3a800000, v35")
    a("v_cvt_pk_bf16_f32 v36, v32, v35")
    a("v_lshlrev_b32 v32, 16, v36")
    a("v_and_b32 v35, 0xffff0000, v36")
    a("v_add_f32 v35, 0x3727c5ac, v35")
    a("v_cvt_pk_bf16_f32 v36, v35, v35")
    a("v_lshlrev_b32 v35, 16, v36")
    a("v_sqrt_f32 v35, v35")
    a("s_nop 0")
    a("v_cvt_pk_bf16_f32 v36, v35, v35")
    a("v_lshlrev_b32 v35, 16, v36")
    a("v_rcp_f32 v35, v35")
    a("s_nop 0")
    for i in range(8):
        a("v_sub_f32 v%d, v%d, v32" % (16 + 2 * i, 16 + 2 * i))
        a("v_sub_f32 v%d, v%d, v32" % (17 + 2 * i, 17 + 2 * i))
        a("v_cvt_pk_bf16_f32 v36, v%d, v%d" % (16 + 2 * i, 17 + 2 * i))
        a("v_lshlrev_b32 v37, 16, v36")
        a("v_and_b32 v38, 0xffff0000, v36")
        a("v_mul_f32 v37, v37, v35")
        a("v_mul_f32 v38, v38, v35")
        a("v_cvt_pk_bf16_f32 v%d, v37, v38" % (4 + i))
    a("buffer_store_dwordx4 v[4:7], v1, s[12:15], 0 offen%s" % ST2)
    a("buffer_store_dwordx4 v[8:11], v1, s[12:15], 0 offen offset:1024%s" % ST2)
    a.label("ln_done")
    a("s_endpgm")
    return L, 40


def interleave(a, mfmas, fillers):
    n = len(mfmas)
    nf = len(fillers)
    fi = 0
    for i, m in enumerate(mfmas):
        a(m)
        want = ((i + 1) * nf + n - 1) // n if nf <= n else ((i + 1) * nf) // n
        want = min(nf, max(want, min(nf, i + 1)))
        while fi < want:
            for x in fillers[fi]:
                a(x)
            fi += 1
    while fi < nf:
        for x in fillers[fi]:
            a(x)
        fi += 1


def place(a, mfmas, slots):
    for i, m in enumerate(mfmas):
        a(m)
        for grp in slots.get(i, []):
            for x in grp:
                a(x)


class Gemm:
    def __init__(self, a, MT, NT, acc, fragA, fragB, vA, vB, voffA, voffB,
                 orient, sM0, sOffA, sOffB, srdA, srdB, stepA, stepB):
        self.__dict__.update(locals())

    def mfmas(self, st):
        out = []
        for mt in range(self.MT):
            for nt in range(self.NT):
                c = self.acc + (mt * self.NT + nt) * 4
                fa = self.fragA[st] + mt * 4
                fb = self.fragB[st] + nt * 4
                x, y = (fb, fa) if self.orient(nt) else (fa, fb)
                out.append("v_mfma_f32_16x16x32_bf16 %s, %s, %s, %s" % (vr(c, 4), vr(x, 4), vr(y, 4), vr(c, 4)))
        return out

    def reads(self, st, buf):
        out = []
        for mt in range(self.MT):
            out.append(["ds_read_b128 %s, %s offset:%d" % (vr(self.fragA[st] + mt * 4, 4), vr(self.vA), buf * 16384 + mt * 1024)])
        for nt in range(self.NT):
            for rd in range(2):
                out.append(["ds_read_b64_tr_b16 %s, %s offset:%d" % (vr(self.fragB[st] + nt * 4 + rd * 2, 2), vr(self.vB[nt]), buf * 16384 + rd * 2048)])
        return out

    def dmas(self, buf):
        out = []
        for j in range(2):
            out.append(["s_add_u32 m0, s%d, %d" % (self.sM0, buf * 16384 + j * 1024),
                        "s_nop 0",
                        "buffer_load_dwordx4 %s, %s, s%d offen sc1 lds" % (vr(self.voffA + j), sr(self.srdA, 4), self.sOffA)])
        for j in range(2):
            out.append(["s_add_u32 m0, s%d, %d" % (self.sM0, 65536 + buf * 16384 + j * 1024),
                        "s_nop 0",
                        "buffer_load_dwordx4 %s, %s, s%d offen lds" % (vr(self.voffB + j), sr(self.srdB, 4), self.sOffB)])
        out.append(["s_add_u32 s%d, s%d, %d" % (self.sOffA, self.sOffA, self.stepA),
                    "s_add_u32 s%d, s%d, %d" % (self.sOffB, self.sOffB, self.stepB)])
        return out

    def pf(self):
        return ["buffer_load_dword v30, v31, s[40:43], s19 offen",
                "s_add_u32 s19, s19, 0x%x" % (PF_LANES * 64 * 1024)]

    def iteration(self, i, dma, nxt, vm):
        a = self.a
        mf = self.mfmas(i & 1)
        n = len(mf)
        dpos = [1 + (j * (n - 2)) // 4 for j in range(4)]
        slots = {}
        if dma and "NODMA" not in FLAGS:
            d = self.dmas(i % 4)
            for j in range(4):
                slots.setdefault(dpos[j], []).append(d[j])
            slots.setdefault(dpos[3], []).append(d[4])
        if nxt:
            r = self.reads((i + 1) & 1, (i + 1) % 4)
            pos = [p for p in range(n) if p not in dpos][:len(r)]
            for p, x in zip(pos, r):
                slots.setdefault(p, []).append(x)
        place(a, mf, slots)
        if nxt:
            if vm is None:
                a("s_waitcnt lgkmcnt(0)")
            else:
                a("s_waitcnt vmcnt(%d) lgkmcnt(0)" % vm)
            a("s_barrier")

    def run(self, nstages, tag, sCnt, late=None, nlate=0):
        a = self.a
        for st in range(4):
            d = self.dmas(st)
            for f in d[2:4]:
                for x in f:
                    a(x)
            a("s_add_u32 s%d, s%d, %d" % (self.sOffB, self.sOffB, self.stepB))
        g1_fused_ln(a, tag)
        for st in range(4):
            d = self.dmas(st)
            for f in d[0:2]:
                for x in f:
                    a(x)
            a("s_add_u32 s%d, s%d, %d" % (self.sOffA, self.sOffA, self.stepA))
        for i in range(self.MT * self.NT * 4):
            a("v_mov_b32 v%d, 0" % (self.acc + i))
        stamp(a, 1)
        a("s_waitcnt vmcnt(0)")
        a("s_barrier")
        stamp(a, 2)
        for f in self.reads(0, 0):
            for x in f:
                a(x)
        a("s_waitcnt lgkmcnt(0)")
        a("s_barrier")
        a("s_mov_b32 s%d, %d" % (sCnt, (nstages - 4) // 4))
        a.label(tag + "_loop")
        for i in range(4):
            self.iteration(i, True, True, 8)
        a("s_sub_u32 s%d, s%d, 1" % (sCnt, sCnt))
        a("s_cmp_lg_u32 s%d, 0" % sCnt)
        a("s_cbranch_scc1 %s_loop" % tag)
        if late:
            late()
        self.iteration(0, False, True, 4 + nlate)
        self.iteration(1, False, True, nlate)
        self.iteration(2, False, True, None)
        self.iteration(3, False, False, None)
        stamp(a, 3)
        srd(a, 40, 48, 0, F * D * 2)
        a("buffer_load_dword v30, v31, s[40:43], 0 offen")
        srd(a, 40, 44, 0, D * D * 2)
        a("buffer_load_dword v30, v31, s[40:43], 0 offen")
        a("s_waitcnt vmcnt(2)")


def g1_prefetch(a):
    a("s_lshl_b32 s28, s2, 3")
    a("s_add_u32 s28, s28, s20")
    a("s_lshl_b32 s28, s28, 12")
    a("v_lshl_add_u32 v31, v1, 6, s28")
    srd(a, 40, 6, 0, D * 3 * D * 2)
    a("buffer_load_dword v30, v31, s[40:43], 0 offen")
    srd(a, 40, 30, 0, D * F * 2)
    a("buffer_load_dword v30, v31, s[40:43], 0 offen")


def g1_ln_loads(a):
    X = 128
    a("s_bfe_u32 s28, s2, 0x20001")
    a("s_lshl_b32 s28, s28, 3")
    a("s_add_u32 s28, s28, s24")
    a("s_lshl_b32 s28, s28, 3")
    a("s_lshl_b32 s29, s23, 8")
    a("s_add_u32 s28, s28, s29")
    a("s_add_u32 s28, s28, s20")
    a("s_lshl_b32 s28, s28, 11")
    a("v_lshl_add_u32 v10, v1, 4, s28")
    srd(a, 56, 56, 0, SZ_XN)
    for h in range(2):
        a("buffer_load_dwordx4 %s, v10, s[56:59], 0 offen offset:%d" % (vr(X + h * 4, 4), h * 1024))
    a("s_waitcnt vmcnt(0)")
    stamp(a, 7)


def g1_ln_compute(a, tag):
    X, T = 128, 176
    srd(a, 52, 50, 0, 256)
    a("s_lshl_b32 s28, s23, 5")
    a("v_mov_b32 v11, s28")
    a("s_movk_i32 s29, 4096")
    for i in range(1):
        R = X + i * 8
        U = T
        S1, S2, TM = T + 16, T + 17, T + 18
        for j in range(8):
            a("v_lshlrev_b32 v%d, 16, v%d" % (U + 2 * j, R + j))
            a("v_and_b32 v%d, 0xffff0000, v%d" % (U + 1 + 2 * j, R + j))
        a("v_add_f32 v%d, v%d, v%d" % (S1, U, U + 1))
        for j in range(2, 16):
            a("v_add_f32 v%d, v%d, v%d" % (S1, S1, U + j))
        allreduce64(a, "v_add_f32", S1, TM)
        a("v_mul_f32 v%d, 0x3a800000, v%d" % (S1, S1))
        a("v_sub_f32 v%d, v%d, v%d" % (TM + 1, U, S1))
        a("v_mul_f32 v%d, v%d, v%d" % (S2, TM + 1, TM + 1))
        for j in range(1, 16):
            a("v_sub_f32 v%d, v%d, v%d" % (TM + 1, U + j, S1))
            a("v_fmac_f32 v%d, v%d, v%d" % (S2, TM + 1, TM + 1))
        allreduce64(a, "v_add_f32", S2, TM)
        a("v_mul_f32 v%d, 0x3a800000, v%d" % (S2, S2))
        a("v_cvt_pk_bf16_f32 v%d, v%d, v%d" % (TM, S1, S2))
        a("v_lshlrev_b32 v%d, 16, v%d" % (S1, TM))
        a("v_and_b32 v%d, 0xffff0000, v%d" % (S2, TM))
        a("v_add_f32 v%d, 0x3727c5ac, v%d" % (S2, S2))
        a("v_cvt_pk_bf16_f32 v%d, v%d, v%d" % (TM, S2, S2))
        a("v_lshlrev_b32 v%d, 16, v%d" % (S2, TM))
        a("v_sqrt_f32 v%d, v%d" % (S2, S2))
        a("s_nop 0")
        a("v_cvt_pk_bf16_f32 v%d, v%d, v%d" % (TM, S2, S2))
        a("v_lshlrev_b32 v%d, 16, v%d" % (S2, TM))
        a("v_rcp_f32 v%d, v%d" % (S2, S2))
        a("s_nop 0")
        for j in range(8):
            a("v_sub_f32 v%d, v%d, v%d" % (U + 2 * j, U + 2 * j, S1))
            a("v_sub_f32 v%d, v%d, v%d" % (U + 1 + 2 * j, U + 1 + 2 * j, S1))
            a("v_cvt_pk_bf16_f32 v%d, v%d, v%d" % (TM, U + 2 * j, U + 1 + 2 * j))
            a("v_lshlrev_b32 v%d, 16, v%d" % (TM + 1, TM))
            a("v_and_b32 v%d, 0xffff0000, v%d" % (TM + 2, TM))
            a("v_mul_f32 v%d, v%d, v%d" % (TM + 1, TM + 1, S2))
            a("v_mul_f32 v%d, v%d, v%d" % (TM + 2, TM + 2, S2))
            a("v_cvt_pk_bf16_f32 v%d, v%d, v%d" % (R + j, TM + 1, TM + 2))
        for h in range(2):
            q = i * 2 + h
            a("buffer_store_dwordx4 %s, v10, s[8:11], %s offen offset:%d sc1" % (vr(X + q * 4, 4), "s29" if q >= 4 else "0", (q % 4) * 1024))
    stamp(a, 8)
    if "EARLYPF" in FLAGS:
        g1_prefetch(a)
        a("s_waitcnt vmcnt(2)")
    else:
        a("s_waitcnt vmcnt(0)")
    a("s_barrier")
    stamp(a, 9)
    a("s_cmp_lg_u32 s20, 0")
    a("s_cbranch_scc1 %s_lnwait" % tag)
    a("v_mov_b32 v28, 1")
    a("s_mov_b64 exec, 1")
    a("buffer_atomic_add v28, v11, s[52:55], 0 offen sc1")
    a("s_mov_b64 exec, -1")
    a.label(tag + "_lnwait")


def g1_fused_ln(a, tag):
    a("s_cmp_lg_u32 s20, 0")
    a("s_cbranch_scc1 %s_lnbar" % tag)
    a("s_mov_b32 s29, 0")
    a.label(tag + "_lnspin")
    a("buffer_load_dword v28, v11, s[52:55], 0 offen sc1")
    a("s_waitcnt vmcnt(0)")
    a("v_readfirstlane_b32 s28, v28")
    a("s_add_u32 s29, s29, 1")
    a("s_cmp_ge_u32 s28, 32")
    a("s_cbranch_scc1 %s_lnbar" % tag)
    a("s_sleep 4")
    a("s_cmp_lt_u32 s29, 0x100000")
    a("s_cbranch_scc1 %s_lnspin" % tag)
    a.label(tag + "_lnbar")
    a("s_barrier")
    stamp(a, 10)


G1_ACC = 128
G1_FA = (32, 76)
G1_FB = (48, 92)
G1_VOA, G1_VOB = 8, 12
G1_VA = 16
G1_VB = (18, 19, 20, 21, 22, 23, 24)
G1_X = 240


def g1_common_addr(a):
    a("v_and_b32 v1, 63, v0")
    a("v_lshrrev_b32 v2, 6, v0")
    a("s_nop 0")
    a("v_readfirstlane_b32 s20, v2")
    a("v_and_b32 v3, 15, v1")
    a("v_lshrrev_b32 v4, 4, v1")
    if "PRIO" in FLAGS:
        lab = "prio_%d" % len(a.lines)
        a("s_nop 3")
        a("s_cmp_ge_u32 s20, 4")
        a("s_cbranch_scc0 %s" % lab)
        a("s_setprio 1")
        a.label(lab)


def gen_gemm1(a):
    L = "gemm1_kernel"
    kernel_head(a, L)
    a("s_cmp_ge_u32 s2, 256")
    a("s_cbranch_scc1 g1_done")
    stamp(a, 0)
    stamp_rt(a, 6)
    a("s_load_dwordx2 s[4:5], s[0:1], %d" % KA_WS)
    a("s_load_dwordx2 s[6:7], s[0:1], %d" % KA_WQKV)
    a("s_load_dwordx2 s[30:31], s[0:1], %d" % KA_W1)
    a("s_load_dwordx2 s[32:33], s[0:1], %d" % KA_WPHI)
    a("s_load_dwordx2 s[34:35], s[0:1], %d" % KA_B1)
    a("s_load_dwordx2 s[44:45], s[0:1], %d" % KA_WO)
    a("s_load_dwordx2 s[48:49], s[0:1], %d" % KA_W2)
    a("s_load_dwordx2 s[50:51], s[0:1], %d" % KA_DBG)
    a("s_load_dwordx2 s[56:57], s[0:1], %d" % KA_X)
    g1_common_addr(a)
    a("s_and_b32 s21, s2, 7")
    a("s_lshr_b32 s22, s2, 3")
    a("s_and_b32 s23, s21, 1")
    a("s_lshl_b32 s23, s23, 2")
    a("s_and_b32 s24, s22, 3")
    a("s_add_u32 s23, s23, s24")
    a("s_lshr_b32 s24, s22, 2")
    a("s_lshr_b32 s25, s21, 1")
    a("s_lshl_b32 s25, s25, 2")
    a("s_and_b32 s26, s24, 3")
    a("s_add_u32 s25, s25, s26")
    a("s_lshr_b32 s21, s20, 1")
    a("s_and_b32 s22, s20, 1")
    a("s_lshl_b32 s27, s20, 11")
    a("v_lshrrev_b32 v5, 2, v1")
    a("s_lshl_b32 s28, s23, 8")
    a("s_lshl_b32 s29, s20, 5")
    a("s_add_u32 s28, s28, s29")
    a("v_add_u32 v5, s28, v5")
    a("v_lshlrev_b32 v5, 11, v5")
    a("v_lshrrev_b32 v6, 1, v4")
    a("v_xor_b32 v7, v6, v4")
    a("v_and_b32 v7, 1, v7")
    a("v_lshl_or_b32 v6, v7, 1, v6")
    a("v_and_b32 v7, 3, v1")
    a("v_xor_b32 v7, v7, v6")
    a("v_lshl_add_u32 v%d, v7, 4, v5" % G1_VOA)
    a("v_add_u32 v%d, %d, v%d" % (G1_VOA + 1, 16 * 2048, G1_VOA))
    a("v_bfe_u32 v5, v1, 2, 2")
    a("v_lshrrev_b32 v6, 1, v5")
    a("v_xor_b32 v7, v6, v5")
    a("v_and_b32 v7, 1, v7")
    a("v_lshl_or_b32 v6, v7, 1, v6")
    a("v_xor_b32 v5, v6, v4")
    a("s_lshl_b32 s28, s21, 6")
    a("v_add_u32 v6, s28, v3")
    a("v_lshlrev_b32 v6, 6, v6")
    a("v_lshl_add_u32 v%d, v5, 4, v6" % G1_VA)
    a("v_bfe_u32 v5, v1, 2, 2")
    a("v_and_b32 v6, 1, v4")
    a("v_lshl_or_b32 v6, v6, 2, v5")
    a("v_lshl_add_u32 v5, v4, 3, v5")
    a("v_lshlrev_b32 v5, 9, v5")
    a("v_and_b32 v7, 3, v1")
    a("v_lshl_add_u32 v5, v7, 3, v5")
    a("v_add_u32 v5, 0x10000, v5")
    a("s_waitcnt lgkmcnt(0)")
    srd(a, 8, 4, WS_XN, SZ_XN)
    a("v_mov_b32 v10, 0")
    g1_ln_loads(a)
    g1_ln_compute(a, "g1")
    if "EARLYPF" not in FLAGS:
        g1_prefetch(a)
    a("s_cmp_ge_u32 s2, 8")
    a("s_cbranch_scc1 g1_nz")
    srd(a, 40, 4, WS_FL, SZ_FL)
    a("s_lshl_b32 s28, s2, 13")
    a("v_lshl_add_u32 v28, v0, 4, s28")
    for i in range(4):
        a("v_mov_b32 v%d, 0" % (24 + i))
    a("buffer_store_dwordx4 v[24:27], v28, s[40:43], 0 offen")
    a("s_nop 1")
    a.label("g1_nz")
    a("s_mov_b32 s16, 0")
    a("s_mov_b32 s17, 0")
    a("s_cmp_ge_u32 s24, 4")
    a("s_cbranch_scc1 g1_w1")

    def b_dma_rows(a, j):
        a("v_lshrrev_b32 v25, 5, v1")
        a("v_add_u32 v25, %d, v25" % (2 * j))
        a("s_bfe_u32 s28, s20, 0x10001")
        a("s_lshl_b32 s28, s28, 2")
        a("v_or_b32 v26, s28, v25")
        a("v_lshlrev_b32 v26, 1, v26")
        a("v_and_b32 v27, 31, v1")
        a("v_xor_b32 v26, v26, v27")
        a("s_lshl_b32 s28, s20, 2")
        a("v_add_u32 v25, s28, v25")

    NT = 6
    for tt in range(NT):
        a("s_mul_i32 s28, s22, %d" % NT)
        a("s_add_u32 s28, s28, %d" % tt)
        a("v_xor_b32 v7, s28, v6")
        a("v_lshl_add_u32 v%d, v7, 5, v5" % G1_VB[tt])
    srd(a, 12, 6, 0, D * 3 * D * 2)
    for j in range(2):
        b_dma_rows(a, j)
        a("v_lshrrev_b32 v27, 2, v26")
        a("v_cmp_le_u32 vcc, 3, v27")
        a("s_nop 1")
        a("v_cndmask_b32 v28, 0, 1, vcc")
        a("v_mul_u32_u24 v29, 3, v28")
        a("v_sub_u32 v29, v27, v29")
        a("s_lshl_b32 s28, s25, 1")
        a("v_add_u32 v28, s28, v28")
        a("v_lshlrev_b32 v28, 6, v28")
        a("v_lshl_add_u32 v28, v29, 11, v28")
        a("v_and_b32 v29, 3, v26")
        a("v_lshl_add_u32 v28, v29, 4, v28")
        a("s_movk_i32 s28, 6144")
        a("v_mul_lo_u32 v29, v25, s28")
        a("v_add_u32 v28, v28, v29")
        a("v_cmp_gt_u32 vcc, 6, v27")
        a("v_mov_b32 v29, 0x7f000000")
        a("s_nop 0")
        a("v_cndmask_b32 v%d, v29, v28, vcc" % (G1_VOB + j))
    def late_q():
        srd(a, 36, 32, 0, H * DH * DH * 2)
        a("s_lshl_b32 s28, s25, 1")
        a("s_add_u32 s28, s28, s22")
        a("s_lshl_b32 s28, s28, 11")
        a("v_lshlrev_b32 v25, 8, v4")
        a("v_lshl_add_u32 v25, v3, 1, v25")
        a("v_add_u32 v25, s28, v25")
        for ft in range(2):
            for j in range(8):
                d = (j & 3) + (16 if j >= 4 else 0)
                a("buffer_load_ushort v%d, v25, s[36:39], 0 offen offset:%d" % (224 + ft * 8 + j, d * 64 + ft * 32))
    g = Gemm(a, 4, NT, G1_ACC, G1_FA, G1_FB, G1_VA, G1_VB, G1_VOA, G1_VOB,
             lambda nt: nt < 4, 27, 16, 17, 8, 12, 64, 32 * 6144)
    g.run(32, "g1q", 18, late_q, 16)
    if "NOEPI" not in FLAGS:
        g1_qkv_epilogue(a)
    a("s_branch g1_fin")

    a.label("g1_w1")
    NT = 7
    for tt in range(NT):
        a("s_mul_i32 s28, s22, %d" % NT)
        a("s_add_u32 s28, s28, %d" % tt)
        a("v_xor_b32 v7, s28, v6")
        a("v_lshl_add_u32 v%d, v7, 5, v5" % G1_VB[tt])
    srd(a, 12, 30, 0, D * F * 2)
    for j in range(2):
        b_dma_rows(a, j)
        a("s_mul_i32 s28, s25, 448")
        a("v_lshlrev_b32 v28, 4, v26")
        a("v_add_u32 v28, s28, v28")
        a("s_movk_i32 s28, 7168")
        a("v_mul_lo_u32 v29, v25, s28")
        a("v_add_u32 v28, v28, v29")
        a("v_cmp_gt_u32 vcc, 28, v26")
        a("v_mov_b32 v29, 0x7f000000")
        a("s_nop 0")
        a("v_cndmask_b32 v%d, v29, v28, vcc" % (G1_VOB + j))
    def late_w():
        srd(a, 36, 34, 0, F * 2)
        a("s_mul_i32 s28, s25, 448")
        a("s_mul_i32 s29, s22, 224")
        a("s_add_u32 s28, s28, s29")
        a("v_lshlrev_b32 v25, 3, v4")
        a("v_add_u32 v25, s28, v25")
        for tt in range(NT):
            a("buffer_load_dwordx2 %s, v25, s[36:39], 0 offen offset:%d" % (vr(G1_X + 2 * tt, 2), tt * 32))
    g = Gemm(a, 4, NT, G1_ACC, G1_FA, G1_FB, G1_VA, G1_VB, G1_VOA, G1_VOB,
             lambda nt: True, 27, 16, 17, 8, 12, 64, 32 * 7168)
    g.run(32, "g1w", 18, late_w, 7)
    if "NOEPI" not in FLAGS:
        g1_w1_epilogue(a)
    a.label("g1_fin")
    if "STAMP" in FLAGS:
        a("s_waitcnt vmcnt(0)")
    stamp(a, 4)
    stamp_rt(a, 5)
    stamp_flush(a, 12, 0)
    a.label("g1_done")
    a("s_endpgm")
    return L, 256


def f32bits(x):
    import struct
    return struct.unpack("<I", struct.pack("<f", x))[0]


def g1_w1_epilogue(a):
    NT = 7
    RS = 240
    srd(a, 40, 4, WS_HC, SZ_HC)
    for tt in range(NT):
        for p in range(2):
            a("v_lshlrev_b32 v%d, 16, v%d" % (32 + tt * 4 + 2 * p, G1_X + 2 * tt + p))
            a("v_and_b32 v%d, 0xffff0000, v%d" % (33 + tt * 4 + 2 * p, G1_X + 2 * tt + p))
    a("s_mul_i32 s28, s20, %d" % (64 * RS))
    a("s_movk_i32 s29, %d" % RS)
    a("v_mul_lo_u32 v6, v3, s29")
    a("v_lshl_add_u32 v6, v4, 3, v6")
    a("v_add_u32 v6, s28, v6")
    a("v_subrev_u32 v7, 56, v1")
    a("v_cmp_gt_u32 vcc, 56, v1")
    a("s_nop 1")
    a("v_cndmask_b32 v7, v7, v1, vcc")
    a("v_mul_u32_u24 v8, 0x4a, v7")
    a("v_lshrrev_b32 v8, 10, v8")
    a("v_mul_u32_u24 v9, 14, v8")
    a("v_sub_u32 v9, v7, v9")
    a("v_mul_lo_u32 v7, v8, s29")
    a("v_lshl_add_u32 v7, v9, 4, v7")
    a("v_add_u32 v7, s28, v7")
    a("s_lshl_b32 s28, s23, 8")
    a("s_lshl_b32 s29, s21, 6")
    a("s_add_u32 s28, s28, s29")
    a("v_add_u32 v5, s28, v8")
    a("s_movk_i32 s28, 9216")
    a("v_mul_lo_u32 v5, v5, s28")
    a("s_mul_i32 s28, s25, 448")
    a("s_mul_i32 s29, s22, 224")
    a("s_add_u32 s28, s28, s29")
    a("v_lshl_add_u32 v9, v9, 4, s28")
    a("v_add_u32 v5, v5, v9")
    k0 = -2.0 * 0.7978845608028654 * 1.4426950408889634
    k1 = k0 * 0.044715
    a("s_mov_b32 s44, 0x%08x" % f32bits(k1))
    a("s_mov_b32 s45, 0x%08x" % f32bits(k1))
    a("s_mov_b32 s46, 1.0")
    a("s_mov_b32 s47, 1.0")
    a("v_mov_b32 v8, 0x%08x" % f32bits(k0))
    a("v_mov_b32 v9, 0x%08x" % f32bits(k0))
    a("s_barrier")

    def flush(mt):
        for j in range(4):
            a("ds_read_b128 %s, v7 offset:%d" % (vr(96 + j * 4, 4), (mt * 16 + j * 4) * RS))
        for j in range(4):
            a("s_waitcnt lgkmcnt(%d)" % (3 - j))
            a("s_mov_b32 s28, 0x%x" % ((mt * 16 + j * 4) * 9216))
            a("buffer_store_dwordx4 %s, v5, s[40:43], s28 offen%s" % (vr(96 + j * 4, 4), ST))

    for mt in range(4):
        for tt in range(NT):
            c = G1_ACC + (mt * NT + tt) * 4
            T = 64 + ((mt * NT + tt) & 1) * 16
            for p in range(2):
                a("v_pk_add_f32 %s, %s, %s" % (vr(T + 2 * p, 2), vr(c + 2 * p, 2), vr(32 + tt * 4 + 2 * p, 2)))
            for p in range(2):
                a("v_pk_mul_f32 %s, %s, %s" % (vr(T + 4 + 2 * p, 2), vr(T + 2 * p, 2), vr(T + 2 * p, 2)))
            for p in range(2):
                a("v_pk_fma_f32 %s, %s, s[44:45], v[8:9]" % (vr(T + 4 + 2 * p, 2), vr(T + 4 + 2 * p, 2)))
            for p in range(2):
                a("v_pk_mul_f32 %s, %s, %s" % (vr(T + 4 + 2 * p, 2), vr(T + 4 + 2 * p, 2), vr(T + 2 * p, 2)))
            for r in range(4):
                a("v_exp_f32 v%d, v%d" % (T + 4 + r, T + 4 + r))
            a("s_nop 0")
            for p in range(2):
                a("v_pk_add_f32 %s, %s, s[46:47]" % (vr(T + 4 + 2 * p, 2), vr(T + 4 + 2 * p, 2)))
            for r in range(4):
                a("v_rcp_f32 v%d, v%d" % (T + 4 + r, T + 4 + r))
            a("s_nop 0")
            for p in range(2):
                a("v_pk_mul_f32 %s, %s, %s" % (vr(T + 4 + 2 * p, 2), vr(T + 4 + 2 * p, 2), vr(T + 2 * p, 2)))
            a("v_cvt_pk_bf16_f32 v%d, v%d, v%d" % (T + 8, T + 4, T + 5))
            a("v_cvt_pk_bf16_f32 v%d, v%d, v%d" % (T + 9, T + 6, T + 7))
            a("ds_write_b64 v6, %s offset:%d" % (vr(T + 8, 2), mt * 16 * RS + tt * 32))
            if tt == 2 and mt > 0:
                flush(mt - 1)
        a("s_waitcnt lgkmcnt(0)")
    flush(3)


def bf16_round_pair(a, x0, x1, t):
    a("v_cvt_pk_bf16_f32 v%d, v%d, v%d" % (t, x0, x1))
    a("v_lshlrev_b32 v%d, 16, v%d" % (x0, t))
    a("v_and_b32 v%d, 0xffff0000, v%d" % (x1, t))


def xlane_g(a, op, regs, temps):
    for sw in ("v_permlane16_swap_b32", "v_permlane32_swap_b32"):
        for v, t in zip(regs, temps):
            a("v_mov_b32 v%d, v%d" % (t, v))
        a("s_nop 1")
        for v, t in zip(regs, temps):
            a("%s v%d, v%d" % (sw, v, t))
        a("s_nop 1")
        for (v, t), o in zip(zip(regs, temps), op):
            a("%s v%d, v%d, v%d" % (o, v, v, t))


def dpp16(a, ops, regs):
    for ctl in ("quad_perm:[1,0,3,2]", "quad_perm:[2,3,0,1]", "row_half_mirror", "row_mirror"):
        if len(regs) < 3:
            a("s_nop 1")
        for v, o in zip(regs, ops):
            a("%s_dpp v%d, v%d, v%d %s row_mask:0xf bank_mask:0xf" % (o, v, v, v, ctl))


def g1_softmax_batch(a, acc, WP, tt0):
    E = lambda mt: 32 + mt * 16
    FR = lambda mt: 96 + mt * 4
    MX = lambda mt: 112 + 2 * mt
    MN = lambda mt: 120 + 2 * mt
    P = lambda mt: acc(mt, tt0)
    R = range(4)
    for mt in R:
        for i in range(4):
            a("v_cvt_pk_bf16_f32 v%d, v%d, v%d" % (FR(mt) + i, P(mt) + 2 * i, P(mt) + 2 * i + 1))
    a("s_nop 1")
    for mt in R:
        for ft in range(2):
            a("v_mfma_f32_16x16x32_bf16 %s, %s, %s, 0" % (vr(P(mt) + ft * 4, 4), vr(WP[ft], 4), vr(FR(mt), 4)))
    a("s_nop 7")
    for mt in R:
        for i in range(4):
            a("v_cvt_pk_bf16_f32 v%d, v%d, v%d" % (E(mt) + i, P(mt) + 2 * i, P(mt) + 2 * i + 1))
    for mt in R:
        for i in range(4):
            a("v_lshlrev_b32 v%d, 16, v%d" % (P(mt) + 2 * i, E(mt) + i))
            a("v_and_b32 v%d, 0xffff0000, v%d" % (P(mt) + 2 * i + 1, E(mt) + i))
    for op3, op2, M in (("v_max3_f32", "v_max_f32", MX), ("v_min3_f32", "v_min_f32", MN)):
        for mt in R:
            a("%s v%d, v%d, v%d, v%d" % (op3, M(mt), P(mt), P(mt) + 1, P(mt) + 2))
        for mt in R:
            a("%s v%d, v%d, v%d, v%d" % (op3, M(mt), M(mt), P(mt) + 3, P(mt) + 4))
        for mt in R:
            a("%s v%d, v%d, v%d, v%d" % (op3, M(mt), M(mt), P(mt) + 5, P(mt) + 6))
        for mt in R:
            a("%s v%d, v%d, v%d" % (op2, M(mt), M(mt), P(mt) + 7))

    def xl(opx, opn):
        regs = [(MX(mt), opx) for mt in R] + [(MN(mt), opn) for mt in R]
        for sw in ("v_permlane16_swap_b32", "v_permlane32_swap_b32"):
            for v, o in regs:
                a("v_mov_b32 v%d, v%d" % (v + 1, v))
            a("s_nop 0")
            for v, o in regs:
                a("%s v%d, v%d" % (sw, v, v + 1))
            a("s_nop 0")
            for v, o in regs:
                a("%s v%d, v%d, v%d" % (o, v, v, v + 1))
    xl("v_max_f32", "v_min_f32")
    for mt in R:
        a("v_mul_f32 v%d, s48, v%d" % (MX(mt), MX(mt)))
        a("v_mul_f32 v%d, s48, v%d" % (MN(mt), MN(mt)))
    for mt in R:
        for i in range(4):
            a("v_pk_fma_f32 %s, %s, s[48:49], %s op_sel_hi:[1,1,0] neg_lo:[0,0,1] neg_hi:[0,0,1]" % (
                vr(E(mt) + 2 * i, 2), vr(P(mt) + 2 * i, 2), vr(MX(mt), 2)))
            a("v_pk_fma_f32 %s, %s, s[48:49], %s op_sel_hi:[1,1,0] neg_lo:[1,0,0] neg_hi:[1,0,0]" % (
                vr(E(mt) + 8 + 2 * i, 2), vr(P(mt) + 2 * i, 2), vr(MN(mt), 2)))
    for mt in R:
        for i in range(16):
            a("v_exp_f32 v%d, v%d" % (E(mt) + i, E(mt) + i))
    a("s_nop 0")
    for M, o in ((MX, 0), (MN, 8)):
        for mt in R:
            a("v_pk_add_f32 %s, %s, %s" % (vr(M(mt), 2), vr(E(mt) + o, 2), vr(E(mt) + o + 2, 2)))
        for mt in R:
            a("v_pk_add_f32 %s, %s, %s" % (vr(M(mt), 2), vr(M(mt), 2), vr(E(mt) + o + 4, 2)))
        for mt in R:
            a("v_pk_add_f32 %s, %s, %s" % (vr(M(mt), 2), vr(M(mt), 2), vr(E(mt) + o + 6, 2)))
        for mt in R:
            a("v_add_f32 v%d, v%d, v%d" % (M(mt), M(mt), M(mt) + 1))
    xl("v_add_f32", "v_add_f32")
    for mt in R:
        a("v_rcp_f32 v%d, v%d" % (MX(mt), MX(mt)))
        a("v_rcp_f32 v%d, v%d" % (MN(mt), MN(mt)))
    a("s_nop 0")
    for mt in R:
        for i in range(4):
            a("v_pk_mul_f32 %s, %s, %s op_sel_hi:[1,0]" % (vr(E(mt) + 2 * i, 2), vr(E(mt) + 2 * i, 2), vr(MX(mt), 2)))
            a("v_pk_mul_f32 %s, %s, %s op_sel_hi:[1,0]" % (vr(E(mt) + 8 + 2 * i, 2), vr(E(mt) + 8 + 2 * i, 2), vr(MN(mt), 2)))
    for mt in R:
        for i in range(8):
            a("v_cvt_pk_bf16_f32 v%d, v%d, v%d" % (P(mt) + i, E(mt) + 2 * i, E(mt) + 2 * i + 1))


def g1_qkv_epilogue(a):
    NT = 6
    WP = (G1_X, G1_X + 4)
    KS = 160
    SH = 98304

    def acc(mt, tt):
        return G1_ACC + (mt * NT + tt) * 4

    srd(a, 40, 4, WS_PQ, SZ_PQ)
    srd(a, 44, 4, WS_KV, SZ_KV)
    a("s_mov_b32 s48, 0x%08x" % LOG2E)
    a("s_mov_b32 s49, 0x%08x" % LOG2E)
    a("s_mul_i32 s50, s20, 12288")
    for i in range(8):
        a("v_lshl_or_b32 v%d, v%d, 16, v%d" % (G1_X + i, 224 + 2 * i + 1, 224 + 2 * i))
    a("s_movk_i32 s28, %d" % KS)
    a("v_mul_lo_u32 v5, v3, s28")
    a("v_lshl_add_u32 v5, v4, 3, v5")
    a("v_add_u32 v5, s50, v5")
    a("v_bfe_u32 v6, v1, 2, 2")
    a("v_lshl_add_u32 v6, v4, 2, v6")
    a("v_mul_lo_u32 v6, v6, s28")
    a("v_and_b32 v7, 3, v1")
    a("v_lshl_add_u32 v6, v7, 3, v6")
    a("v_add_u32 v6, s50, v6")
    a("v_lshlrev_b32 v7, 4, v1")
    a("s_barrier")
    g1_softmax_batch(a, acc, WP, 2)
    for mt in range(4):
        for q in range(4):
            a("ds_write_b64 v5, %s offset:%d" % (vr(acc(mt, 2) + 2 * q, 2), mt * 16 * KS + q * 32))
    KV, AF, BF, ONE = 64, 32, 112, 16
    for u in range(2):
        for dt in range(2):
            for hf in range(2):
                for p in range(2):
                    c = acc(2 * u + hf, 4 + dt) + 2 * p
                    a("v_cvt_pk_bf16_f32 v%d, v%d, v%d" % (BF + (u * 2 + dt) * 4 + hf * 2 + p, c, c + 1))
    for i in range(4):
        a("v_mov_b32 v%d, 0x3f803f80" % (ONE + i))
    a("s_waitcnt lgkmcnt(0)")
    for u in range(2):
        for fq in range(4):
            for hf in range(2):
                a("ds_read_b64_tr_b16 %s, v6 offset:%d" % (vr(AF + (u * 4 + fq) * 4 + hf * 2, 2), (2 * u + hf) * 16 * KS + fq * 32))
    a("s_waitcnt lgkmcnt(8)")
    for u in range(2):
        if u == 1:
            a("s_waitcnt lgkmcnt(0)")
        for fq in range(4):
            for t in range(3):
                c = KV + (fq * 2 + t) * 4 if t < 2 else KV + (8 + fq) * 4
                b = BF + (u * 2 + t) * 4 if t < 2 else ONE
                a("v_mfma_f32_16x16x32_bf16 %s, %s, %s, %s" % (vr(c, 4), vr(AF + (u * 4 + fq) * 4, 4), vr(b, 4), vr(c, 4) if u else "0"))
    a("v_add_u32 v8, s50, v7")
    a("s_nop 7")
    for t in range(12):
        a("ds_write_b128 v8, %s offset:%d" % (vr(KV + t * 4, 4), t * 1024))
    a("s_lshr_b32 s28, s20, 2")
    a("s_mul_i32 s28, s28, 12288")
    a("s_and_b32 s29, s20, 3")
    a("s_mul_i32 s29, s29, 3072")
    a("s_add_u32 s28, s28, s29")
    a("v_add_u32 v8, s28, v7")
    a("v_add_u32 v9, 0xc000, v8")
    a("s_lshl_b32 s28, s25, 3")
    a("s_add_u32 s28, s28, s23")
    a("s_mul_i32 s28, s28, 24")
    a("s_mul_i32 s29, s20, 3")
    a("s_add_u32 s28, s28, s29")
    a("s_lshl_b32 s28, s28, 10")
    a("v_add_u32 v10, s28, v7")
    a("s_waitcnt lgkmcnt(0)")
    a("s_barrier")
    for wm in range(4):
        for i in range(3):
            a("ds_read_b128 %s, %s offset:%d" % (vr(32 + (wm * 3 + i) * 4, 4), "v9" if wm >= 2 else "v8", (wm & 1) * 24576 + i * 1024))
    a("s_waitcnt lgkmcnt(0)")
    for wm in range(1, 4):
        for i in range(6):
            a("v_pk_add_f32 %s, %s, %s" % (vr(32 + 2 * i, 2), vr(32 + 2 * i, 2), vr(32 + wm * 12 + 2 * i, 2)))
    for i in range(3):
        a("buffer_store_dwordx4 %s, v10, s[44:47], 0 offen offset:%d%s" % (vr(32 + i * 4, 4), i * 1024, ST))
    a("s_nop 1")
    g1_softmax_batch(a, acc, WP, 0)
    a("s_lshl_b32 s28, s25, 3")
    a("s_add_u32 s28, s28, s23")
    a("s_lshl_b32 s28, s28, 3")
    a("s_add_u32 s28, s28, s20")
    a("s_lshl_b32 s28, s28, 13")
    a("v_add_u32 v10, s28, v7")
    a("s_movk_i32 s29, 4096")
    for mt in range(4):
        for kk in range(2):
            q = mt * 2 + kk
            a("buffer_store_dwordx4 %s, v10, s[40:43], %s offen offset:%d%s" % (vr(acc(mt, 0) + kk * 4, 4), "s29" if q >= 4 else "0", (q % 4) * 1024, ST))


def g2_apply(a):
    SH = 98304

    def acc(mt, tt):
        return 128 + mt * 8

    a("s_and_b32 s57, s2, 15")
    a("s_lshr_b32 s58, s2, 4")
    a("s_lshr_b32 s59, s20, 1")
    a("s_and_b32 s38, s20, 1")
    srd(a, 48, 4, WS_PQ, SZ_PQ)
    srd(a, 52, 4, WS_KV, SZ_KV)
    a("s_mul_i32 s56, s20, 12288")
    a("v_lshlrev_b32 v7, 4, v1")
    a("s_lshl_b32 s28, s57, 3")
    a("s_add_u32 s28, s28, s58")
    a("s_lshl_b32 s28, s28, 3")
    a("s_add_u32 s28, s28, s20")
    a("s_lshl_b32 s28, s28, 13")
    a("v_add_u32 v10, s28, v7")
    a("s_movk_i32 s29, 4096")
    for q in range(8):
        a("buffer_load_dwordx4 %s, v10, s[48:51], %s offen offset:%d" % (vr(128 + q * 4, 4), "s29" if q >= 4 else "0", (q % 4) * 1024))
    a("s_mul_i32 s28, s57, %d" % (8 * 24))
    a("s_mul_i32 s29, s20, 3")
    a("s_add_u32 s28, s28, s29")
    a("s_lshl_b32 s28, s28, 10")
    a("v_add_u32 v10, s28, v7")
    for rb in range(8):
        a("s_mov_b32 s28, 0x%x" % (rb * 24576))
        for i in range(3):
            a("buffer_load_dwordx4 %s, v10, s[52:55], s28 offen offset:%d" % (vr(32 + (rb * 3 + i) * 4, 4), i * 1024))
    a("s_mul_i32 s28, s20, 1536")
    a("s_add_u32 s28, s28, %d" % SH)
    a("v_lshl_add_u32 v8, v1, 3, s28")
    a("s_mul_i32 s28, s38, 6144")
    a("s_add_u32 s28, s28, %d" % SH)
    a("v_lshl_add_u32 v9, v1, 3, s28")
    for rb in range(1, 8):
        a("s_waitcnt vmcnt(%d)" % ((7 - rb) * 3))
        for i in range(6):
            a("v_pk_add_f32 %s, %s, %s" % (vr(32 + 2 * i, 2), vr(32 + 2 * i, 2), vr(32 + rb * 12 + 2 * i, 2)))
    for i in range(6):
        a("v_cvt_pk_bf16_f32 v%d, v%d, v%d" % (16 + i, 32 + 2 * i, 33 + 2 * i))
    for i in range(3):
        a("ds_write_b64 v8, %s offset:%d" % (vr(16 + 2 * i, 2), i * 512))
    a("s_waitcnt lgkmcnt(0)")
    a("s_barrier")
    for t in range(3):
        for kk in range(2):
            for hf in range(2):
                fq = 2 * kk + hf
                tile = fq * 2 + t if t < 2 else 8 + fq
                a("ds_read_b64 %s, v9 offset:%d" % (vr(32 + (t * 2 + kk) * 4 + hf * 2, 2), tile * 512))
    a("s_movk_i32 s28, 80")
    a("v_mul_lo_u32 v5, v3, s28")
    a("v_lshl_add_u32 v5, v4, 3, v5")
    a("v_add_u32 v5, s56, v5")
    a("v_lshrrev_b32 v12, 2, v1")
    a("v_mul_lo_u32 v6, v12, s28")
    a("v_and_b32 v13, 3, v1")
    a("v_lshl_add_u32 v6, v13, 4, v6")
    a("v_add_u32 v6, s56, v6")
    a("s_lshl_b32 s28, s58, 8")
    a("s_lshl_b32 s29, s59, 6")
    a("s_add_u32 s28, s28, s29")
    a("v_add_u32 v12, s28, v12")
    a("s_movk_i32 s28, 9216")
    a("v_mul_lo_u32 v12, v12, s28")
    a("s_lshl_b32 s28, s57, 1")
    a("s_add_u32 s28, s28, s38")
    a("s_lshl_b32 s28, s28, 6")
    a("s_add_u32 s28, s28, 7168")
    a("v_lshl_add_u32 v13, v13, 4, s28")
    a("v_add_u32 v12, v12, v13")
    a("s_waitcnt lgkmcnt(0)")
    for kk in range(2):
        for mt in range(4):
            for t in range(3):
                c = 64 + (mt * 3 + t) * 4
                a("v_mfma_f32_16x16x32_bf16 %s, %s, %s, %s" % (vr(c, 4), vr(32 + (t * 2 + kk) * 4, 4), vr(acc(mt, 0) + kk * 4, 4), vr(c, 4) if kk else "0"))
    a("s_nop 7")
    R = range(4)
    for mt in R:
        a("v_cvt_pk_bf16_f32 v%d, v%d, v%d" % (112 + 2 * mt, 72 + mt * 12, 72 + mt * 12))
    for mt in R:
        a("v_lshlrev_b32 v%d, 16, v%d" % (112 + 2 * mt, 112 + 2 * mt))
    for mt in R:
        a("v_add_f32 v%d, 0x358637bd, v%d" % (112 + 2 * mt, 112 + 2 * mt))
    for mt in R:
        a("v_cvt_pk_bf16_f32 v%d, v%d, v%d" % (112 + 2 * mt, 112 + 2 * mt, 112 + 2 * mt))
    for mt in R:
        a("v_lshlrev_b32 v%d, 16, v%d" % (112 + 2 * mt, 112 + 2 * mt))
    for mt in R:
        a("v_rcp_f32 v%d, v%d" % (112 + 2 * mt, 112 + 2 * mt))
    for mt in R:
        for i in range(4):
            a("v_cvt_pk_bf16_f32 v%d, v%d, v%d" % (16 + i, 64 + mt * 12 + 2 * i, 65 + mt * 12 + 2 * i))
        for i in range(4):
            a("v_lshlrev_b32 v%d, 16, v%d" % (64 + mt * 12 + 2 * i, 16 + i))
            a("v_and_b32 v%d, 0xffff0000, v%d" % (65 + mt * 12 + 2 * i, 16 + i))
        for i in range(4):
            a("v_pk_mul_f32 %s, %s, %s op_sel_hi:[1,0]" % (vr(64 + mt * 12 + 2 * i, 2), vr(64 + mt * 12 + 2 * i, 2), vr(112 + 2 * mt, 2)))
        for i in range(4):
            a("v_cvt_pk_bf16_f32 v%d, v%d, v%d" % (20 + (mt & 1) * 4 + i, 64 + mt * 12 + 2 * i, 65 + mt * 12 + 2 * i))
        for dt in range(2):
            a("ds_write_b64 v5, %s offset:%d" % (vr(20 + (mt & 1) * 4 + 2 * dt, 2), mt * 16 * 80 + dt * 32))
    a("s_waitcnt lgkmcnt(0)")
    for j in range(4):
        a("ds_read_b128 %s, v6 offset:%d" % (vr(32 + j * 4, 4), j * 16 * 80))
    for j in range(4):
        a("s_waitcnt lgkmcnt(%d)" % (3 - j))
        a("s_mov_b32 s28, 0x%x" % (j * 16 * 9216))
        a("buffer_store_dwordx4 %s, v12, s[8:11], s28 offen sc1" % vr(32 + j * 4, 4))
    a("s_barrier")


def g2_apply_signal(a):
    a("s_lshr_b32 s28, s2, 4")
    a("s_lshl_b32 s28, s28, 8")
    a("s_add_u32 s28, s28, 32768")
    a("v_mov_b32 v28, s28")
    a("s_waitcnt vmcnt(16)")
    a("s_barrier")
    a("s_cmp_lg_u32 s20, 0")
    a("s_cbranch_scc1 g2_ap_sig")
    a("v_mov_b32 v29, 1")
    a("s_mov_b64 exec, 1")
    a("buffer_atomic_add v29, v28, s[44:47], 0 offen sc1")
    a("s_mov_b64 exec, -1")
    a.label("g2_ap_sig")


def gen_apply(a):
    L = "apply_kernel"
    kernel_head(a, L)
    a("s_cmp_ge_u32 s2, 256")
    a("s_cbranch_scc1 ap_done")
    a("s_load_dwordx2 s[4:5], s[0:1], %d" % KA_WS)
    a("v_and_b32 v1, 63, v0")
    a("v_lshrrev_b32 v2, 6, v0")
    a("v_and_b32 v3, 15, v1")
    a("v_lshrrev_b32 v4, 4, v1")
    a("s_and_b32 s20, s2, 31")
    a("s_lshr_b32 s21, s2, 5")
    a("s_waitcnt lgkmcnt(0)")
    srd(a, 8, 4, WS_KV, SZ_KV)
    srd(a, 12, 4, WS_PQ, SZ_PQ)
    srd(a, 16, 4, WS_HC, SZ_HC)
    a("s_lshl_b32 s22, s20, 11")
    a("s_lshl_b32 s23, s21, 8")
    a("s_add_u32 s22, s22, s23")
    a("v_lshl_add_u32 v5, v2, 6, v3")
    a("v_add_u32 v5, s22, v5")
    a("v_lshlrev_b32 v5, 7, v5")
    a("v_lshl_add_u32 v5, v4, 4, v5")
    for st in range(4):
        for kk in range(2):
            if st < 2:
                a("buffer_load_dwordx4 %s, v5, s[12:15], 0 offen offset:%d" % (vr(64 + (st * 2 + kk) * 4, 4), st * 2048 + kk * 64))
            else:
                a("s_movk_i32 s24, 4096")
                a("buffer_load_dwordx4 %s, v5, s[12:15], s24 offen offset:%d" % (vr(64 + (st * 2 + kk) * 4, 4), (st - 2) * 2048 + kk * 64))
    a("s_lshl_b32 s22, s20, 14")
    a("v_lshlrev_b32 v6, 5, v0")
    a("v_add_u32 v6, s22, v6")
    for rb in range(8):
        a("s_mov_b32 s24, 0x%x" % (rb << 19))
        a("buffer_load_dwordx4 %s, v6, s[8:11], s24 offen" % vr(96 + rb * 8, 4))
        a("buffer_load_dwordx4 %s, v6, s[8:11], s24 offen offset:16" % vr(100 + rb * 8, 4))
    a("v_and_b32 v7, 7, v0")
    a("v_lshlrev_b32 v7, 5, v7")
    a("v_add_u32 v7, s22, v7")
    for rb in range(8):
        a("s_mov_b32 s24, 0x%x" % ((rb << 19) + 8192))
        a("buffer_load_dwordx4 %s, v7, s[8:11], s24 offen" % vr(160 + rb * 8, 4))
        a("buffer_load_dwordx4 %s, v7, s[8:11], s24 offen offset:16" % vr(164 + rb * 8, 4))
    a("s_waitcnt vmcnt(0)")
    for base in (96, 160):
        for rb in range(1, 8):
            for i in range(8):
                a("v_add_f32 v%d, v%d, v%d" % (base + i, base + i, base + rb * 8 + i))
    for i in range(4):
        a("v_cvt_pk_bf16_f32 v%d, v%d, v%d" % (8 + i, 96 + 2 * i, 97 + 2 * i))
        a("v_cvt_pk_bf16_f32 v%d, v%d, v%d" % (12 + i, 160 + 2 * i, 161 + 2 * i))
    a("v_lshlrev_b32 v6, 4, v0")
    a("ds_write_b128 v6, v[8:11]")
    a("v_and_b32 v7, 7, v0")
    a("v_lshlrev_b32 v7, 4, v7")
    a("ds_write_b128 v7, v[12:15] offset:4096")
    a("s_waitcnt lgkmcnt(0)")
    a("s_barrier")
    a("v_lshlrev_b32 v6, 7, v3")
    a("v_lshl_add_u32 v6, v4, 4, v6")
    a("v_lshlrev_b32 v7, 4, v4")
    for dt in range(2):
        for kk in range(2):
            a("ds_read_b128 %s, v6 offset:%d" % (vr(8 + (dt * 2 + kk) * 4, 4), dt * 2048 + kk * 64))
    for kk in range(2):
        a("ds_read_b128 %s, v7 offset:%d" % (vr(24 + kk * 4, 4), 4096 + kk * 64))
    a("s_lshl_b32 s23, s21, 8")
    a("v_lshl_add_u32 v5, v2, 6, v3")
    a("v_add_u32 v5, s23, v5")
    a("s_movk_i32 s24, 9216")
    a("v_mul_lo_u32 v5, v5, s24")
    a("s_lshl_b32 s23, s20, 6")
    a("s_add_u32 s23, s23, 7168")
    a("v_lshl_add_u32 v6, v4, 3, s23")
    a("v_add_u32 v5, v5, v6")
    a("s_waitcnt lgkmcnt(0)")
    for st in range(4):
        C = 96 + st * 12
        for t in range(3):
            a("v_mfma_f32_16x16x32_bf16 %s, %s, %s, 0" % (vr(C + t * 4, 4), vr(8 + t * 8, 4), vr(64 + st * 8, 4)))
        for t in range(3):
            a("v_mfma_f32_16x16x32_bf16 %s, %s, %s, %s" % (vr(C + t * 4, 4), vr(12 + t * 8, 4), vr(68 + st * 8, 4), vr(C + t * 4, 4)))
    a("s_nop 7")
    a("s_nop 7")
    for st in range(4):
        C = 96 + st * 12
        a("v_cvt_pk_bf16_f32 v32, v%d, v%d" % (C + 8, C + 8))
        a("v_lshlrev_b32 v32, 16, v32")
        a("v_add_f32 v32, 0x358637bd, v32")
        a("v_cvt_pk_bf16_f32 v32, v32, v32")
        a("v_lshlrev_b32 v32, 16, v32")
        a("v_rcp_f32 v32, v32")
        for i in range(4):
            bf16_round_pair(a, C + 2 * i, C + 2 * i + 1, 33)
        for i in range(8):
            a("v_mul_f32 v%d, v%d, v32" % (C + i, C + i))
        for i in range(4):
            a("v_cvt_pk_bf16_f32 v%d, v%d, v%d" % (40 + st * 4 + i, C + 2 * i, C + 2 * i + 1))
        a("buffer_store_dwordx2 %s, v5, s[16:19], 0 offen" % vr(40 + st * 4, 2))
        a("buffer_store_dwordx2 %s, v5, s[16:19], 0 offen offset:32" % vr(42 + st * 4, 2))
        if st < 3:
            a("v_add_u32 v5, %d, v5" % (16 * 9216))
    a.label("ap_done")
    a("s_endpgm")
    return L, 224


G2_ACC = 128
G2_FA = (32, 64)
G2_FB = (48, 80)
G2_VA = 16
G2_VB = (18, 19, 20, 21)
G2_N0 = int(os.environ.get("G2_N0", "24"))
G2_DMAPOS = (1, 5, 9, 13)


def g2_mfmas(st):
    out = []
    for mt in range(4):
        for nt in range(4):
            c = G2_ACC + (mt * 4 + nt) * 4
            out.append("v_mfma_f32_16x16x32_bf16 %s, %s, %s, %s" % (
                vr(c, 4), vr(G2_FB[st] + nt * 4, 4), vr(G2_FA[st] + mt * 4, 4), vr(c, 4)))
    return out


def g2_reads(st, buf):
    out = []
    for mt in range(4):
        out.append(["ds_read_b128 %s, %s offset:%d" % (vr(G2_FA[st] + mt * 4, 4), vr(G2_VA), buf * 16384 + mt * 2048)])
    for nt in range(4):
        for rd in range(2):
            out.append(["ds_read_b64_tr_b16 %s, %s offset:%d" % (vr(G2_FB[st] + nt * 4 + rd * 2, 2), vr(G2_VB[nt]), buf * 16384 + rd * 1024)])
    return out


def g2_dmas(buf):
    out = [["s_cmp_eq_u32 s19, 0",
            "s_cselect_b32 s12, s30, s12",
            "s_cselect_b32 s13, s31, s13",
            "s_cselect_b32 s14, 0x%x, s14" % (D * D * 2),
            "s_cselect_b32 s17, 0, s17",
            "s_sub_u32 s19, s19, 1"]]
    for j in range(2):
        out.append(["s_add_u32 m0, s27, %d" % (buf * 16384 + j * 1024),
                    "s_nop 0",
                    "buffer_load_dwordx4 v%d, s[8:11], s16 offen%s lds" % (8 + j, "" if "NOSC1A" in FLAGS else " sc1")])
    for j in range(2):
        out.append(["s_add_u32 m0, s27, %d" % (65536 + buf * 16384 + j * 1024),
                    "s_nop 0",
                    "buffer_load_dwordx4 v%d, s[12:15], s17 offen lds" % (12 + j)])
    out.append(["s_add_u32 s16, s16, 128", "s_add_u32 s17, s17, %d" % (64 * 2048)])
    return out


def g2_iter(a, i, dma, nxt, vm):
    slots = {}
    if dma and "NODMA" not in FLAGS:
        d = g2_dmas(i % 4)
        slots.setdefault(0, []).append(d[0])
        for j in range(4):
            slots.setdefault(G2_DMAPOS[j], []).append(d[1 + j])
        slots.setdefault(G2_DMAPOS[3], []).append(d[5])
    if nxt:
        r = g2_reads((i + 1) & 1, (i + 1) % 4)
        pos = [p for p in range(16) if p not in G2_DMAPOS][:12]
        for p, x in zip(pos, r):
            slots.setdefault(p, []).append(x)
    place(a, g2_mfmas(i & 1), slots)
    if nxt:
        if vm is None:
            a("s_waitcnt lgkmcnt(0)")
        else:
            a("s_waitcnt vmcnt(%d) lgkmcnt(0)" % vm)
        a("s_barrier")


def gen_gemm2(a):
    L = "gemm2_kernel"
    kernel_head(a, L)
    a("s_cmp_ge_u32 s2, 256")
    a("s_cbranch_scc1 g2_done")
    stamp(a, 0)
    stamp_rt(a, 6)
    a("s_load_dwordx2 s[4:5], s[0:1], %d" % KA_WS)
    a("s_load_dwordx2 s[6:7], s[0:1], %d" % KA_W2)
    a("s_load_dwordx2 s[30:31], s[0:1], %d" % KA_WO)
    a("s_load_dwordx2 s[32:33], s[0:1], %d" % KA_X)
    a("s_load_dwordx2 s[34:35], s[0:1], %d" % KA_B2)
    a("s_load_dwordx2 s[36:37], s[0:1], %d" % KA_OUT)
    g1_common_addr(a)
    a("s_and_b32 s21, s2, 7")
    a("s_lshr_b32 s23, s2, 7")
    a("s_bfe_u32 s24, s2, 0x20003")
    a("s_and_b32 s25, s21, 3")
    a("s_lshl_b32 s25, s25, 2")
    a("s_add_u32 s24, s24, s25")
    a("s_bfe_u32 s25, s2, 0x20005")
    a("s_lshr_b32 s26, s21, 2")
    a("s_lshl_b32 s26, s26, 2")
    a("s_add_u32 s25, s25, s26")
    if "SAMETILE" in FLAGS:
        a("s_mov_b32 s24, 0")
        a("s_mov_b32 s25, 0")
        a("s_mov_b32 s23, 0")
    a("s_lshr_b32 s21, s20, 2")
    a("s_bfe_u32 s22, s20, 0x10001")
    a("s_and_b32 s26, s20, 1")
    a("s_lshl_b32 s27, s20, 11")
    a("s_waitcnt lgkmcnt(0)")
    srd(a, 8, 4, WS_HC, SZ_HC)
    srd(a, 44, 4, WS_FL, SZ_FL)
    a("s_cmp_lg_u32 s23, 0")
    a("s_cbranch_scc1 g2_noapply")
    g2_apply(a)
    a.label("g2_noapply")
    a("v_lshrrev_b32 v5, 3, v1")
    a("s_lshl_b32 s28, s24, 7")
    a("s_lshl_b32 s29, s20, 4")
    a("s_add_u32 s28, s28, s29")
    a("v_add_u32 v5, s28, v5")
    a("s_movk_i32 s28, 9216")
    a("v_mul_lo_u32 v5, v5, s28")
    a("v_and_b32 v6, 7, v1")
    for j in range(2):
        a("v_add_u32 v7, %d, v4" % (4 * j))
        a("v_and_b32 v7, 7, v7")
        a("v_xor_b32 v7, v7, v6")
        a("v_lshl_add_u32 v7, v7, 4, v5")
        a("v_add_u32 v%d, %d, v7" % (8 + j, j * 8 * 9216))
    a("s_lshl_b32 s28, s20, 3")
    a("v_add_u32 v5, s28, v4")
    a("v_lshlrev_b32 v5, 11, v5")
    a("s_lshl_b32 s28, s25, 8")
    a("v_add_u32 v5, s28, v5")
    a("s_lshl_b32 s28, s26, 2")
    a("v_or_b32 v7, s28, v4")
    a("v_lshlrev_b32 v7, 1, v7")
    a("v_xor_b32 v7, v7, v3")
    a("v_lshl_add_u32 v12, v7, 4, v5")
    a("v_add_u32 v13, %d, v12" % (4 * 2048))
    a("s_lshl_b32 s28, s21, 2")
    a("v_add_u32 v5, s28, v4")
    a("v_lshrrev_b32 v6, 1, v3")
    a("v_xor_b32 v5, v5, v6")
    a("s_lshl_b32 s28, s22, 6")
    a("v_add_u32 v6, s28, v3")
    a("v_lshlrev_b32 v6, 7, v6")
    a("v_lshl_add_u32 v%d, v5, 4, v6" % G2_VA)
    a("v_bfe_u32 v5, v1, 2, 2")
    a("v_and_b32 v6, 1, v4")
    a("v_lshl_or_b32 v6, v6, 2, v5")
    a("v_lshl_add_u32 v5, v4, 3, v5")
    a("s_lshl_b32 s28, s21, 5")
    a("v_add_u32 v5, s28, v5")
    a("v_lshlrev_b32 v5, 8, v5")
    a("v_and_b32 v7, 3, v1")
    a("v_lshl_add_u32 v5, v7, 3, v5")
    a("v_add_u32 v5, 0x10000, v5")
    for nt in range(4):
        a("s_lshl_b32 s28, s26, 2")
        a("s_add_u32 s28, s28, %d" % nt)
        a("v_xor_b32 v7, s28, v6")
        a("v_lshl_add_u32 v%d, v7, 5, v5" % G2_VB[nt])
    srd(a, 12, 6, 0, F * D * 2)
    a("s_and_b32 s31, s31, 0xffff")
    a("s_mul_i32 s16, s23, %d" % (G2_N0 * 64 * 2))
    a("s_mul_i32 s17, s23, %d" % (G2_N0 * 64 * 2048))
    a("s_mov_b32 s19, 1000")
    a("s_mov_b32 s18, %d" % ((G2_N0 - 4) // 4))
    a("s_cmp_eq_u32 s23, 1")
    a("s_cselect_b32 s19, %d, s19" % (56 - G2_N0))
    a("s_cselect_b32 s18, %d, s18" % ((72 - G2_N0 - 4) // 4))
    a("s_cselect_b32 s3, %d, 0" % ((72 - G2_N0 - 4) // 4 - (56 - G2_N0 - 4) // 4))
    a("s_lshr_b32 s28, s24, 1")
    a("s_lshl_b32 s28, s28, 8")
    a("s_add_u32 s28, s28, 32768")
    a("v_mov_b32 v27, s28")
    srd(a, 40, 4, WS_P, SZ_P)
    a("s_lshl_b32 s28, s24, 3")
    a("s_add_u32 s28, s28, s25")
    a("s_lshl_b32 s38, s28, 8")
    a("s_lshl_b32 s39, s28, 16")
    a("s_lshl_b32 s28, s20, 13")
    a("s_add_u32 s39, s39, s28")
    a("v_mov_b32 v22, s38")
    a("v_lshlrev_b32 v24, 4, v1")
    a("v_add_u32 v24, s39, v24")
    a("s_movk_i32 s39, 4096")
    srd(a, 48, 32, 0, S * D * 2)
    srd(a, 52, 34, 0, D * 2)
    srd(a, 56, 36, 0, S * D * 2)
    a("s_lshl_b32 s28, s24, 7")
    a("s_lshl_b32 s29, s20, 4")
    a("s_add_u32 s28, s28, s29")
    a("v_add_u32 v25, s28, v4")
    a("v_lshlrev_b32 v25, 11, v25")
    a("s_lshl_b32 s28, s25, 8")
    a("v_lshl_add_u32 v26, v3, 4, s28")
    a("v_add_u32 v25, v25, v26")
    for st in range(4):
        for f in g2_dmas(st):
            for x in f:
                a(x)
    for i in range(64):
        a("v_mov_b32 v%d, 0" % (G2_ACC + i))
    a("s_cmp_lg_u32 s23, 0")
    a("s_cbranch_scc1 g2_nosig")
    g2_apply_signal(a)
    a.label("g2_nosig")
    stamp(a, 1)
    a("s_waitcnt vmcnt(12)")
    a("s_barrier")
    stamp(a, 2)
    for f in g2_reads(0, 0):
        for x in f:
            a(x)
    a("s_waitcnt vmcnt(8) lgkmcnt(0)")
    a("s_barrier")
    a("v_mov_b32 v23, 0")
    a.label("g2_loop")
    a("s_cmp_eq_u32 s18, s3")
    a("s_cbranch_scc1 g2_opoll")
    a("s_add_u32 s28, s3, 1")
    a("s_cmp_lg_u32 s18, s28")
    a("s_cbranch_scc1 g2_loop2")
    a("buffer_load_dword v23, v27, s[44:47], 0 offen sc1")
    a.label("g2_loop2")
    for i in range(4):
        g2_iter(a, i, True, True, 8)
    a("s_sub_u32 s18, s18, 1")
    a("s_cmp_lg_u32 s18, 0")
    a("s_cbranch_scc1 g2_loop")
    stamp(a, 8)
    a("buffer_load_dword v23, v22, s[44:47], 0 offen sc1")
    g2_iter(a, 0, False, True, 5)
    a("s_cmp_eq_u32 s23, 0")
    a("s_cbranch_scc1 g2_pubtail")
    for j in range(4):
        a("s_mov_b32 s38, 0x%x" % (j * 4 * 2048))
        a("buffer_load_dwordx4 %s, v25, s[48:51], s38 offen" % vr(224 + j * 4, 4))
    a("buffer_load_dwordx4 v[240:243], v26, s[52:55], 0 offen")
    g2_iter(a, 1, False, True, 5)
    stamp(a, 7)
    a("s_mov_b32 s29, 0")
    a("s_branch g2_chk")
    a.label("g2_spin")
    a("buffer_load_dword v23, v22, s[44:47], 0 offen sc1")
    a("s_waitcnt vmcnt(0)")
    a.label("g2_chk")
    a("v_readfirstlane_b32 s28, v23")
    a("s_add_u32 s29, s29, 1")
    a("s_cmp_ge_u32 s28, 1")
    a("s_cbranch_scc1 g2_go")
    a("s_sleep 2")
    a("s_cmp_lt_u32 s29, 0x100000")
    a("s_cbranch_scc1 g2_spin")
    a.label("g2_go")
    stamp(a, 9)
    for t in range(8):
        a("buffer_load_dwordx4 %s, v24, s[40:43], %s offen offset:%d sc1" % (vr(192 + t * 4, 4), "s39" if t >= 4 else "0", (t % 4) * 1024))
    a("s_branch g2_tail")
    a.label("g2_pubtail")
    g2_iter(a, 1, False, True, 0)
    a.label("g2_tail")
    g2_iter(a, 2, False, True, None)
    g2_iter(a, 3, False, False, None)
    stamp(a, 3)
    a("s_nop 7")
    a("s_barrier")
    a("s_mul_i32 s28, s21, %d" % (128 * 528))
    a("s_mul_i32 s29, s22, %d" % (64 * 528))
    a("s_add_u32 s28, s28, s29")
    a("s_lshl_b32 s29, s26, 8")
    a("s_add_u32 s28, s28, s29")
    a("s_movk_i32 s29, 528")
    a("v_mul_lo_u32 v6, v3, s29")
    a("v_lshl_add_u32 v6, v4, 4, v6")
    a("v_add_u32 v6, s28, v6")
    for mt in range(4):
        for nt in range(4):
            a("ds_write_b128 v6, %s offset:%d" % (vr(G2_ACC + (mt * 4 + nt) * 4, 4), mt * 16 * 528 + nt * 64))
    a("s_lshl_b32 s28, s20, 4")
    a("v_add_u32 v7, s28, v4")
    a("v_mul_lo_u32 v7, v7, s29")
    a("v_lshl_add_u32 v7, v3, 5, v7")
    a("v_add_u32 v6, %d, v7" % (128 * 528))
    a("s_waitcnt lgkmcnt(0)")
    a("s_barrier")
    for j in range(4):
        for hf in range(2):
            a("ds_read_b128 %s, v7 offset:%d" % (vr(128 + j * 8 + hf * 4, 4), j * 4 * 528 + hf * 16))
            a("ds_read_b128 %s, v6 offset:%d" % (vr(32 + j * 8 + hf * 4, 4), j * 4 * 528 + hf * 16))
    a("s_waitcnt lgkmcnt(0)")
    for i in range(32):
        a("v_add_f32 v%d, v%d, v%d" % (128 + i, 128 + i, 32 + i))
    a("s_cmp_lg_u32 s23, 0")
    a("s_cbranch_scc1 g2_second")
    for t in range(8):
        a("buffer_store_dwordx4 %s, v24, s[40:43], %s offen offset:%d sc1" % (vr(128 + t * 4, 4), "s39" if t >= 4 else "0", (t % 4) * 1024))
    a("s_waitcnt vmcnt(0)")
    stamp(a, 8)
    a("s_barrier")
    a("s_cmp_lg_u32 s20, 0")
    a("s_cbranch_scc1 g2_fin")
    a("v_mov_b32 v23, 1")
    a("s_mov_b64 exec, 1")
    a("buffer_atomic_add v23, v22, s[44:47], 0 offen sc1")
    a("s_mov_b64 exec, -1")
    a("s_branch g2_fin")
    a.label("g2_second")
    a("s_waitcnt vmcnt(0)")
    for p in range(4):
        a("v_lshlrev_b32 v%d, 16, v%d" % (32 + 2 * p, 240 + p))
        a("v_and_b32 v%d, 0xffff0000, v%d" % (33 + 2 * p, 240 + p))
    for j in range(4):
        for p in range(4):
            c = 128 + j * 8 + 2 * p
            a("v_lshlrev_b32 v12, 16, v%d" % (224 + j * 4 + p))
            a("v_and_b32 v13, 0xffff0000, v%d" % (224 + j * 4 + p))
            a("v_add_f32 v12, v12, v%d" % (32 + 2 * p))
            a("v_add_f32 v13, v13, v%d" % (33 + 2 * p))
            a("v_add_f32 v%d, v%d, v%d" % (c, c, 192 + j * 8 + 2 * p))
            a("v_add_f32 v%d, v%d, v%d" % (c + 1, c + 1, 193 + j * 8 + 2 * p))
            a("v_add_f32 v%d, v%d, v12" % (c, c))
            a("v_add_f32 v%d, v%d, v13" % (c + 1, c + 1))
            a("v_cvt_pk_bf16_f32 v%d, v%d, v%d" % (64 + j * 4 + p, c, c + 1))
        a("s_mov_b32 s38, 0x%x" % (j * 4 * 2048))
        a("buffer_store_dwordx4 %s, v25, s[56:59], s38 offen%s" % (vr(64 + j * 4, 4), ST2))
    a.label("g2_fin")
    if "STAMP" in FLAGS:
        a("s_waitcnt vmcnt(0)")
    stamp(a, 4)
    stamp_rt(a, 5)
    stamp_flush(a, 10, 1)
    a.label("g2_done")
    a("s_endpgm")
    a.label("g2_opoll")
    a("s_mov_b32 s29, 0")
    a("s_branch g2_ochk")
    a.label("g2_ospin")
    a("buffer_load_dword v23, v27, s[44:47], 0 offen sc1")
    a("s_waitcnt vmcnt(0)")
    a.label("g2_ochk")
    a("v_readfirstlane_b32 s28, v23")
    a("s_add_u32 s29, s29, 1")
    a("s_cmp_ge_u32 s28, 16")
    a("s_cbranch_scc1 g2_loop2")
    a("s_sleep 2")
    a("s_cmp_lt_u32 s29, 0x100000")
    a("s_cbranch_scc1 g2_ospin")
    a("s_branch g2_loop2")
    return L, 248


def gen_combine(a):
    L = "combine_kernel"
    kernel_head(a, L)
    a("s_cmp_ge_u32 s2, 1024")
    a("s_cbranch_scc1 cb_done")
    a("s_load_dwordx2 s[4:5], s[0:1], %d" % KA_WS)
    a("s_load_dwordx2 s[6:7], s[0:1], %d" % KA_X)
    a("s_load_dwordx2 s[20:21], s[0:1], %d" % KA_B2)
    a("s_load_dwordx2 s[22:23], s[0:1], %d" % KA_OUT)
    a("s_lshl_b32 s3, s2, 8")
    a("v_add_u32 v1, s3, v0")
    a("v_lshlrev_b32 v2, 5, v1")
    a("v_lshlrev_b32 v3, 4, v1")
    a("v_and_b32 v4, 127, v1")
    a("v_lshlrev_b32 v4, 4, v4")
    a("s_waitcnt lgkmcnt(0)")
    srd(a, 8, 4, WS_P, SZ_P)
    srd(a, 12, 6, 0, S * D * 2)
    srd(a, 16, 20, 0, D * 2)
    srd(a, 24, 22, 0, S * D * 2)
    a("s_mov_b32 s28, 0x800000")
    a("buffer_load_dwordx4 v[8:11], v2, s[8:11], 0 offen")
    a("buffer_load_dwordx4 v[12:15], v2, s[8:11], 0 offen offset:16")
    a("buffer_load_dwordx4 v[16:19], v2, s[8:11], s28 offen")
    a("buffer_load_dwordx4 v[20:23], v2, s[8:11], s28 offen offset:16")
    a("buffer_load_dwordx4 v[24:27], v3, s[12:15], 0 offen")
    a("buffer_load_dwordx4 v[28:31], v4, s[16:19], 0 offen")
    a("s_waitcnt vmcnt(0)")
    for i in range(8):
        a("v_add_f32 v%d, v%d, v%d" % (8 + i, 8 + i, 16 + i))
    for i in range(4):
        a("v_lshlrev_b32 v32, 16, v%d" % (24 + i))
        a("v_and_b32 v33, 0xffff0000, v%d" % (24 + i))
        a("v_lshlrev_b32 v34, 16, v%d" % (28 + i))
        a("v_and_b32 v35, 0xffff0000, v%d" % (28 + i))
        a("v_add_f32 v32, v32, v34")
        a("v_add_f32 v33, v33, v35")
        a("v_add_f32 v%d, v%d, v32" % (8 + 2 * i, 8 + 2 * i))
        a("v_add_f32 v%d, v%d, v33" % (9 + 2 * i, 9 + 2 * i))
        a("v_cvt_pk_bf16_f32 v%d, v%d, v%d" % (36 + i, 8 + 2 * i, 9 + 2 * i))
    a("buffer_store_dwordx4 v[36:39], v3, s[24:27], 0 offen")
    a.label("cb_done")
    a("s_endpgm")
    return L, 40


def main():
    a = Asm()
    hdr = open("cdna_kernels/%s.s.ref" % NAME).read().split("\n")
    head = [l for l in hdr if l.startswith(";") and "@launch" not in l and "Override launch" not in l and "grid=ceil" not in l]
    launches = [
        "; @launch kernel=gemm1_kernel grid=(256,1,1) block=(512,1,1) lds=131072",
        "; @launch kernel=gemm2_kernel grid=(256,1,1) block=(512,1,1) lds=135168",
    ]
    a.raw("\n".join(head + launches))
    a.raw('.amdgcn_target "amdgcn-amd-amdhsa--gfx950"')
    a.raw(".text")
    descs = []
    for g in (gen_gemm1, gen_gemm2):
        label, v = g(a)
        descs.append(kernel_desc(label, v))
    a.raw('.section .rodata,"a"')
    for d in descs:
        a.raw(".p2align 6")
        a.raw(d)
    open(OUT, "w").write(a.text())
    print("wrote", OUT, len(a.lines), "lines")


if __name__ == "__main__":
    main()
```
